```python
import torch

def _softmax(x, axis=-1):
    return torch.softmax(x, dim=axis)
def _gelu(x):
    return torch.nn.functional.gelu(x, approximate="tanh")
def _silu(x):
    return torch.nn.functional.silu(x)
def _sigmoid(x):
    return torch.sigmoid(x)
def _layernorm(x, axis=-1, eps=1e-5):
    m = x.mean(dim=axis, keepdim=True)
    v = x.var(dim=axis, keepdim=True, unbiased=False)
    return (x - m) / torch.sqrt(v + eps)
def _scatter_add(tgt, idx, src, axis=0):
    return tgt.clone().index_add_(axis, idx, src)
def _segment_sum(src, seg, n):
    out = torch.zeros((n,) + src.shape[1:], dtype=src.dtype)
    return out.index_add_(0, seg, src)
def _pad(x, pw):
    flat = tuple(v for pair in reversed(pw) for v in pair)
    return torch.nn.functional.pad(x, flat)

kernel_name = 'interleave_layers__ssm_conv_h3__linear_kernel_hedgehog__prompt'

def setup_inputs():

    _w = (lambda a: (lambda t: t.to(torch.bfloat16) if t.is_floating_point() else t)(torch.as_tensor(a)))
    def _A_setup():
        B, S, D = 1, 2048, 576
        ks = 4
        return {
            "q": _w((lambda *s: torch.randn(*s, dtype=torch.bfloat16) * 0.05)(B, S, D)),
            "k": _w((lambda *s: torch.randn(*s, dtype=torch.bfloat16) * 0.8)(B, S, D)),
            "v": _w((lambda *s: torch.randn(*s, dtype=torch.bfloat16) * 0.8)(B, S, D)),
            "shift_k": _w((lambda *s: torch.randn(*s, dtype=torch.bfloat16) * 0.8)(D, ks) * 0.5),
            "ssm_k": _w((lambda *s: torch.randn(*s, dtype=torch.bfloat16) * 0.8)(D, S) * (1.0 / S ** 0.5)),
            "ssm_D": _w((lambda *s: torch.randn(*s, dtype=torch.bfloat16) * 0.8)(D)),
        }
    _A_in = _A_setup()

    def _B_setup():
        B, S, D, H = 1, 2048, 576, 32
        Dh = D // H
        return {
            "x": _w((lambda *s: torch.randn(*s, dtype=torch.bfloat16) * 0.05)(B, S, D)),
            "wqkv": _w((lambda *s: torch.randn(*s, dtype=torch.bfloat16) * 0.4)(D, 3 * D)),
            "w_phi": _w((lambda *s: torch.randn(*s, dtype=torch.bfloat16) * 0.4)(H, Dh, Dh) * (Dh ** -0.5)),
            "wo": _w((lambda *s: torch.randn(*s, dtype=torch.bfloat16) * 0.2)(D, D)),
        }
    _B_in = _B_setup()

    return {
        "A_q": _A_in["q"],
        "A_k": _A_in["k"],
        "A_v": _A_in["v"],
        "A_shift_k": _A_in["shift_k"],
        "A_ssm_k": _A_in["ssm_k"],
        "A_ssm_D": _A_in["ssm_D"],
        "B_x": _B_in["x"],
        "B_wqkv": _B_in["wqkv"],
        "B_w_phi": _B_in["w_phi"],
        "B_wo": _B_in["wo"],
    }

def reference(A_q, A_k, A_v, A_shift_k, A_ssm_k, A_ssm_D, B_x, B_wqkv, B_w_phi, B_wo):
    def _A_ref(q, k, v, shift_k, ssm_k, ssm_D):
        B, S, D = q.shape
        ks = shift_k.shape[-1]
        k_pad = _pad(k, ((0, 0), (ks - 1, 0), (0, 0)))
        k_shift = torch.zeros_like(k)
        for t in range(ks):
            k_shift = k_shift + k_pad[:, t:t + S, :] * shift_k[:, ks - 1 - t][None, None, :]
        kv = k_shift * v
        L = 2 * S
        kv_pad = _pad(kv, ((0, 0), (0, S), (0, 0)))
        kf_pad = _pad(ssm_k, ((0, 0), (0, S)))
        kv_f = (lambda x, axes=(-2,-1): torch.fft.rfft2(x.float(), dim=axes))(kv_pad[:, None, :, :], axes=(1, 2))
        kf_f = (lambda x, axes=(-2,-1): torch.fft.rfft2(x.float(), dim=axes))(kf_pad[:, None, :], axes=(1, 2))
        kf_f = (lambda x, *d: x.permute(*d))(kf_f, 1, 2, 0)
        y_f = kv_f * kf_f[None, :, :, :]
        y = (lambda x, s, axes=(-2,-1): torch.fft.irfft2(x, s=s, dim=axes).to(torch.bfloat16))(y_f, (1, L), axes=(1, 2))[:, 0, :S, :]
        y = y + kv * ssm_D[None, None, :]
        return q * y

    def _B_ref(x, wqkv, w_phi, wo):
        B, S, D = x.shape
        H = 32; Dh = D // H
        qkv = (lambda x, *d: x.permute(*d))((x @ wqkv).reshape(B, S, 3, H, Dh), 2, 0, 3, 1, 4)
        q, k, v = qkv[0], qkv[1], qkv[2]
        pq = torch.einsum("bhsd,hdf->bhsf", q, w_phi)
        pk = torch.einsum("bhsd,hdf->bhsf", k, w_phi)
        phi_q = torch.concatenate([_softmax(pq, axis=-1), _softmax(-pq, axis=-1)], axis=-1)
        phi_k = torch.concatenate([_softmax(pk, axis=-1), _softmax(-pk, axis=-1)], axis=-1)
        kv = torch.einsum("bhsf,bhsd->bhfd", phi_k, v)
        z  = torch.einsum("bhsf->bhf", phi_k)
        num = torch.einsum("bhqf,bhfd->bhqd", phi_q, kv)
        den = torch.einsum("bhqf,bhf->bhq", phi_q, z)[..., None] + 1e-6
        o = num / den
        return (lambda x, *d: x.permute(*d))(o, 0, 2, 1, 3).reshape(B, S, D) @ wo

    x = A_q
    x = x + _A_ref(_layernorm(x, axis=-1), A_k, A_v, A_shift_k, A_ssm_k, A_ssm_D)
    x = x + _B_ref(_layernorm(x, axis=-1), B_wqkv, B_w_phi, B_wo)
    x = x + _A_ref(_layernorm(x, axis=-1), A_k, A_v, A_shift_k, A_ssm_k, A_ssm_D)
    x = x + _B_ref(_layernorm(x, axis=-1), B_wqkv, B_w_phi, B_wo)
    return x
```

```python
import re

TRANS = ("v_exp_f32", "v_log_f32", "v_rcp_f32", "v_rsq_f32", "v_sqrt_f32", "v_sin_f32", "v_cos_f32")

def parse_reg(tok):
    tok = tok.strip()
    t = tok
    if t.startswith("-"): t = t[1:]
    if t.startswith("abs(") and t.endswith(")"): t = t[4:-1]
    if t.startswith("|") and t.endswith("|"): t = t[1:-1]
    m = re.fullmatch(r"([vas])(\d+)", t)
    if m: return [(m.group(1), int(m.group(2)))]
    m = re.fullmatch(r"([vas])\[(\d+):(\d+)\]", t)
    if m: return [(m.group(1), i) for i in range(int(m.group(2)), int(m.group(3)) + 1)]
    if t == "vcc": return [("x", "vcc")]
    if t in ("exec", "exec_lo", "exec_hi"): return [("x", "exec")]
    if t == "m0": return [("x", "m0")]
    return []

class Ins:
    __slots__ = ("text", "op", "dst", "src", "ops", "mods", "kind", "seq", "lds", "passes", "srcc")
    def __init__(self, text):
        self.text = text
        body = text.split(";")[0].strip()
        self.op = body.split()[0] if body else ""
        rest = body[len(self.op):].strip()
        parts = [p.strip() for p in re.split(r",(?![^\[]*\])", rest)] if rest else []
        mods = ""
        if parts:
            last = parts[-1].split(None, 1)
            parts[-1] = last[0]
            mods = last[1] if len(last) > 1 else ""
        self.ops, self.mods = parts, mods
        op = self.op
        R = [parse_reg(p) for p in parts]
        flat = lambda L: [r for x in L for r in x]
        self.lds = False; self.passes = 0; self.srcc = []
        if op.endswith(":"):
            self.kind, self.dst, self.src = "label", [], []
        elif op.startswith("v_mfma"):
            self.kind = "mfma"; self.dst = R[0]; self.src = flat(R[1:]); self.srcc = R[3]
            self.passes = 8 if "32x32x16" in op else 4 if "16x16x32" in op else None
            assert self.passes
        elif op.startswith("v_"):
            self.kind = "valu"
            if op.startswith("v_permlane") and "swap" in op:
                self.dst = flat(R[:2]); self.src = flat(R[:2])
            elif re.match(r"v_(add|sub|subrev|addc|subb)_co_", op):
                self.dst = flat(R[:2]); self.src = flat(R[2:])
            else:
                self.dst = R[0]; self.src = flat(R[1:])
                if op.startswith(("v_fmac", "v_dot2c", "v_pk_fmac", "v_writelane")) or "_dpp" in op:
                    self.src = self.src + R[0]
        elif op.startswith("ds_"):
            self.kind = "ds"
            if op.startswith("ds_read"): self.dst = R[0]; self.src = flat(R[1:])
            else: self.dst = []; self.src = flat(R)
        elif op.startswith(("buffer_", "global_")):
            self.kind = "vm"
            ml = mods.split()
            if "load" in op and "lds" in ml:
                self.lds = True; self.dst = []; self.src = flat(R) + [("x", "m0")]
            elif "load" in op: self.dst = R[0]; self.src = flat(R[1:])
            elif "atomic" in op: self.dst = R[0] if "sc0" in ml else []; self.src = flat(R)
            else: self.dst = []; self.src = flat(R)
        elif op.startswith(("s_load", "s_memtime", "s_memrealtime")):
            self.kind = "smem"; self.dst = R[0]; self.src = flat(R[1:])
        elif op.startswith(("s_cbranch", "s_branch")):
            self.kind = "branch"; self.dst = []; self.src = []
        elif op in ("s_waitcnt", "s_barrier", "s_nop", "s_endpgm", "s_sleep", "s_setprio"):
            self.kind = "ctl"; self.dst = []; self.src = []
        elif op.startswith("s_cmp"):
            self.kind = "salu"; self.dst = []; self.src = flat(R)
        elif op.startswith("s_"):
            self.kind = "salu"; self.dst = R[0]; self.src = flat(R[1:])
            if "saveexec" in op: self.dst = self.dst + [("x", "exec")]
        else:
            self.kind, self.dst, self.src = "dir", [], []

class Op:
    __slots__ = ("seq", "dst", "cnt", "text")
    def __init__(self, seq, dst, cnt, text): self.seq, self.dst, self.cnt, self.text = seq, set(dst), cnt, text

class State:
    def __init__(self):
        self.q = {"vm": [], "lg": []}
        self.haz = []
        self.dead = False
    def copy(self):
        s = State(); s.q = {k: [list(e) for e in v] for k, v in self.q.items()}
        s.haz = [list(e) for e in self.haz]; return s
    def merge(self, o):
        if self.dead:
            c = o.copy(); self.q, self.haz, self.dead = c.q, c.haz, False; return
        for k in self.q:
            a = {e[0].seq: e for e in self.q[k]}; b = {e[0].seq: e for e in o.q[k]}
            out = []
            for s in sorted(set(a) | set(b)):
                if s in a and s in b: out.append([a[s][0], a[s][1] and b[s][1]])
                else: out.append([(a.get(s) or b.get(s))[0], False])
            self.q[k] = out
        d = {}
        for ins, age in self.haz + o.haz:
            if id(ins) not in d or age < d[id(ins)][1]: d[id(ins)] = [ins, age]
        self.haz = list(d.values())

class Prog:
    def __init__(self):
        self.out = []; self.st = State(); self.seq = 0; self.snap = {}; self.nlab = 0
        self.nops = 0; self.seen_labels = set(); self.maxv = -1; self.maxa = -1; self.maxs = -1
    def lab(self, base="L"):
        self.nlab += 1; return f"{base}_{self.nlab}"
    def _need(self, p, c):
        ps, cs_src, cs_dst = set(p.dst), set(c.src), set(c.dst)
        n = 0
        if p.kind == "valu":
            vd = {r for r in ps if r[0] in "va"}; sd = {r for r in ps if r[0] in "sx"}
            if c.kind == "mfma" and vd & cs_src: n = max(n, 2)
            if c.kind == "valu":
                if vd & cs_src:
                    if "_dpp" in c.op or c.op.startswith("v_permlane"): n = max(n, 2)
                    if c.op.startswith(("v_readlane", "v_readfirstlane")): n = max(n, 1)
                    if p.op.split("_e")[0] in TRANS and c.op.split("_e")[0] not in TRANS: n = max(n, 1)
                    if p.op in TRANS and c.op not in TRANS: n = max(n, 1)
                if sd & cs_src: n = max(n, 4 if c.op.startswith(("v_readlane", "v_writelane")) else 2)
            if c.kind in ("vm",) and sd & cs_src: n = max(n, 5)
            if c.kind in ("vm", "ds") and vd & cs_src and p.op in TRANS: n = max(n, 1)
        elif p.kind == "mfma":
            big = 12 if p.passes == 8 else 8
            if c.kind == "mfma":
                ab = set(c.src[:len(c.src) - len(c.srcc)])
                if ps & ab: n = max(n, big)
                cc = set(c.srcc)
                if ps & cc and not (c.srcc == p.dst and c.passes == p.passes): n = max(n, big - 2)
                if ps & cs_dst and not (c.dst == p.dst and c.srcc == p.dst): n = max(n, big - 2)
            elif c.kind in ("valu", "vm", "ds"):
                if ps & (cs_src | cs_dst): n = max(n, big)
                if c.kind == "valu" and set(p.srcc) & cs_dst: n = max(n, 7 if p.passes == 8 else 3)
        elif p.kind == "vm" and "store" in p.op and ("x4" in p.op or "x3" in p.op):
            data = set(parse_reg(p.ops[0]))
            if data & cs_dst: n = max(n, 2)
        elif p.kind == "salu":
            if ("x", "m0") in ps and c.kind == "vm" and c.lds: n = max(n, 1)
        return n
    def _age(self, k):
        self.st.haz = [[i, a + k] for i, a in self.st.haz if a + k < 13]
    def _check_pending(self, c):
        touched = set(c.src) | set(c.dst)
        for k in self.st.q:
            for o, _ in self.st.q[k]:
                if o.dst & touched:
                    raise RuntimeError(f"use of pending load result: '{c.text}' touches {sorted(o.dst & touched)} of '{o.text}'")
    def _emit(self, c):
        for r in c.src + c.dst:
            if r[0] == "v": self.maxv = max(self.maxv, r[1])
            if r[0] == "a": self.maxa = max(self.maxa, r[1])
            if r[0] == "s": self.maxs = max(self.maxs, r[1])
        if c.kind == "dir": self.out.append(c.text); return None
        if c.kind == "label":
            name = c.op[:-1]; self.seen_labels.add(name)
            for s in self.snap.pop(name, []): self.st.merge(s)
            assert not self.st.dead, f"unreachable label {name}"
            self.out.append(c.text); return None
        assert not self.st.dead, "code after unconditional branch: " + c.text
        need = 0
        for p, age in self.st.haz: need = max(need, self._need(p, c) - age)
        if need > 0:
            self.out.append(f"s_nop {need - 1}"); self.nops += need; self._age(need)
        self._check_pending(c)
        self.out.append(c.text)
        h = None
        if c.op == "s_waitcnt":
            for k, nm in (("vm", "vmcnt"), ("lg", "lgkmcnt")):
                m = re.search(nm + r"\((\d+)\)", c.text)
                if m: self._pop(k, int(m.group(1)))
        if c.kind in ("vm", "ds", "smem"):
            self.seq += 1
            k = "vm" if c.kind == "vm" else "lg"
            h = Op(self.seq, c.dst, k, c.text); h.dst = {r for r in h.dst}
            if c.kind == "smem": h.cnt = "smem"
            self.st.q[k].append([h, True])
        self._age(int(c.ops[0]) + 1 if c.op == "s_nop" else 1)
        if c.kind in ("valu", "mfma", "salu") or (c.kind == "vm" and "store" in c.op):
            self.st.haz.append([c, 0])
        if c.kind == "branch":
            tgt = c.ops[0]
            if tgt not in self.seen_labels: self.snap.setdefault(tgt, []).append(self.st.copy())
            if c.op == "s_branch": self.st.dead = True
        if c.op == "s_endpgm": self.st.dead = True
        return h
    def _pop(self, k, n):
        q = self.st.q[k]
        if k == "lg" and n > 0 and any(o.cnt == "smem" for o, _ in q): return
        keep = []; younger = 0
        for e in reversed(q):
            if younger < n: keep.append(e)
            if e[1]: younger += 1
        self.st.q[k] = list(reversed(keep))
    def __call__(self, text):
        h = None
        for ln in text.split("\n"):
            ln = ln.strip()
            if not ln or ln.startswith(";"): continue
            h = self._emit(Ins(ln))
        return h
    def wait(self, *hs):
        arg = []
        for k, nm, mx in (("vm", "vmcnt", 63), ("lg", "lgkmcnt", 15)):
            q = self.st.q[k]; best = None
            for h in hs:
                if h is None: continue
                idx = [i for i, e in enumerate(q) if e[0] is h]
                if not idx: continue
                n = sum(1 for e in q[idx[0] + 1:] if e[1])
                if k == "lg" and any(o.cnt == "smem" for o, _ in q): n = 0
                best = n if best is None else min(best, n)
            if best is not None: arg.append(f"{nm}({min(best, mx)})")
        if arg: self("s_waitcnt " + " ".join(arg))
    def waitall(self, vm=True, lg=True):
        arg = []
        if vm and self.st.q["vm"]: arg.append("vmcnt(0)")
        if lg and self.st.q["lg"]: arg.append("lgkmcnt(0)")
        if arg: self("s_waitcnt " + " ".join(arg))
    def nvm(self): return len(self.st.q["vm"])
    def text(self):
        assert not self.snap, f"unresolved labels {list(self.snap)}"
        return "\n".join(self.out) + "\n"

COST = {"trans": 8, "valu4": 4, "valu8": 5}
def mix(p, main, fill, budget):
    fill = list(fill); credit = 0
    for m in main:
        m(); credit += budget
        while fill and fill[0][0] <= credit:
            c, f = fill.pop(0); f(); credit -= c
        credit = min(credit, budget)
    for c, f in fill: f()
```

```python
import sys
from emit import Prog, mix

NAME = "interleave_layers__ssm_conv_h3__linear_kernel_hedgehog__prompt_kernel"
O_EPOCH = 0
O_FU, O_FW, O_FX0, O_FY, O_FX2 = 0x1000, 0x1400, 0x2000, 0x3000, 0x4000
O_FO = [0x5000, 0x6000]; O_FP = [0x8000, 0xA000]; O_FK = [0xC000, 0xE000]
O_PROF = 0x10000
O_CS = 0x20000
O_ST = [0x50000, 0x70000]
O_P2 = [0x90000, 0x110000]
O_P1 = [0x200000, 0x5C0000]
O_U, O_Y = 0xA00000, 0xC40000
O_X = [0xE80000, 0x10C0000]
O_WP = 0x1300000
O_O = [0x1540000, 0x1780000]
WS_USED = 0x19C0000
TEN = 2048 * 576 * 2
L_S = 0; SUB = 36864
L_W = 73728
L_M = 156672
L_K, L_V, L_Q = 0, 10240, 20480
CONV_STRIDE = 21248; CP = 4160; L_CU = 16640
LM_ST = L_M
LM_CS = L_M + 2048
LM_SS = L_M + 3072
LDS_BYTES = 163840
WS = "s[4:7]"
SA, SB, SC, SD, SE = "s[36:39]", "s[40:43]", "s[44:47]", "s[48:51]", "s[52:55]"
sX, sJ, sRB, sHG, sI4, sW, sN, sHI = "s56", "s57", "s58", "s59", "s60", "s61", "s62", "s63"
sT0, sT1, sT2, sT3, sT4, sT5 = "s66", "s67", "s68", "s69", "s70", "s71"
sCH, sLC, sHEAD, sPC = "s72", "s73", "s74", "s75"
M8 = "s[76:77]"
M48 = "s[78:79]"
MU1 = "s[80:81]"
sONE, sONEH, sONE2 = "s82", "s83", "s84"
PTR = dict(q=8, k=10, v=12, shift=14, ssm=16, D=18, wqkv=22, wphi=24, wo=26, out=28, dbg=30)
LOG2E = 0x3fb8aa3b; INV576 = 0x3ae38e39; EPS = 0x3727c5ac; EPS6 = 0x358637bd
SPIN = 200000

def vr(a, n): return f"v[{a}:{a+n-1}]" if n > 1 else f"v{a}"
def wreg(f):
    return f"a[{4*f}:{4*f+3}]" if f < 64 else vr(224 + 4 * (f - 64), 4)

class K:
    def __init__(self, prof=False, stop=None, opt=None):
        self.p = Prog(); self.prof = prof; self.stop = stop; self.nstamp = 0
        self.opt = opt or {}
    def srd(self, dst, name, nbytes):
        b = int(dst[2:].split(":")[0]); s = PTR[name]
        self.p(f"s_mov_b32 s{b}, s{s}\ns_mov_b32 s{b+1}, s{s+1}\ns_mov_b32 s{b+2}, {nbytes}\ns_mov_b32 s{b+3}, 0x20000")
    def stamp(self):
        if not self.prof: return
        p = self.p; i = self.nstamp; self.nstamp += 1
        L = p.lab("st")
        p(f"s_cmp_lg_u32 {sW}, {self.opt.get('profwave', 0)}\ns_cbranch_scc1 {L}")
        p("s_memrealtime s[86:87]\ns_waitcnt lgkmcnt(0)")
        p(f"s_lshl_b32 s88, s2, 7\ns_add_u32 s88, s88, {O_PROF + 4*i}\ns_mov_b64 exec, 1\nv_writelane_b32 v0, s86, 0\nbuffer_store_dword v0, off, {WS}, s88\ns_nop 1\ns_lshl_b32 s86, {sW}, 6\nv_writelane_b32 v0, s86, 0\ns_mov_b64 exec, -1")
        p(f"{L}:")
    def onwave(self, w):
        L = self.p.lab("w"); self.p(f"s_cmp_lg_u32 {sW}, {w}\ns_cbranch_scc1 {L}"); return L
    def barrier(self): self.p("s_barrier")
    def setflag(self, soff, tmp):
        p = self.p
        p(f"s_mov_b64 exec, 1\nv_mov_b32 v{tmp}, {sN}\nbuffer_store_dword v{tmp}, off, {WS}, {soff} sc1\ns_mov_b64 exec, -1")
    def poll(self, vaddr, soff, tmp, wide=False):
        p = self.p; L = p.lab("poll"); E = p.lab("polle")
        p.waitall(lg=False)
        p(f"s_mov_b32 {sPC}, 0\n{L}:")
        if wide: p(f"buffer_load_dwordx4 {vr(tmp,4)}, v{vaddr}, {WS}, {soff} offen sc1")
        else: p(f"buffer_load_dword v{tmp}, v{vaddr}, {WS}, {soff} offen sc1")
        p(f"s_add_u32 {sPC}, {sPC}, 1\ns_waitcnt vmcnt(0)")
        if wide:
            p(f"v_xor_b32 v{tmp}, {sN}, v{tmp}\nv_xor_b32 v{tmp+1}, {sN}, v{tmp+1}\nv_xor_b32 v{tmp+2}, {sN}, v{tmp+2}\nv_xor_b32 v{tmp+3}, {sN}, v{tmp+3}")
            p(f"v_or3_b32 v{tmp}, v{tmp}, v{tmp+1}, v{tmp+2}\nv_or_b32 v{tmp}, v{tmp}, v{tmp+3}\nv_cmp_ne_u32 vcc, 0, v{tmp}")
        else: p(f"v_cmp_ne_u32 vcc, {sN}, v{tmp}")
        p(f"s_cmp_gt_u32 {sPC}, {SPIN}\ns_cbranch_scc1 {E}\ns_cbranch_vccnz {L}\n{E}:")
    def onehot(self, dst, idx, val_lo, val_hi, t):
        p = self.p
        p(f"v_and_b32 v{t}, 1, v{idx}\nv_cmp_eq_u32 vcc, 1, v{t}\nv_mov_b32 v{t}, {val_lo}\nv_mov_b32 v{t+1}, {val_hi}\nv_cndmask_b32 v{t}, v{t}, v{t+1}, vcc\nv_ashrrev_i32 v{t+1}, 1, v{idx}")
        for jj in range(4):
            p(f"v_cmp_eq_u32 vcc, {jj}, v{t+1}\nv_cndmask_b32 v{dst+jj}, 0, v{t}, vcc")
    def rowstats(self, X, mask_t4, T, soff, vaddr):
        p = self.p; S, Q, R, U = T, T + 4, T + 8, T + 12
        for r in range(4): p(f"v_cndmask_b32 v{X+16+r}, 0, v{X+16+r}, {mask_t4}")
        for h in (0, 2):
            p(f"v_pk_add_f32 {vr(S+h,2)}, {vr(X+h,2)}, {vr(X+4+h,2)}")
            p(f"v_pk_mul_f32 {vr(Q+h,2)}, {vr(X+h,2)}, {vr(X+h,2)}")
        for t in range(1, 5):
            for h in (0, 2):
                if t >= 2: p(f"v_pk_add_f32 {vr(S+h,2)}, {vr(S+h,2)}, {vr(X+4*t+h,2)}")
                p(f"v_pk_fma_f32 {vr(Q+h,2)}, {vr(X+4*t+h,2)}, {vr(X+4*t+h,2)}, {vr(Q+h,2)}")
        for a in range(4): p(f"v_add_f32_dpp v{R+a}, v{S+a}, v{S+a} row_ror:8 row_mask:0xf bank_mask:0x3")
        for a in range(4): p(f"v_add_f32_dpp v{R+a}, v{Q+a}, v{Q+a} row_ror:8 row_mask:0xf bank_mask:0xc")
        for u in range(2): p(f"v_add_f32_dpp v{U+u}, v{R+2*u}, v{R+2*u} row_half_mirror row_mask:0xf bank_mask:0x5")
        for u in range(2): p(f"v_add_f32_dpp v{U+u}, v{R+2*u+1}, v{R+2*u+1} row_half_mirror row_mask:0xf bank_mask:0xa")
        for qp in ("[1,0,3,2]", "[2,3,0,1]"):
            for u in range(2): p(f"v_add_f32_dpp v{U+u}, v{U+u}, v{U+u} quad_perm:{qp} row_mask:0xf bank_mask:0xf")
        p("s_mov_b32 exec_lo, 0x11111111\ns_mov_b32 exec_hi, 0x11111111")
        p(f"buffer_store_dword v{U}, v{vaddr}, {WS}, {soff} offen sc1")
        h = p(f"buffer_store_dword v{U+1}, v{vaddr}, {WS}, {soff} offen offset:16 sc1")
        p("s_mov_b64 exec, -1")
        return h
    def stat_addr(self, d, t):
        self.p(f"""v_lshrrev_b32 v{d}, 4, v1
        v_lshlrev_b32 v{d}, 5, v{d}
        v_bfe_u32 v{t}, v1, 2, 1
        v_lshl_add_u32 v{d}, v{t}, 3, v{d}
        v_bfe_u32 v{t}, v1, 3, 1
        v_lshl_add_u32 v{d}, v{t}, 2, v{d}
        s_lshl_b32 {sT0}, {sW}, 7
        v_add_u32 v{d}, {sT0}, v{d}""")
    def xT_addr(self, d, t):
        self.p(f"""v_and_b32 v{d}, 15, v1
        v_lshlrev_b32 v{d}, 5, v{d}
        v_lshrrev_b32 v{t}, 4, v1
        v_lshl_add_u32 v{d}, v{t}, 3, v{d}""")
    def xT_soff(self, s, L):
        self.p(f"""s_lshl_b32 {s}, {sRB}, 2
        s_add_u32 {s}, {s}, {sW}
        s_mul_i32 {s}, {s}, 18432
        s_mul_i32 {sT5}, {sHG}, 2304
        s_add_u32 {s}, {s}, {sT5}
        s_add_u32 {s}, {s}, {O_X[L]}""")
    def st_soff(self, s, L):
        self.p(f"s_lshl_b32 {s}, {sRB}, 3\ns_add_u32 {s}, {s}, {sHG}\ns_lshl_b32 {s}, {s}, 9\ns_add_u32 {s}, {s}, {O_ST[L]}")
    def rowflag_soff(self, s, base, own):
        self.p(f"s_lshl_b32 {s}, {sRB}, 7\ns_add_u32 {s}, {s}, {base}")
        if own: self.p(f"s_lshl_b32 {sT5}, {sHG}, 2\ns_add_u32 {s}, {s}, {sT5}")

    def prologue(self):
        p = self.p
        p(f"""s_cmp_ge_u32 s2, 256
        s_cbranch_scc1 L_end
        s_load_dwordx16 s[8:23], s[0:1], 0
        s_load_dwordx8 s[24:31], s[0:1], 64
        s_load_dwordx2 s[32:33], s[0:1], 96
        v_and_b32 v1, 63, v0
        v_lshrrev_b32 v2, 6, v0
        s_and_b32 {sX}, s2, 7
        v_readfirstlane_b32 {sW}, v2
        s_lshr_b32 {sJ}, s2, 3
        s_and_b32 {sHG}, {sJ}, 7
        s_lshr_b32 {sI4}, {sJ}, 3
        s_lshl_b32 {sRB}, {sX}, 2
        s_add_u32 {sRB}, {sRB}, {sI4}
        s_mov_b32 {sHI}, 0xffff0000
        s_mov_b32 s76, 0x00ff00ff
        s_mov_b32 s77, 0x00ff00ff
        s_mov_b32 s78, 0x00ffffff
        s_mov_b32 s79, 0x00ffffff
        s_mov_b32 {sONE}, 0x3f80
        s_mov_b32 {sONEH}, 0x3f800000
        s_mov_b32 {sONE2}, 0x3f803f80""")
        for i in range(3):
            p(f"""v_add_u32 v5, {256*i}, v0
            v_mul_u32_u24 v6, 7282, v5
            v_lshrrev_b32 v6, 16, v6
            v_mul_u32_u24 v7, 9, v6
            v_sub_u32 v7, v5, v7
            v_mul_u32_u24 v6, 1152, v6
            v_lshl_add_u32 v{2+i}, v7, 4, v6""")
        p(f"""s_mul_i32 {sT0}, {sJ}, {64*1152}
        s_mul_i32 {sT1}, {sX}, 144
        s_add_u32 {sT0}, {sT0}, {sT1}
        s_sub_u32 {sT2}, {sT0}, {4*1152}
        s_mul_i32 {sT3}, {sRB}, {64*1152}
        s_mul_i32 {sT1}, {sHG}, 144
        s_add_u32 {sT3}, {sT3}, {sT1}
        v_add_u32 v6, {sT2}, v2
        v_add_u32 v7, {sT2}, v3
        v_add_u32 v8, {sT2}, v4
        s_lshl_b32 {sT4}, {sW}, 10
        s_waitcnt lgkmcnt(0)
        s_mov_b32 s4, s32
        s_mov_b32 s5, s33
        s_mov_b32 s6, {WS_USED}
        s_mov_b32 s7, 0x20000""")
        self.srd(SA, "k", TEN); self.srd(SB, "v", TEN); self.srd(SC, "q", TEN); self.srd(SD, "shift", 4608)

    def phase0(self):
        p = self.p
        self.stamp()
        for i in range(2):
            p(f"s_add_u32 m0, {sT4}, {L_K + 4096*i}\nbuffer_load_dwordx4 v{6+i}, {SA}, 0 offen lds")
            p(f"s_add_u32 m0, {sT4}, {L_V + 4096*i}\nbuffer_load_dwordx4 v{2+i}, {SB}, {sT0} offen lds")
        L1 = p.lab("t3")
        p(f"s_cmp_ge_u32 {sW}, 2\ns_cbranch_scc1 {L1}")
        p(f"s_add_u32 m0, {sT4}, {L_K + 8192}\nbuffer_load_dwordx4 v8, {SA}, 0 offen lds")
        p(f"s_cmp_ge_u32 {sW}, 1\ns_cbranch_scc1 {L1}")
        p(f"s_mov_b32 m0, {L_V + 8192}\nbuffer_load_dwordx4 v4, {SB}, {sT0} offen lds")
        p(f"s_mov_b32 m0, {L_Q + 8192}\nbuffer_load_dwordx4 v4, {SC}, {sT3} offen lds")
        p(f"{L1}:")
        for i in range(2):
            p(f"s_add_u32 m0, {sT4}, {L_Q + 4096*i}\nbuffer_load_dwordx4 v{2+i}, {SC}, {sT3} offen lds")
        p(f"""s_lshr_b32 {sT1}, {sW}, 1
        s_mul_i32 {sT1}, {sT1}, 48
        s_mul_i32 {sT2}, {sX}, 72
        s_add_u32 {sT1}, {sT1}, {sT2}
        v_and_b32 v5, 15, v1
        v_add_u32 v46, {sT1}, v5
        v_lshlrev_b32 v5, 3, v46""")
        for s in range(3): p(f"buffer_load_dwordx2 {vr(10+2*s,2)}, v5, {SD}, 0 offen offset:{128*s}")
        hcrit = p(f"buffer_load_dword v9, off, {WS}, 0 sc1")
        self.srd(SA, "ssm", TEN); self.srd(SB, "D", 1152)
        p(f"""s_lshl_b32 {sT1}, {sW}, 5
        s_add_u32 {sT1}, {sT1}, {sJ}
        s_mul_i32 {sCH}, {sX}, 72
        s_add_u32 {sCH}, {sCH}, {sT1}
        s_mul_i32 {sLC}, {sW}, {CONV_STRIDE}
        s_add_u32 {sLC}, {sLC}, {L_W}
        v_lshlrev_b32 v47, 4, v1
        s_cmp_ge_u32 {sT1}, 72
        s_cselect_b32 s85, 0, 1""")
        L2 = p.lab("noconv")
        p(f"s_cbranch_scc1 {L2}")
        p(f"s_lshl_b32 {sT1}, {sCH}, 12\ns_lshl_b32 {sT2}, {sCH}, 1")
        p(f"buffer_load_dwordx2 v[42:43], off, {SA}, {sT1}\nbuffer_load_ushort v44, off, {SA}, {sT1} offset:4094\nbuffer_load_ushort v45, off, {SB}, {sT2}")
        for r in range(4):
            p(f"s_add_u32 m0, {sLC}, {CP*r + 32}")
            for i in range(4): p(f"buffer_load_dwordx4 v47, {SA}, {sT1} offen offset:{1024*i} lds")
            p(f"s_add_u32 {sT1}, {sT1}, 2")
        p(f"{L2}:")
        self.srd(SC, "wqkv", 576 * 3456); self.srd(SD, "wphi", 32 * 648)
        p(f"""s_sub_u32 {sT1}, 3, {sW}
        s_lshl_b32 {sT1}, {sT1}, 5
        s_add_u32 {sT1}, {sT1}, {sRB}
        s_mul_i32 {sT2}, {sT1}, 3641
        s_lshr_b32 {sT2}, {sT2}, 16
        s_mul_i32 {sT3}, {sT2}, 18
        s_sub_u32 s89, {sT1}, {sT3}
        s_lshl_b32 s90, {sHG}, 2
        s_add_u32 s90, s90, {sT2}
        s_cmp_ge_u32 {sT1}, 72
        s_cselect_b32 s91, 0, 1""")
        L3 = p.lab("nofold")
        p(f"s_cbranch_scc1 {L3}")
        p(f"""s_mul_i32 {sT1}, s89, {32*3456}
        s_mul_i32 {sT2}, s90, 36
        s_add_u32 {sT1}, {sT1}, {sT2}
        v_and_b32 v5, 31, v1
        v_mul_u32_u24 v5, 3456, v5
        v_lshrrev_b32 v6, 5, v1
        v_lshl_add_u32 v7, v6, 4, v5
        buffer_load_dwordx4 v[16:19], v7, {SC}, {sT1} offen
        buffer_load_dwordx4 v[20:23], v7, {SC}, {sT1} offen offset:1152
        buffer_load_dwordx4 v[24:27], v7, {SC}, {sT1} offen offset:2304
        buffer_load_dword v28, v5, {SC}, {sT1} offen offset:32
        buffer_load_dword v29, v5, {SC}, {sT1} offen offset:1184
        buffer_load_dword v30, v5, {SC}, {sT1} offen offset:2336
        v_bfe_u32 v5, v1, 3, 2
        v_and_b32 v7, 3, v1
        v_lshl_add_u32 v190, v5, 2, v7
        v_bfe_u32 v191, v1, 2, 1
        v_mul_u32_u24 v5, 9, v191
        v_add_u32 v5, v5, v190
        v_lshlrev_b32 v5, 1, v5
        v_mov_b32 v7, 0x40000000
        v_cmp_lt_u32 vcc, 8, v190
        v_cndmask_b32 v5, v5, v7, vcc
        v_cmp_eq_u32 vcc, 1, v6
        v_cndmask_b32 v8, v5, v7, vcc
        v_mul_u32_u24 v6, 288, v6
        v_add_u32 v5, v5, v6
        s_mul_i32 {sT2}, s90, 648""")
        for e in range(8): p(f"buffer_load_ushort v{32+e}, v5, {SD}, {sT2} offen offset:{36*e}")
        for e in range(2): p(f"buffer_load_ushort v{40+e}, v8, {SD}, {sT2} offen offset:{576+36*e}")
        p(f"{L3}:")
        p(f"""v_lshrrev_b32 v5, 4, v1
        v_lshlrev_b32 v5, 3, v5
        s_and_b32 {sT1}, {sW}, 1
        s_lshl_b32 {sT1}, {sT1}, 5
        v_add_u32 v5, {sT1}, v5
        v_bfe_u32 v6, v1, 2, 2
        v_add_u32 v6, v5, v6
        v_mul_u32_u24 v6, 144, v6
        v_and_b32 v7, 3, v1
        v_lshl_add_u32 v6, v7, 3, v6
        s_lshr_b32 {sT2}, {sW}, 1
        s_mul_i32 {sT2}, {sT2}, 96
        v_add_u32 v78, {sT2}, v6
        s_lshl_b32 {sT1}, {sJ}, 6
        v_add_u32 v5, {sT1}, v5
        v_sub_u32 v5, 2040, v5
        v_lshlrev_b32 v5, 1, v5
        v_lshl_add_u32 v79, v46, 12, v5
        s_cmp_ge_u32 {sW}, 2
        s_cselect_b32 s80, s76, -1
        s_cselect_b32 s81, s77, -1
        v_lshrrev_b32 v5, 2, v1
        s_lshl_b32 {sT1}, {sW}, 4
        v_add_u32 v5, {sT1}, v5
        v_mul_u32_u24 v5, 144, v5
        v_lshl_add_u32 v2, v7, 3, v5""")
        self.xT_addr(3, 5); self.stat_addr(4, 5)
        p.wait(hcrit); p(f"v_add_u32 v9, 1, v9"); self.barrier()
        p(f"v_readfirstlane_b32 {sN}, v9")
        self.stamp()
        hs = []
        for s in range(3):
            b = 48 + 10 * s
            h = [p(f"ds_read_b64_tr_b16 {vr(b+2*i,2)}, v78 offset:{L_K + 32*s + 576*i}") for i in range(3)]
            h += [p(f"ds_read_b64_tr_b16 {vr(b+6+2*i,2)}, v78 offset:{L_V + 32*s + 576*i}") for i in range(2)]
            hs.append(h)
        hq = [p(f"ds_read_b64_tr_b16 {vr(126+2*t,2)}, v2 offset:{L_Q + 32*t}") for t in range(5)]
        lo = lambda d, s: p(f"v_lshlrev_b32 v{d}, 16, v{s}")
        hi = lambda d, s: p(f"v_and_b32 v{d}, {sHI}, v{s}")
        p(f"s_mov_b32 {sT0}, {O_U}")
        hu = None; L4 = p.lab("u2")
        for s in range(3):
            if s == 2: p(f"s_cmp_ge_u32 {sW}, 2\ns_cbranch_scc1 {L4}")
            b = 48 + 10 * s; P, W, A, V, O = 80, 94, 98, 106, 114 + 4 * s
            lo(W, 10+2*s); hi(W+1, 10+2*s); lo(W+2, 11+2*s); hi(W+3, 11+2*s)
            p.wait(*hs[s])
            hi(P+0, b); hi(P+1, b+2); lo(P+2, b+1); lo(P+3, b+3); hi(P+4, b+1); hi(P+5, b+3)
            lo(P+6, b+2); lo(P+7, b+4); hi(P+8, b+2); hi(P+9, b+4); lo(P+10, b+3); lo(P+11, b+5); hi(P+12, b+3); hi(P+13, b+5)
            Pp = lambda x: vr(P + 2 * (x + 3), 2)
            for q in range(4): p(f"v_pk_mul_f32 {vr(A+2*q,2)}, {Pp(q)}, {vr(W,2)} op_sel_hi:[1,0]")
            for q in range(4): p(f"v_pk_fma_f32 {vr(A+2*q,2)}, {Pp(q-1)}, {vr(W,2)}, {vr(A+2*q,2)} op_sel:[0,1,0]")
            lo(V+0, b+6); lo(V+1, b+8); hi(V+2, b+6); hi(V+3, b+8); lo(V+4, b+7); lo(V+5, b+9); hi(V+6, b+7); hi(V+7, b+9)
            for q in range(4): p(f"v_pk_fma_f32 {vr(A+2*q,2)}, {Pp(q-2)}, {vr(W+2,2)}, {vr(A+2*q,2)} op_sel_hi:[1,0,1]")
            for q in range(4): p(f"v_pk_fma_f32 {vr(A+2*q,2)}, {Pp(q-3)}, {vr(W+2,2)}, {vr(A+2*q,2)} op_sel:[0,1,0]")
            for q in range(4): p(f"v_pk_mul_f32 {vr(A+2*q,2)}, {vr(A+2*q,2)}, {vr(V+2*q,2)}")
            p(f"""v_cvt_pk_bf16_f32 v{O}, v{A+7}, v{A+5}
            v_cvt_pk_bf16_f32 v{O+1}, v{A+3}, v{A+1}
            v_cvt_pk_bf16_f32 v{O+2}, v{A+6}, v{A+4}
            v_cvt_pk_bf16_f32 v{O+3}, v{A+2}, v{A}""")
            if s == 1: p(f"s_mov_b64 exec, {MU1}")
            hu = p(f"buffer_store_dwordx4 {vr(O,4)}, v79, {WS}, {sT0} offen sc1")
            if s == 1: p("s_mov_b64 exec, -1")
            p(f"s_add_u32 {sT0}, {sT0}, {16*4096}")
        p(f"{L4}:")
        mark = p(f"buffer_load_dword v5, off, {WS}, 0")
        self.xT_soff(sT0, 0); self.st_soff(sT1, 0)
        p.wait(*hq)
        for t in range(5):
            if t == 4: p(f"s_mov_b64 exec, {M8}")
            p(f"buffer_store_dwordx2 {vr(126+2*t,2)}, v3, {WS}, {sT0} offen offset:{512*t} sc1")
        p("s_mov_b64 exec, -1")
        for t in range(5):
            for d in range(2): lo(136+4*t+2*d, 126+2*t+d); hi(137+4*t+2*d, 126+2*t+d)
        self.rowstats(136, M8, 156, sT1, 4)
        p.wait(mark); self.barrier()
        L5 = self.onwave(0)
        p(f"s_lshl_b32 {sT0}, {sX}, 7\ns_lshl_b32 {sT1}, {sJ}, 2\ns_add_u32 {sT0}, {sT0}, {sT1}\ns_add_u32 {sT0}, {sT0}, {O_FU}")
        self.setflag(sT0, 5); p(f"{L5}:")
        self.stamp()
        L6 = p.lab("nofold2")
        p(f"s_cmp_eq_u32 s91, 0\ns_cbranch_scc1 {L6}")
        p(f"""v_lshrrev_b32 v6, 5, v1
        v_lshlrev_b32 v6, 3, v6
        v_mul_u32_u24 v5, 9, v191
        v_add_u32 v5, v5, v190
        v_sub_u32 v5, v5, v6
        v_mov_b32 v7, -64
        v_add_u32 v8, -9, v5
        v_cmp_gt_u32 vcc, 9, v190
        v_cndmask_b32 v8, v8, v7, vcc""")
        self.onehot(174, 8, sONE, sONEH, 2)
        p(f"""v_add_u32 v8, -2, v5
        v_add_u32 v4, -9, v190
        v_cmp_lt_u32 vcc, 1, v4
        v_cndmask_b32 v8, v8, v7, vcc""")
        self.onehot(178, 8, sONE, sONEH, 2)
        p(f"""v_add_u32 v8, -16, v8
        v_cmp_gt_u32 vcc, 32, v1
        v_cndmask_b32 v8, v7, v8, vcc""")
        self.onehot(182, 8, sONE, sONEH, 2)
        p("v_mov_b32 v188, v182\nv_mov_b32 v182, 0\nv_mov_b32 v184, 0\nv_mov_b32 v185, 0\nv_mov_b32 v187, 0\nv_mov_b32 v189, 0\nv_mov_b32 v31, 0")
        p.waitall(lg=False)
        for jj in range(4): p(f"v_lshl_or_b32 v{170+jj}, v{33+2*jj}, 16, v{32+2*jj}")
        p("v_lshl_or_b32 v183, v41, 16, v40\nv_mov_b32 v186, v183")
        mf = "v_mfma_f32_32x32x16_bf16"
        p(f"""{mf} v[192:207], v[20:23], v[170:173], 0
        {mf} v[208:223], v[16:19], v[170:173], 0
        {mf} v[192:207], v[24:27], v[174:177], v[192:207]
        {mf} v[208:223], v[24:27], v[178:181], v[208:223]
        {mf} v[192:207], v[28:31], v[182:185], v[192:207]
        {mf} v[208:223], v[28:31], v[186:189], v[208:223]""")
        p(f"""s_mul_i32 {sT0}, s90, 36
        s_lshl_b32 {sT1}, s89, 1
        s_add_u32 {sT0}, {sT0}, {sT1}
        s_lshl_b32 {sT0}, {sT0}, 11
        s_add_u32 {sT0}, {sT0}, {O_WP}
        s_mul_i32 {sT1}, s90, 18
        s_add_u32 {sT1}, {sT1}, s89
        s_lshl_b32 {sT1}, {sT1}, 8
        s_add_u32 {sT1}, {sT1}, {O_CS}
        v_cmp_eq_u32 vcc, 11, v190
        v_mov_b32 v5, {sONE2}
        v_mov_b32 v64, 0
        v_mov_b32 v65, 0
        v_lshlrev_b32 v6, 2, v1""")
        for d in range(8): p(f"v_cvt_pk_bf16_f32 v{48+d}, v{192+2*d}, v{193+2*d}")
        for d in range(8): p(f"v_cvt_pk_bf16_f32 v{56+d}, v{208+2*d}, v{209+2*d}\nv_cndmask_b32 v{56+d}, v{56+d}, v5, vcc")
        p(f"""buffer_store_dwordx4 v[48:51], v47, {WS}, {sT0} offen sc1
        buffer_store_dwordx4 v[56:59], v47, {WS}, {sT0} offen offset:1024 sc1
        buffer_store_dwordx4 v[52:55], v47, {WS}, {sT0} offen offset:2048 sc1
        buffer_store_dwordx4 v[60:63], v47, {WS}, {sT0} offen offset:3072 sc1""")
        for d in range(8): p(f"v_dot2c_f32_bf16 v64, {sONE2}, v{48+d}\nv_dot2c_f32_bf16 v65, {sONE2}, v{56+d}")
        p(f"v_permlane32_swap_b32 v64, v65\nv_add_f32 v64, v64, v65\nbuffer_store_dword v64, v6, {WS}, {sT1} offen sc1")
        p(f"{L6}:")
        L7 = p.lab("noconv2")
        p(f"s_cmp_eq_u32 s85, 0\ns_cbranch_scc1 {L7}")
        p(f"""v_mov_b32 v8, 0
        v_mov_b32 v9, 0
        v_mov_b32 v10, 0
        v_mov_b32 v11, 0
        v_lshlrev_b32 v5, 3, v1
        v_add_u32 v5, {sLC}, v5
        ds_write_b64 v5, v[8:9] offset:{L_CU + 4096}""")
        p.waitall(lg=False)
        p(f"""v_lshlrev_b32 v6, 4, v1
        v_sub_u32 v6, 48, v6
        v_lshlrev_b64 v[12:13], v6, v[42:43]
        v_lshlrev_b64 v[12:13], 16, v[12:13]
        v_mul_u32_u24 v5, {CP}, v1
        v_add_u32 v5, {sLC}, v5
        v_lshlrev_b32 v6, 1, v1
        v_sub_u32 v6, v5, v6
        s_mov_b64 exec, 15
        ds_write_b128 v5, v[8:11]
        ds_write_b128 v5, v[10:13] offset:16
        s_mov_b64 exec, 10
        ds_write_b16 v6, v44 offset:4126
        s_mov_b64 exec, -1
        v_and_b32 v5, 15, v1
        v_lshrrev_b32 v6, 4, v1
        v_lshlrev_b32 v7, 3, v6
        v_add_u32 v7, v7, v5
        v_sub_u32 v8, 15, v7
        v_lshlrev_b32 v9, 16, v45""")
        self.onehot(176, 8, "v45", "v9", 2)
        p(f"""v_add_u32 v7, 1, v5
        v_and_b32 v8, 3, v7
        v_mul_u32_u24 v8, {CP}, v8
        v_lshrrev_b32 v7, 2, v7
        v_lshl_add_u32 v8, v7, 3, v8
        v_lshl_add_u32 v8, v6, 4, v8
        v_add_u32 v180, {sLC}, v8
        v_lshlrev_b32 v7, 5, v5
        v_lshlrev_b32 v8, 4, v6
        v_sub_u32 v8, v8, v7
        s_add_u32 {sT0}, {sLC}, {L_CU + 4064 - 3584}
        v_add_u32 v181, {sT0}, v8
        v_and_b32 v7, 1, v6
        v_lshlrev_b32 v7, 2, v7
        v_lshrrev_b32 v8, 2, v5
        v_add_u32 v7, v7, v8
        v_mul_u32_u24 v7, 73728, v7
        v_and_b32 v8, 3, v5
        v_lshl_add_u32 v7, v8, 5, v7
        v_lshrrev_b32 v8, 1, v6
        v_lshl_add_u32 v182, v8, 4, v7""")
        p(f"{L7}:")
        L8 = self.onwave(0)
        p(f"v_and_b32 v5, 31, v1\nv_lshlrev_b32 v5, 2, v5\ns_lshl_b32 {sT0}, {sX}, 7\ns_add_u32 {sT0}, {sT0}, {O_FU}")
        self.poll(5, sT0, 6); p(f"{L8}:")
        p.waitall(); self.barrier()
        self.stamp()

    def wp_loads(self):
        p = self.p; out = []
        for f in range(72):
            def g(f=f):
                if f % 4 == 0: p(f"s_add_u32 s92, s93, {f*1024}")
                self.hW[f] = p(f"buffer_load_dwordx4 {wreg(f)}, v{14 if f % 2 == 0 else 15}, {WS}, s92 offen offset:{(f%4)*1024} sc1")
            out.append(g)
        return out
    def pre_dma(self, L):
        p = self.p; out = []
        for T in range(2):
            for i in range(9):
                def g(T=T, i=i):
                    if L == 0: off = O_X[0] + T * SUB + 2048 * i; va = 12
                    else: off = O_Y + T * 64 + 8192 * i; va = 13
                    p(f"s_add_u32 m0, s95, {L_S + T*SUB + 4096*i}\ns_add_u32 s92, s94, {off}")
                    self.hP[T][i] = p(f"buffer_load_dwordx4 v{va}, {WS}, s92 offen sc1 lds")
                out.append(g)
        return out
    def bg_setup(self):
        p = self.p
        p(f"""s_lshl_b32 {sHEAD}, {sHG}, 2
        s_add_u32 {sHEAD}, {sHEAD}, {sW}
        s_mul_i32 s93, {sHEAD}, 73728
        s_add_u32 s93, s93, {O_WP}
        s_mul_i32 s94, {sRB}, 73728
        s_lshl_b32 s95, {sW}, 10
        v_lshlrev_b32 v14, 4, v1
        v_mov_b32 v5, 0x40000000
        v_cndmask_b32 v15, v5, v14, {M48}
        v_lshrrev_b32 v5, 2, v0
        v_bfe_u32 v6, v1, 1, 1
        v_mul_u32_u24 v6, 18432, v6
        v_lshl_add_u32 v6, v5, 5, v6
        v_and_b32 v7, 1, v1
        v_lshl_add_u32 v12, v7, 4, v6
        v_and_b32 v7, 3, v1
        v_lshlrev_b32 v7, 4, v7
        v_lshl_add_u32 v13, v5, 7, v7""")

    def conv(self):
        p = self.p; o = self.opt
        self.hW = [None] * 72; self.hP = [[None] * 9, [None] * 9]
        self.bg_setup()
        n1 = o.get("w_in_conv", 30)
        LE, LJ = p.lab("noconv3"), p.lab("convend")
        p(f"s_cmp_eq_u32 s85, 0\ns_cbranch_scc1 {LE}")
        p(f"s_lshl_b32 {sT1}, {sCH}, 12\ns_add_u32 {sT1}, {sT1}, {O_U}\ns_add_u32 m0, {sLC}, {L_CU}")
        hu = [p(f"buffer_load_dwordx4 v14, {WS}, {sT1} offen offset:{1024*i} sc1 lds") for i in range(4)]
        ACC, AB, BB = 16, 48, 112
        hA = {}; hB = {}
        def rdA(m, t):
            b = AB + 32 * (m & 1) + 4 * t
            p(f"ds_read_b64 {vr(b,2)}, v180 offset:{512*t + 64*m}")
            hA[m, t] = p(f"ds_read_b64 {vr(b+2,2)}, v180 offset:{512*t + 64*m + 8}")
        def rdB(m, be):
            hB[m, be] = p(f"ds_read_b128 {vr(BB + 32*(m&1) + 4*be, 4)}, v181 offset:{512*(7-be) + 64*m}")
        for t in range(8): rdA(0, t)
        p.wait(*hu)
        self.stamp()
        for be in range(8): rdB(0, be)
        mf = "v_mfma_f32_16x16x32_bf16"
        dma = self.pre_dma(0); wl = self.wp_loads()
        bg = dma + wl[:n1]
        for m in range(8):
            main = []
            if m == 0:
                for b in range(8):
                    def g(b=b):
                        p.wait(hB[0, b]); p(f"{mf} {vr(ACC+4*b,4)}, v[176:179], {vr(BB+4*b,4)}, 0")
                    main.append(g)
            order = sorted([(t, be) for t in range(8) for be in range(8 - t)], key=lambda x: (max(x), x[0] + x[1]))
            for (t, be) in order:
                def g(t=t, be=be):
                    p.wait(hA[m, t], hB[m, be])
                    d = vr(ACC + 4 * (t + be), 4)
                    p(f"{mf} {d}, {vr(AB+32*(m&1)+4*t,4)}, {vr(BB+32*(m&1)+4*be,4)}, {d}")
                main.append(g)
            fill = []
            if m < 7:
                for t in range(8):
                    fill.append((8, lambda t=t: rdB(m + 1, t))); fill.append((8, lambda t=t: rdA(m + 1, t)))
            if m >= 2:
                k = -(-len(bg) // (8 - m)) if m < 7 else len(bg)
                k = min(k, len(bg))
                extra, bg = bg[:k], bg[k:]
                fill += [(8, g) for g in extra]
            mix(p, main, fill, 8)
            if m == 1: self.barrier()
        p(f"s_lshl_b32 {sT1}, {sCH}, 7\ns_add_u32 {sT1}, {sT1}, {O_Y}")
        for bp in range(4):
            O = 48 + 4 * bp; a = ACC + 8 * bp
            for d in range(4): p(f"v_cvt_pk_bf16_f32 v{O+d}, v{a+2*d}, v{a+2*d+1}")
        hy = None
        for bp in range(4):
            O = 48 + 4 * bp
            p(f"v_permlane16_swap_b32 v{O}, v{O+2}\nv_permlane16_swap_b32 v{O+1}, v{O+3}")
            hy = p(f"buffer_store_dwordx4 {vr(O,4)}, v182, {WS}, {sT1} offen sc1")
            p(f"s_add_u32 {sT1}, {sT1}, {8*73728}")
        self.stamp()
        p.waitall()
        self.barrier()
        Lf = self.onwave(0)
        self.rowflag_soff(sT0, O_FY, True); self.setflag(sT0, 5); p(f"{Lf}:")
        for g in wl[n1:]: g()
        p(f"s_branch {LJ}")
        p(f"{LE}:")
        L = self.onwave(3)
        p(f"s_lshl_b32 {sT0}, {sHG}, 7\ns_add_u32 {sT0}, {sT0}, {O_FW}\ns_lshl_b32 {sT1}, {sRB}, 2\ns_add_u32 {sT1}, {sT1}, {sT0}")
        self.setflag(sT1, 5)
        self.rowflag_soff(sT1, O_FX0, True); self.setflag(sT1, 5)
        self.rowflag_soff(sT1, O_FX0, False)
        p(f"""v_and_b32 v5, 31, v1
        v_lshl_add_u32 v5, v5, 2, {sT0}
        v_and_b32 v6, 7, v1
        v_lshl_add_u32 v6, v6, 2, {sT1}
        v_cmp_gt_u32 vcc, 32, v1
        v_cndmask_b32 v5, v6, v5, vcc""")
        self.poll(5, 0, 6); p(f"{L}:")
        self.barrier()
        for g in self.pre_dma(0) + self.wp_loads(): g()
        self.barrier()
        p(f"{LJ}:")
        p(f"s_mul_i32 {sT0}, {sHEAD}, 4608\ns_add_u32 {sT0}, {sT0}, {O_CS}\ns_add_u32 {sT1}, {sT0}, 4096\nv_lshlrev_b32 v5, 2, v1")
        self.hcs = []
        for kb in range(18):
            self.hcs.append(p(f"buffer_load_dword v{16+kb}, v5, {WS}, {sT0 if kb < 16 else sT1} offen offset:{(kb%16)*256} sc1"))

    def cs_finish(self):
        p = self.p
        p(f"""v_bfe_u32 v6, v1, 2, 1
        v_lshlrev_b32 v6, 5, v6
        v_lshrrev_b32 v7, 5, v1
        v_lshl_add_u32 v6, v7, 4, v6
        v_bfe_u32 v7, v1, 3, 2
        v_lshl_add_u32 v6, v7, 2, v6
        v_and_b32 v7, 3, v1
        v_add_u32 v6, v6, v7
        s_lshl_b32 {sT0}, {sW}, 8
        s_add_u32 {sT0}, {sT0}, {LM_CS}
        v_lshl_add_u32 v6, v6, 2, {sT0}""")
        p.wait(*self.hcs)
        for i in range(1, 9): p(f"v_pk_add_f32 v[16:17], v[16:17], {vr(16+2*i,2)}")
        p("v_add_f32 v16, v16, v17\nds_write_b32 v6, v16")

    def wo_dma(self):
        p = self.p; out = []
        def rowaddr(d, lam, t):
            p(f"""v_bfe_u32 v{t}, v{lam}, 2, 1
            v_bfe_u32 v{t+1}, v{lam}, 3, 1
            v_and_b32 v{d}, 3, v{lam}
            v_lshl_add_u32 v{d}, v{t+1}, 2, v{d}
            v_lshrrev_b32 v{t+1}, 4, v{lam}
            v_lshl_add_u32 v{t}, v{t+1}, 1, v{t}
            v_mul_u32_u24 v{t+1}, 57, v{t}
            v_lshrrev_b32 v{t+1}, 9, v{t+1}
            v_mul_u32_u24 v{t+2}, 9, v{t+1}
            v_sub_u32 v{t}, v{t}, v{t+2}
            v_cmp_eq_u32 vcc, 8, v{t}
            v_mad_u32_u24 v{t}, v{t}, 9, v{d}
            v_mad_u32_u24 v{d}, v{d}, 9, 8
            v_cndmask_b32 v{d}, v{t}, v{d}, vcc
            v_lshl_add_u32 v{d}, v{t+2}, 3, v{d}
            v_mul_u32_u24 v{d}, 1152, v{d}""")
        def setup():
            self.srd(SE, "wo", 576 * 1152)
            p(f"s_mul_i32 s96, {sHG}, 144\ns_lshl_b32 s97, {sW}, 5\ns_lshl_b32 s98, {sW}, 6")
        out.append(setup)
        for i in range(5):
            def g(i=i):
                L = None
                if i == 4: L = p.lab("wo"); p(f"s_cmp_ge_u32 {sW}, 2\ns_cbranch_scc1 {L}")
                p(f"v_lshrrev_b32 v219, 1, v1\nv_add_u32 v219, s97, v219\nv_add_u32 v219, {128*i}, v219")
                rowaddr(220, 219, 221)
                p(f"v_and_b32 v221, 1, v1\nv_lshl_add_u32 v220, v221, 4, v220")
                for t in range(4):
                    p(f"s_add_u32 m0, s95, {L_W + 18432*t + 4096*i}\ns_add_u32 s92, s96, {32*t}\nbuffer_load_dwordx4 v220, {SE}, s92 offen lds")
                if L: p(f"{L}:")
            out.append(g)
        for i in range(3):
            def g(i=i):
                L = None
                if i == 2: L = p.lab("wo"); p(f"s_cmp_ge_u32 {sW}, 1\ns_cbranch_scc1 {L}")
                p(f"v_add_u32 v219, s98, v1\nv_add_u32 v219, {256*i}, v219")
                rowaddr(220, 219, 221)
                p(f"s_add_u32 m0, s95, {L_W + 73728 + 4096*i}\ns_add_u32 s92, s96, 128\nbuffer_load_dwordx4 v220, {SE}, s92 offen lds")
                if L: p(f"{L}:")
            out.append(g)
        return out

    def softmax(self, t, rl, E, tmp, out):
        p = self.p; F = []
        a = lambda c, s: F.append((c, lambda: p(s)))
        mx, mn, c1, c2 = tmp, tmp + 1, tmp + 2, tmp + 3
        a(5, f"v_max3_f32 v{mx}, v{t}, v{t+1}, v{t+2}"); a(5, f"v_max3_f32 v{mn}, -v{t}, -v{t+1}, -v{t+2}")
        for i in (3, 5, 7):
            a(5, f"v_max3_f32 v{mx}, v{mx}, v{t+i}, v{t+i+1}"); a(5, f"v_max3_f32 v{mn}, v{mn}, -v{t+i}, -v{t+i+1}")
        a(16, f"v_permlane32_swap_b32 v{mx}, v{mn}")
        a(4, f"v_max_f32 v{mx}, v{mx}, v{mn}")
        a(5, f"v_mul_f32 v{c1}, -v{mx}, v{rl}"); a(5, f"v_mul_f32 v{c2}, -v{mx}, v{rl}")
        a(16, f"v_permlane32_swap_b32 v{c1}, v{c2}")
        P, N = E, E + 10
        assert rl % 2 == 0 and c1 % 2 == 0
        for i in range(0, 8, 2):
            a(5, f"v_pk_fma_f32 {vr(P+i,2)}, {vr(t+i,2)}, {vr(rl,2)}, {vr(c1,2)} op_sel_hi:[1,0,0]")
            a(5, f"v_pk_fma_f32 {vr(N+i,2)}, {vr(t+i,2)}, {vr(rl,2)}, {vr(c1,2)} op_sel:[0,0,1] op_sel_hi:[1,0,1] neg_lo:[1,0,0] neg_hi:[1,0,0]")
        a(5, f"v_fma_f32 v{P+8}, v{t+8}, v{rl}, v{c1}"); a(5, f"v_fma_f32 v{N+8}, -v{t+8}, v{rl}, v{c2}")
        for i in range(9):
            a(8, f"v_exp_f32 v{P+i}, v{P+i}"); a(8, f"v_exp_f32 v{N+i}, v{N+i}")
        s1, s2 = tmp, tmp + 2
        a(5, f"v_pk_add_f32 {vr(s1,2)}, {vr(P,2)}, {vr(P+2,2)}"); a(5, f"v_pk_add_f32 {vr(s2,2)}, {vr(N,2)}, {vr(N+2,2)}")
        for i in (4, 6):
            a(5, f"v_pk_add_f32 {vr(s1,2)}, {vr(s1,2)}, {vr(P+i,2)}"); a(5, f"v_pk_add_f32 {vr(s2,2)}, {vr(s2,2)}, {vr(N+i,2)}")
        a(4, f"v_add_f32 v{s1}, v{s1}, v{s1+1}"); a(4, f"v_add_f32 v{s2}, v{s2}, v{s2+1}")
        a(4, f"v_add_f32 v{s1}, v{s1}, v{P+8}"); a(4, f"v_add_f32 v{s2}, v{s2}, v{N+8}")
        a(16, f"v_permlane32_swap_b32 v{s1}, v{s2}")
        a(4, f"v_add_f32 v{s1}, v{s1}, v{s2}")
        a(8, f"v_rcp_f32 v{s1}, v{s1}"); a(8, f"v_mov_b32 v{s1+1}, v{s1}")
        a(16, f"v_permlane32_swap_b32 v{s1}, v{s1+1}")
        for i in range(0, 8, 2):
            a(5, f"v_pk_mul_f32 {vr(P+i,2)}, {vr(P+i,2)}, {vr(s1,2)} op_sel_hi:[1,0]")
            a(5, f"v_pk_mul_f32 {vr(N+i,2)}, {vr(N+i,2)}, {vr(s1,2)} op_sel:[0,1]")
        a(4, f"v_mul_f32 v{P+8}, v{P+8}, v{s1}"); a(4, f"v_mul_f32 v{N+8}, v{N+8}, v{s1+1}")
        for i in range(4): a(5, f"v_cvt_pk_bf16_f32 v{out[i]}, v{P+2*i}, v{P+2*i+1}")
        for i in range(4): a(5, f"v_cvt_pk_bf16_f32 v{out[4+i]}, v{N+2*i}, v{N+2*i+1}")
        a(5, f"v_cvt_pk_bf16_f32 v{out[8]}, v{P+8}, v{N+8}")
        return F

    def layer(self, L):
        p = self.p; o = self.opt
        ACC = [[16, 32], [48, 64]]; CR, ST, FB, PC, TT, OUT, SST = 80, 152, 168, 184, 192, 204, 208
        vB = [214, 215]; vL, vSS, vSX = 216, 217, 218
        RL = [220, 222]
        CS = 80; PK = [116, 132]
        p(f"""v_lshrrev_b32 v5, 5, v1
        v_bfe_u32 v6, v1, 2, 2
        v_lshl_add_u32 v5, v5, 2, v6
        v_bfe_u32 v6, v1, 4, 1
        v_lshlrev_b32 v6, 5, v6
        v_lshl_add_u32 v5, v5, 6, v6
        v_and_b32 v6, 3, v1
        v_lshl_add_u32 v{vB[0]}, v6, 3, v5
        v_add_u32 v{vB[1]}, {SUB}, v{vB[0]}
        v_add_u32 v{vSS}, s95, v{vB[0]}
        v_lshlrev_b32 v{vL}, 4, v0
        v_lshlrev_b32 v2, 3, v1
        s_lshl_b32 {sT0}, {sW}, 9
        s_add_u32 {sT0}, {sT0}, {LM_ST}
        v_lshl_add_u32 v3, v1, 2, {sT0}
        v_lshl_add_u32 v4, v6, 5, {sT0}
        v_and_b32 v5, 31, v1
        v_lshlrev_b32 v5, 5, v5
        v_lshrrev_b32 v6, 5, v1
        s_lshl_b32 {sT0}, {sW}, 3
        v_lshl_add_u32 v6, v6, 2, {sT0}
        v_add_u32 v{vSX}, {LM_SS}, v5
        v_add_u32 v219, v{vSX}, v6""")
        def stats_load():
            p(f"s_lshl_b32 {sT1}, {sRB}, 12\ns_add_u32 {sT1}, {sT1}, {O_ST[L]}")
            return [p(f"buffer_load_dwordx2 {vr(ST+2*i,2)}, v2, {WS}, {sT1} offen offset:{512*i} sc1") for i in range(8)]
        def stats_finish(h):
            p.wait(*h)
            for i in range(1, 8): p(f"v_pk_add_f32 {vr(ST,2)}, {vr(ST,2)}, {vr(ST+2*i,2)}")
            p(f"""v_mul_f32 v{ST}, {INV576}, v{ST}
            v_mul_f32 v{ST+2}, v{ST}, v{ST}
            v_mov_b32 v{ST+3}, {INV576}
            v_fma_f32 v{ST+1}, v{ST+1}, v{ST+3}, -v{ST+2}
            v_max_f32 v{ST+1}, 0, v{ST+1}
            v_add_f32 v{ST+1}, {EPS}, v{ST+1}
            v_rsq_f32 v{ST+1}, v{ST+1}
            s_nop 0
            v_mul_f32 v{ST}, -v{ST}, v{ST+1}
            ds_write_b32 v3, v{ST+1}""")
            h = p(f"ds_write_b32 v3, v{ST} offset:256"); p.wait(h)
        def stats_read(T):
            hs = [p(f"ds_read_b128 {vr(ST+4*i,4)}, v4 offset:{128*T + 16*(i&1) + 256*(i>>1)}") for i in range(4)]
            self.hST = hs[-1]
        if L == 0:
            hst = stats_load(); self.cs_finish(); stats_finish(hst); stats_read(0)
            Lp = self.onwave(3)
            p(f"v_lshrrev_b32 v5, 1, v1\nv_lshlrev_b32 v5, 7, v5\nv_and_b32 v6, 1, v1\nv_lshl_add_u32 v5, v6, 4, v5\ns_mov_b32 {sT0}, {O_FY}")
            self.poll(5, sT0, 8, wide=True); p(f"{Lp}:")
        else:
            Lp = self.onwave(o.get("pollwave", 0))
            self.rowflag_soff(sT0, O_FX2, False)
            p("v_and_b32 v5, 7, v1\nv_lshlrev_b32 v5, 2, v5")
            self.poll(5, sT0, 6); p(f"{Lp}:")
        self.barrier()
        self.stamp()
        if L == 1: hst = stats_load()
        hC = [[None] * 9, [None] * 9]
        for T in range(2):
            for i in range(9):
                if L == 0: off = O_Y + T * 64 + 8192 * i; va = 13
                else: off = O_X[1] + T * SUB + 2048 * i; va = 12
                p(f"s_add_u32 s92, s94, {off}")
                hC[T][i] = p(f"buffer_load_dwordx4 {vr(CR+36*T+4*i,4)}, v{va}, {WS}, s92 offen sc1")
        if L == 1: stats_finish(hst); stats_read(0)
        hPC = {}; hWr = {}
        def rd_pc(T, i):
            p.wait(self.hP[T][i])
            hPC[T, i] = p(f"ds_read_b128 {vr(PC+4*(i&1),4)}, v{vL} offset:{T*SUB + 4096*i}") if T * SUB + 4096 * i < 65536 else \
                        p(f"ds_read_b128 {vr(PC+4*(i&1),4)}, v{vL2} offset:{4096*i}")
        vL2 = 213
        p(f"v_add_u32 v{vL2}, {SUB}, v{vL}")
        def stage(T, i, nxt):
            F = []; c = CR + 36 * T + 4 * i; pc = PC + 4 * (i & 1)
            X, Y = (pc, c) if L == 0 else (c, pc)
            a = lambda cost, s: F.append((cost, lambda: p(s)))
            F.append((0, lambda: p.wait(hPC[T, i], hC[T][i], self.hST)))
            for dd in (0, 2):
                for d in (dd, dd + 1):
                    t = TT + 6 * (d & 1)
                    a(4, f"v_lshlrev_b32 v{t}, 16, v{X+d}"); a(4, f"v_and_b32 v{t+1}, {sHI}, v{X+d}")
                    a(4, f"v_lshlrev_b32 v{t+2}, 16, v{Y+d}"); a(4, f"v_and_b32 v{t+3}, {sHI}, v{Y+d}")
                if dd == 2 and nxt: F.append((0, lambda: rd_pc(*nxt)))
                for d in (dd, dd + 1):
                    t = TT + 6 * (d & 1)
                    a(5, f"v_pk_fma_f32 {vr(t+4,2)}, {vr(t,2)}, {vr(ST+2*d,2)}, {vr(ST+8+2*d,2)}")
                for d in (dd, dd + 1):
                    t = TT + 6 * (d & 1)
                    a(5, f"v_pk_fma_f32 {vr(t+4,2)}, {vr(t+4,2)}, {vr(t+2,2)}, {vr(t,2)}")
                for d in (dd, dd + 1):
                    t = TT + 6 * (d & 1)
                    a(5, f"v_cvt_pk_bf16_f32 v{OUT+d}, v{t+4}, v{t+5}")
            def wr():
                hWr[T, i] = p(f"ds_write_b128 v{vL if T == 0 else vL2}, {vr(OUT,4)} offset:{4096*i}")
            F.append((0, wr))
            return F
        seq = [(0, i) for i in range(9)] + [(1, i) for i in range(9)]
        def stages(a, b):
            F = []
            for n in range(a, b):
                if seq[n] == (1, 0): F.append((0, lambda: stats_read(1)))
                F += stage(*seq[n], seq[n + 1] if n + 1 < 18 else None)
            return F
        hF = {}
        def rd_frag(T, ks):
            b = FB + 4 * ((36 * T + ks) & 3)
            p(f"ds_read_b64_tr_b16 {vr(b,2)}, v{vB[T]} offset:{1024*ks}")
            hF[T, ks] = p(f"ds_read_b64_tr_b16 {vr(b+2,2)}, v{vB[T]} offset:{1024*ks + 512}")
        def ss(T, i):
            F = []; h = {}
            def r():
                if T == 1 and i == 0: p(f"v_add_u32 v{vSS}, {SUB}, v{vSS}")
                p(f"ds_read_b64_tr_b16 {vr(SST,2)}, v{vSS} offset:{4096*i}")
                h[0] = p(f"ds_read_b64_tr_b16 {vr(SST+2,2)}, v{vSS} offset:{4096*i + 512}")
            F.append((0, r))
            return F, [(0, lambda: p.wait(h[0]))] + [(4, (lambda d=d: p(f"v_dot2c_f32_bf16 v212, v{SST+d}, v{SST+d}"))) for d in range(4)]
        def ss_group(T, i0):
            F = []; pend = []
            if i0 == 0: F.append((4, lambda: p("v_mov_b32 v212, 0")))
            return F, [ss(T, i) for i in range(i0, i0 + 3)]
        def weave(F, groups):
            pre, gs = groups
            n = len(F); out = list(pre); k = max(n // 3, 0)
            for gi, (rd, use) in enumerate(gs):
                out += rd + F[gi * k: (gi + 1) * k if gi < 2 else n] + use
            return out
        def ss_pub(T): return [(0, lambda: p(f"ds_write_b32 v219, v212 offset:{1024*T}"))]
        mf = "v_mfma_f32_32x32x16_bf16"
        PD = 2
        allk = [(T, ks) for T in range(2) for ks in range(36)]
        def gemm(n0, n1, fill, bar_before_end, budget=24):
            main = []
            for n in range(n0, n1):
                T, ks = allk[n]
                for tile in range(2):
                    def g(n=n, T=T, ks=ks, tile=tile):
                        if tile == 0:
                            if n + PD < 72 and not (bar_before_end and n + PD >= n1): rd_frag(*allk[n + PD])
                            p.wait(hF[T, ks])
                        if L == 0: p.wait(self.hW[2 * ks + tile])
                        d = vr(ACC[T][tile], 16)
                        p(f"{mf} {d}, {wreg(2*ks+tile)}, {vr(FB + 4*(n&3), 4)}, {d if ks else 0}")
                    main.append(g)
            if bar_before_end:
                cut = len(main) - 2 * PD
                mix(p, main[:cut], fill, budget)
                p.waitall(vm=False); self.barrier()
                for k in range(PD):
                    main[cut + 2 * k]();
                    if n1 + k < 72: rd_frag(*allk[n1 + k])
                    main[cut + 2 * k + 1]()
            else:
                mix(p, main, fill, budget)
        rd_pc(0, 0)
        for c, f in stages(0, 3): f()
        p.waitall(vm=False); self.barrier()
        self.stamp()
        for k in range(PD): rd_frag(0, k)
        bgl = self.wo_dma() if L == 0 else []
        gemm(0, 12, weave(stages(3, 7), ss_group(0, 0)), True)
        gemm(12, 24, weave(stages(7, 11), ss_group(0, 3)), True)
        gemm(24, 36, weave(stages(11, 15), ss_group(0, 6)) + ss_pub(0), True)
        def post(T, E):
            F = []; A, B = ACC[T]; rl, nm = RL[T], RL[T] + 1; h = {}
            a = lambda c, s: F.append((c, lambda: p(s)))
            def r():
                p(f"ds_read_b128 {vr(E,4)}, v{vSX} offset:{1024*T}")
                h[0] = p(f"ds_read_b128 {vr(E+4,4)}, v{vSX} offset:{1024*T + 16}")
            F.append((0, r))
            a(4, f"v_mul_f32 v{nm}, {INV576 | 0x80000000}, v{B+11}")
            F.append((0, lambda: p.wait(self.hcsr)))
            for i in range(0, 16, 2):
                a(5, f"v_pk_fma_f32 {vr(A+i,2)}, {vr(CS+i,2)}, {vr(rl,2)}, {vr(A+i,2)} op_sel:[0,1,0]")
            for i in (8, 10):
                a(5, f"v_pk_fma_f32 {vr(B+i,2)}, {vr(CS+16+i,2)}, {vr(rl,2)}, {vr(B+i,2)} op_sel:[0,1,0]")
            F.append((0, lambda: p.wait(h[0])))
            a(5, f"v_pk_add_f32 {vr(E,2)}, {vr(E,2)}, {vr(E+2,2)}"); a(5, f"v_pk_add_f32 {vr(E+4,2)}, {vr(E+4,2)}, {vr(E+6,2)}")
            a(5, f"v_pk_add_f32 {vr(E,2)}, {vr(E,2)}, {vr(E+4,2)}"); a(4, f"v_mul_f32 v{E+2}, v{nm}, v{nm}")
            a(4, f"v_add_f32 v{E}, v{E}, v{E+1}"); a(4, f"v_mov_b32 v{E+3}, {INV576}")
            a(5, f"v_fma_f32 v{E}, v{E}, v{E+3}, -v{E+2}"); a(4, f"v_max_f32 v{E}, 0, v{E}"); a(4, f"v_add_f32 v{E}, {EPS}, v{E}")
            a(8, f"v_rsq_f32 v{E}, v{E}")
            k = PK[T]
            a(4, f"v_mov_b32 v{k+9}, 0"); a(4, f"v_mul_f32 v{rl}, {LOG2E}, v{E}"); a(4, f"v_mov_b32 v{k+11}, 0")
            for i in (10, 12, 14): a(5, f"v_pk_mul_f32 {vr(A+i,2)}, {vr(A+i,2)}, {vr(E,2)} op_sel_hi:[1,0]")
            a(4, f"v_mul_f32 v{A+9}, v{A+9}, v{E}"); a(4, f"v_mul_f32 v{B+9}, v{B+9}, v{E}"); a(4, f"v_mul_f32 v{B+10}, v{B+10}, v{E}")
            for i in range(3): a(5, f"v_cvt_pk_bf16_f32 v{k+12+i}, v{A+9+2*i}, v{A+10+2*i}")
            a(5, f"v_cvt_pk_bf16_f32 v{k+15}, v{A+15}, v{B+9}"); a(5, f"v_cvt_pk_bf16_f32 v{k+10}, v{B+10}, 1.0")
            F += self.softmax(A, rl, E, 108, [k + i for i in range(9)])
            return F
        def cs_read():
            p(f"v_lshrrev_b32 v211, 5, v1\nv_lshlrev_b32 v211, 7, v211\ns_lshl_b32 {sT0}, {sW}, 8\ns_add_u32 {sT0}, {sT0}, {LM_CS}\nv_add_u32 v211, {sT0}, v211")
            for i in range(7): self.hcsr = p(f"ds_read_b128 {vr(CS+4*i,4)}, v211 offset:{16*i}")
        def resid():
            if L == 0:
                p(f"""s_lshr_b32 {sT0}, {sW}, 1
                s_mul_i32 {sT0}, {sT0}, {SUB}
                s_mul_i32 {sT1}, {sHG}, 4608
                s_add_u32 {sT0}, {sT0}, {sT1}
                s_and_b32 {sT1}, {sW}, 1
                s_lshl_b32 {sT1}, {sT1}, 5
                s_add_u32 {sT0}, {sT0}, {sT1}
                v_and_b32 v112, 15, v1
                v_lshlrev_b32 v112, 6, v112
                v_lshrrev_b32 v113, 4, v1
                v_lshl_add_u32 v112, v113, 3, v112
                v_add_u32 v112, {sT0}, v112""")
                for t in range(5): self.hres = p(f"ds_read_b64 {vr(2+2*t,2)}, v112 offset:{1024*t}")
            else:
                p(f"""s_lshr_b32 {sT0}, {sW}, 1
                s_mul_i32 {sT0}, {sT0}, {SUB}
                s_mul_i32 {sT1}, {sHG}, 4608
                s_add_u32 {sT0}, {sT0}, {sT1}
                s_and_b32 {sT1}, {sW}, 1
                s_lshl_b32 {sT1}, {sT1}, 5
                s_add_u32 {sT0}, {sT0}, {sT1}
                v_lshrrev_b32 v112, 2, v1
                v_lshlrev_b32 v112, 6, v112
                v_and_b32 v113, 3, v1
                v_lshl_add_u32 v112, v113, 3, v112
                v_add_u32 v112, {sT0}, v112""")
                for t in range(5): self.hres = p(f"ds_read_b64_tr_b16 {vr(2+2*t,2)}, v112 offset:{1024*t}")
        gemm(36, 48, weave(stages(15, 18), ss_group(1, 0)) + [(20, cs_read)], True)
        P0 = post(0, 184)
        n0 = o.get("post_split", 62)
        gemm(48, 60, [(30, resid)] + weave(P0[:n0], ss_group(1, 3)), False)
        gemm(60, 72, weave(P0[n0:], ss_group(1, 6)) + ss_pub(1), False)
        p(f"""v_and_b32 v152, 31, v1
        v_bfe_u32 v153, v1, 1, 1
        v_lshlrev_b32 v153, 2, v153
        v_and_b32 v154, 1, v1
        v_lshl_add_u32 v153, v154, 1, v153
        v_bfe_u32 v154, v1, 2, 1
        v_add_u32 v153, v153, v154
        v_lshlrev_b32 v153, 4, v153
        v_lshl_add_u32 v152, v152, 7, v153
        s_lshl_b32 {sT0}, {sW}, 13
        v_add_u32 v152, {sT0}, v152
        v_lshrrev_b32 v153, 5, v1
        v_lshlrev_b32 v154, 5, v153
        v_xor_b32 v155, v152, v154
        v_xor_b32 v156, 16, v155
        v_lshlrev_b32 v154, 4, v153
        v_or_b32 v154, 64, v154
        v_xor_b32 v157, v152, v154
        v_xor_b32 v158, 32, v157
        v_bfe_u32 v152, v1, 2, 2
        v_lshl_add_u32 v152, v153, 2, v152
        v_bfe_u32 v154, v152, 1, 1
        v_lshlrev_b32 v154, 2, v154
        v_and_b32 v159, 1, v152
        v_lshl_add_u32 v154, v159, 1, v154
        v_add_u32 v154, v154, v153
        v_lshlrev_b32 v154, 4, v154
        v_lshl_add_u32 v152, v152, 7, v154
        v_add_u32 v152, {sT0}, v152
        v_and_b32 v153, 1, v1
        v_bfe_u32 v154, v1, 1, 1
        v_bfe_u32 v159, v1, 4, 1
        v_lshlrev_b32 v160, 5, v153
        v_lshl_add_u32 v160, v159, 4, v160
        v_xor_b32 v160, v152, v160
        v_lshl_add_u32 v160, v154, 3, v160
        v_lshlrev_b32 v161, 4, v153
        v_or_b32 v161, 64, v161
        v_xor_b32 v161, v152, v161
        v_xor_b32 v162, 32, v161
        v_lshl_add_u32 v162, v154, 3, v162
        v_add_u32 v163, 8, v161
        v_cmp_eq_u32 vcc, 1, v159
        v_cndmask_b32 v162, v162, v163, vcc""")
        p.waitall(vm=False); self.barrier()
        self.stamp()
        def wr_phi(T):
            for i in range(4): h = p(f"ds_write_b128 v{155+i}, {vr(PK[T]+4*i,4)} offset:{4096*T}")
            return h
        hA = {}
        FR = [164, 176, 188, 200]
        def rd_part(s):
            b = FR[s]
            for i in range(3):
                for rd in range(2): hA[s] = p(f"ds_read_b64_tr_b16 {vr(b+4*i+2*rd,2)}, v{160+i} offset:{2048*s + 1024*rd}")
        KV0, KV1 = 16, 148
        def mm_part(s):
            b = FR[s]; p.wait(hA[s])
            p(f"{mf} {vr(KV0,16)}, {vr(b,4)}, {vr(b+8,4)}, {vr(KV0,16) if s else 0}")
            p(f"{mf} {vr(KV1,16)}, {vr(b+4,4)}, {vr(b+8,4)}, {vr(KV1,16) if s else 0}")
        h = wr_phi(0)
        P1 = post(1, 188)
        for c, f in P1[:30]: f()
        p.wait(h); rd_part(0); rd_part(1)
        for c, f in P1[30:]: f()
        h = wr_phi(1)
        p(f"""s_lshl_b32 {sT0}, {sX}, 3
        s_add_u32 {sT0}, {sT0}, {sHG}
        s_lshl_b32 s99, {sT0}, 2
        s_add_u32 {sT1}, s99, {sW}
        s_lshl_b32 {sT1}, {sT1}, 2
        s_add_u32 {sT1}, {sT1}, {sI4}
        s_mul_i32 {sT1}, {sT1}, 3840
        s_add_u32 {sT1}, {sT1}, {O_P1[L]}
        v_lshrrev_b32 v112, 5, v1
        v_mul_u32_u24 v112, 24, v112
        v_and_b32 v113, 31, v1
        v_add_u32 v113, v112, v113
        v_lshlrev_b32 v112, 4, v113""")
        p.wait(h); rd_part(2); rd_part(3)
        p("v_mov_b32 v114, v112")
        KV1 = 48
        for s in range(4): mm_part(s)
        p(f"s_mov_b64 exec, {M48}")
        for jj in range(5):
            p(f"buffer_store_dwordx4 {vr(KV0+4*jj if jj < 4 else KV1,4)}, v112, {WS}, {sT1} offen offset:{768*jj} sc1")
        p("s_mov_b64 exec, -1")
        def qsoft(T):
            A, B = ACC[T]; rl = RL[T]; F = []
            for i in range(0, 8, 2):
                F.append((5, lambda i=i: p(f"v_pk_fma_f32 {vr(B+i,2)}, {vr(CS+16+i,2)}, {vr(rl,2)}, {vr(B+i,2)} op_sel:[0,1,0]")))
            F += self.softmax(B, rl, 184, 108, [A + i for i in range(9)])
            F += [(4, lambda i=i: p(f"v_mov_b32 v{A+9+i}, 0")) for i in range(3)]
            for c, f in F: f()
        qsoft(0)
        p.waitall(); self.barrier()
        Lf = self.onwave(0)
        p(f"s_lshl_b32 {sT0}, s99, 5\ns_add_u32 {sT0}, {sT0}, {O_FP[L]}\ns_lshl_b32 {sT1}, {sI4}, 2\ns_add_u32 {sT1}, {sT1}, {sT0}")
        self.setflag(sT1, 116)
        p("v_and_b32 v116, 3, v1\nv_lshlrev_b32 v116, 2, v116")
        self.poll(116, sT0, 117); p(f"{Lf}:")
        self.barrier()
        self.stamp()
        p(f"""s_add_u32 {sT1}, s99, {sI4}
        s_mul_i32 {sT1}, {sT1}, {4*3840}
        s_add_u32 {sT1}, {sT1}, {O_P1[L]}
        v_lshlrev_b32 v116, 4, v0""")
        hr = []
        for pp in range(4):
            hr.append(p(f"buffer_load_dwordx4 {vr(120+4*pp,4)}, v116, {WS}, {sT1} offen sc1"))
            if pp < 3: p(f"s_add_u32 {sT1}, {sT1}, 3840")
        p(f"""v_mul_u32_u24 v117, 1366, v0
        v_lshrrev_b32 v117, 16, v117
        v_mul_u32_u24 v118, 48, v117
        v_sub_u32 v118, v0, v118
        v_lshrrev_b32 v119, 1, v117
        v_mul_u32_u24 v119, 768, v119
        v_and_b32 v136, 1, v117
        v_lshl_add_u32 v119, v136, 3, v119
        v_lshl_add_u32 v136, v118, 4, v119
        v_lshl_add_u32 v137, v118, 3, v119
        v_cmp_eq_u32 vcc, 4, v117
        v_cndmask_b32 v136, v136, v137, vcc
        v_mov_b32 v137, 0x40000000
        v_cmp_lt_u32 vcc, 4, v117
        v_cndmask_b32 v136, v136, v137, vcc
        s_lshl_b32 {sT0}, {sHG}, 2
        s_add_u32 {sT0}, {sT0}, {sI4}
        s_lshl_b32 {sT0}, {sT0}, 3
        s_add_u32 {sT0}, {sT0}, {sX}
        s_lshl_b32 {sT0}, {sT0}, 11
        s_add_u32 {sT0}, {sT0}, {O_P2[L]}""")
        p.wait(hr[1])
        p("v_pk_add_f32 v[120:121], v[120:121], v[124:125]\nv_pk_add_f32 v[122:123], v[122:123], v[126:127]")
        p.wait(hr[3])
        p("""v_pk_add_f32 v[128:129], v[128:129], v[132:133]
        v_pk_add_f32 v[130:131], v[130:131], v[134:135]
        v_pk_add_f32 v[120:121], v[120:121], v[128:129]
        v_pk_add_f32 v[122:123], v[122:123], v[130:131]
        v_cvt_pk_bf16_f32 v120, v120, v121
        v_cvt_pk_bf16_f32 v121, v122, v123""")
        hs = p(f"buffer_store_dwordx2 v[120:121], v136, {WS}, {sT0} offen sc1")
        if L == 0:
            for g in bgl: g()
            self.hP = [[None] * 9, [None] * 9]
            pre = self.pre_dma(1)
        qsoft(1)
        p.wait(hs); self.barrier()
        Lf = self.onwave(0)
        p(f"""s_lshl_b32 {sT0}, {sHG}, 10
        s_add_u32 {sT0}, {sT0}, {O_FK[L]}
        s_lshl_b32 {sT1}, {sX}, 7
        s_lshl_b32 {sT2}, {sI4}, 2
        s_add_u32 {sT1}, {sT1}, {sT2}
        s_add_u32 {sT1}, {sT1}, {sT0}""")
        self.setflag(sT1, 116)
        p("v_bfe_u32 v116, v1, 2, 3\nv_lshlrev_b32 v116, 7, v116\nv_and_b32 v117, 3, v1\nv_lshl_add_u32 v116, v117, 2, v116")
        self.poll(116, sT0, 117); p(f"{Lf}:")
        self.barrier()
        self.stamp()
        p(f"s_lshl_b32 {sT0}, {sHEAD}, 14\ns_add_u32 {sT0}, {sT0}, {O_P2[L]}\nv_lshlrev_b32 v115, 3, v113\ns_mov_b64 exec, {M48}")
        hg_ = []
        for xx in range(8):
            b = 116 + 10 * xx; of = (xx & 1) * 2048
            p(f"buffer_load_dwordx4 {vr(b,4)}, v114, {WS}, {sT0} offen offset:{of} sc1")
            p(f"buffer_load_dwordx4 {vr(b+4,4)}, v114, {WS}, {sT0} offen offset:{of+768} sc1")
            hg_.append(p(f"buffer_load_dword v{b+8}, v115, {WS}, {sT0} offen offset:{of+1536} sc1"))
            if xx & 1 and xx < 7: p(f"s_add_u32 {sT0}, {sT0}, 4096")
        p("s_mov_b64 exec, -1")
        p(f"""s_lshl_b32 {sT0}, {sRB}, 2
        s_mul_i32 {sT0}, {sT0}, 18432
        s_mul_i32 {sT1}, {sHG}, 2304
        s_add_u32 {sT0}, {sT0}, {sT1}
        s_add_u32 {sT0}, {sT0}, {O_O[L]}
        s_add_u32 {sT1}, {sT0}, {SUB}
        v_bfe_u32 v108, v1, 4, 1
        v_mul_u32_u24 v108, 18432, v108
        v_and_b32 v109, 15, v1
        v_lshl_add_u32 v108, v109, 4, v108
        v_lshrrev_b32 v109, 5, v1
        s_lshl_b32 {sT2}, {sW}, 1
        v_add_u32 v109, {sT2}, v109
        v_lshl_add_u32 v110, v109, 1, v108
        v_lshl_add_u32 v108, v109, 8, v108
        v_mov_b32 v209, 0
        v_mov_b32 v210, 0
        v_mov_b32 v211, 0""")
        SU = 80
        for xx in range(8):
            b = 116 + 10 * xx; p.wait(hg_[xx])
            for d in range(9):
                if xx == 0: p(f"v_lshlrev_b32 v{SU+2*d}, 16, v{b+d}\nv_and_b32 v{SU+2*d+1}, {sHI}, v{b+d}")
                else: p(f"v_dot2c_f32_bf16 v{SU+2*d}, {sONE}, v{b+d}\nv_dot2c_f32_bf16 v{SU+2*d+1}, {sONEH}, v{b+d}")
        for d in range(9): p(f"v_cvt_pk_bf16_f32 v{200+d}, v{SU+2*d}, v{SU+2*d+1}")
        for T in range(2):
            for s in range(3):
                d = vr(ACC[T][1], 16)
                p(f"{mf} {d}, {vr(200+4*s,4)}, {vr(ACC[T][0]+4*s,4)}, {d if s else 0}")
        if L == 0:
            for g in pre: g()
        ho = None
        for T in range(2):
            B = ACC[T][1]; O = 100 + 4 * T
            p(f"v_add_f32 v{B+10}, {EPS6}, v{B+9}\nv_rcp_f32 v{B+10}, v{B+10}")
            for i in range(0, 8, 2): p(f"v_pk_mul_f32 {vr(B+i,2)}, {vr(B+i,2)}, {vr(B+10,2)} op_sel_hi:[1,0]")
            p(f"v_mul_f32 v{B+8}, v{B+8}, v{B+10}")
            for i in range(4): p(f"v_cvt_pk_bf16_f32 v{O+i}, v{B+2*i}, v{B+2*i+1}")
            p(f"v_cvt_pk_bf16_f32 v{B+8}, v{B+8}, v{B+8}")
            so = sT0 if T == 0 else sT1
            p(f"buffer_store_dwordx4 {vr(O,4)}, v108, {WS}, {so} offen sc1")
            ho = p(f"buffer_store_short v{B+8}, v110, {WS}, {so} offen offset:2048 sc1")
        AC, OF, WF = 16, 36, 108
        p(f"""v_lshrrev_b32 v208, 5, v1
        v_lshlrev_b32 v208, 4, v208
        v_bfe_u32 v209, v1, 4, 1
        v_lshl_add_u32 v208, v209, 2, v208
        v_bfe_u32 v209, v1, 2, 2
        v_add_u32 v208, v208, v209
        v_and_b32 v209, 1, v1
        v_lshlrev_b32 v209, 3, v209
        v_lshl_add_u32 v210, v208, 4, v209
        v_add_u32 v210, {L_W + 73728}, v210
        v_and_b32 v209, 3, v1
        v_lshlrev_b32 v209, 3, v209
        v_lshl_add_u32 v208, v208, 5, v209
        v_add_u32 v208, {L_W}, v208
        v_add_u32 v209, {SUB}, v208""")
        p.waitall(); self.barrier()
        Lf = self.onwave(0)
        self.rowflag_soff(sT1, O_FO[L], True); self.setflag(sT1, 211); p(f"{Lf}:")
        hw = {}
        def rd_wo(s):
            b = WF + 20 * (s % 5)
            for t in range(5):
                for rd in range(2):
                    if t < 4: a, of = (208 if t < 2 else 209), (t & 1) * 18432 + 1024 * s + 256 * rd
                    else: a, of = 210, 512 * s + 128 * rd
                    hw[s, t] = p(f"ds_read_b64_tr_b16 {vr(b+4*t+2*rd,2)}, v{a} offset:{of}")
        for s in range(5): rd_wo(s)
        if L == 0:
            self.xT_addr(212, 211); self.stat_addr(213, 211)
        else:
            self.srd(SA, "out", TEN)
            p(f"""v_and_b32 v212, 15, v1
            v_mul_u32_u24 v212, 1152, v212
            v_lshrrev_b32 v211, 4, v1
            v_lshl_add_u32 v212, v211, 3, v212""")
        Lf = self.onwave(0)
        self.rowflag_soff(sT0, O_FO[L], False)
        p("v_and_b32 v211, 7, v1\nv_lshlrev_b32 v211, 2, v211")
        self.poll(211, sT0, 214); p(f"{Lf}:")
        self.barrier()
        self.stamp()
        p(f"s_lshl_b32 {sT0}, {sRB}, 2\ns_add_u32 {sT0}, {sT0}, {sW}\ns_mul_i32 {sT0}, {sT0}, 18432\ns_add_u32 {sT0}, {sT0}, {O_O[L]}")
        hO = []
        for s in range(18):
            hO.append(p(f"buffer_load_dwordx4 {vr(OF+4*s,4)}, v14, {WS}, {sT0} offen offset:{(s%4)*1024} sc1"))
            if s % 4 == 3: p(f"s_add_u32 {sT0}, {sT0}, 4096")
        m16 = "v_mfma_f32_16x16x32_bf16"
        for s in range(18):
            p.wait(hO[s])
            for t in range(5):
                p.wait(hw[s, t])
                d = vr(AC + 4 * t, 4); w_, o_ = vr(WF + 20 * (s % 5) + 4 * t, 4), vr(OF + 4 * s, 4)
                p(f"{m16} {d}, {o_ if L == 0 else w_}, {w_ if L == 0 else o_}, {d if s else 0}")
            if s + 5 < 18: rd_wo(s + 5)
        X = 40
        p.wait(self.hres)
        for t in range(5):
            for d in range(2): p(f"v_lshlrev_b32 v{X+4*t+2*d}, 16, v{2+2*t+d}\nv_and_b32 v{X+4*t+2*d+1}, {sHI}, v{2+2*t+d}")
        if L == 0: self.xT_soff(sT0, 1); self.st_soff(sT1, 1)
        else:
            p(f"s_lshl_b32 {sT0}, {sRB}, 2\ns_add_u32 {sT0}, {sT0}, {sW}\ns_mul_i32 {sT0}, {sT0}, 18432\ns_mul_i32 {sT1}, {sHG}, 144\ns_add_u32 {sT0}, {sT0}, {sT1}")
        for t in range(5):
            for d in (0, 2): p(f"v_pk_add_f32 {vr(X+4*t+d,2)}, {vr(X+4*t+d,2)}, {vr(AC+4*t+d,2)}")
            for d in range(2): p(f"v_cvt_pk_bf16_f32 v{64+2*t+d}, v{X+4*t+2*d}, v{X+4*t+2*d+1}")
            if L == 0:
                if t == 4: p(f"s_mov_b64 exec, {M8}")
                p(f"buffer_store_dwordx2 {vr(64+2*t,2)}, v212, {WS}, {sT0} offen offset:{512*t} sc1")
            else:
                if t == 4: p("s_mov_b32 exec_hi, 0")
                p(f"buffer_store_dwordx2 {vr(64+2*t,2)}, v212, {SA}, {sT0} offen offset:{32*t}")
        p("s_mov_b64 exec, -1")
        if L == 0:
            self.rowstats(X, M8, 76, sT1, 213)
            p.waitall(); self.barrier()
            Lf = self.onwave(0)
            self.rowflag_soff(sT1, O_FX2, True); self.setflag(sT1, 5); p(f"{Lf}:")
        self.stamp()

    def build(self):
        p = self.p
        self.prologue(); self.phase0()
        if self.stop != "p0":
            self.conv()
            if self.stop != "conv":
                self.layer(0)
                if self.stop != "l0": self.layer(1)
        p.waitall()
        L = p.lab("ep")
        p(f"s_or_b32 {sT0}, s2, {sW}\ns_cmp_lg_u32 {sT0}, 0\ns_cbranch_scc1 {L}")
        if self.stop: p("s_sleep 127\ns_sleep 127\ns_sleep 127\ns_sleep 127")
        p(f"s_mov_b32 {sT0}, {O_EPOCH}"); self.setflag(sT0, 5)
        p(f"{L}:\nL_end:\ns_endpgm")
        return p.text()

HEADER = open("interleave_layers__ssm_conv_h3__linear_kernel_hedgehog__prompt.s.ref").read().split("; Override launch")[0]

def full(prof=False, stop=None, opt=None):
    k = K(prof, stop, opt); body = k.build()
    assert k.p.maxv <= 255 and k.p.maxa <= 255 and k.p.maxs <= 101
    txt = HEADER + f"; @launch grid=(256,1,1) block=(256,1,1) lds={LDS_BYTES}\n"
    txt += f""".amdgcn_target "amdgcn-amd-amdhsa--gfx950"
.text
.globl {NAME}
.p2align 8
.type {NAME},@function
{NAME}:
{body}.section .rodata,"a"
.p2align 6
.amdhsa_kernel {NAME}
  .amdhsa_next_free_vgpr 512
  .amdhsa_next_free_sgpr 102
  .amdhsa_accum_offset 256
  .amdhsa_group_segment_fixed_size 0
  .amdhsa_kernarg_size 104
  .amdhsa_user_sgpr_count 2
  .amdhsa_user_sgpr_kernarg_segment_ptr 1
  .amdhsa_system_sgpr_workgroup_id_x 1
.end_amdhsa_kernel
"""
    return txt, k

if __name__ == "__main__":
    import argparse, json
    ap = argparse.ArgumentParser()
    ap.add_argument("-o", default="out.s"); ap.add_argument("--prof", action="store_true"); ap.add_argument("--stop"); ap.add_argument("--opt", default="{}")
    a = ap.parse_args()
    txt, k = full(a.prof, a.stop, json.loads(a.opt))
    open(a.o, "w").write(txt)
    print("lines", len(k.p.out), "nops", k.p.nops, "maxs", k.p.maxs, "stamps", k.nstamp)
```

```python
import re

TRANS = ("v_exp_f32", "v_log_f32", "v_rcp_f32", "v_rsq_f32", "v_sqrt_f32", "v_sin_f32", "v_cos_f32")

def parse_reg(tok):
    tok = tok.strip()
    t = tok
    if t.startswith("-"): t = t[1:]
    if t.startswith("abs(") and t.endswith(")"): t = t[4:-1]
    if t.startswith("|") and t.endswith("|"): t = t[1:-1]
    m = re.fullmatch(r"([vas])(\d+)", t)
    if m: return [(m.group(1), int(m.group(2)))]
    m = re.fullmatch(r"([vas])\[(\d+):(\d+)\]", t)
    if m: return [(m.group(1), i) for i in range(int(m.group(2)), int(m.group(3)) + 1)]
    if t == "vcc": return [("x", "vcc")]
    if t in ("exec", "exec_lo", "exec_hi"): return [("x", "exec")]
    if t == "m0": return [("x", "m0")]
    return []

class Ins:
    __slots__ = ("text", "op", "dst", "src", "ops", "mods", "kind", "seq", "lds", "passes", "srcc")
    def __init__(self, text):
        self.text = text
        body = text.split(";")[0].strip()
        self.op = body.split()[0] if body else ""
        rest = body[len(self.op):].strip()
        parts = [p.strip() for p in re.split(r",(?![^\[]*\])", rest)] if rest else []
        mods = ""
        if parts:
            last = parts[-1].split(None, 1)
            parts[-1] = last[0]
            mods = last[1] if len(last) > 1 else ""
        self.ops, self.mods = parts, mods
        op = self.op
        R = [parse_reg(p) for p in parts]
        flat = lambda L: [r for x in L for r in x]
        self.lds = False; self.passes = 0; self.srcc = []
        if op.endswith(":"):
            self.kind, self.dst, self.src = "label", [], []
        elif op.startswith("v_mfma"):
            self.kind = "mfma"; self.dst = R[0]; self.src = flat(R[1:]); self.srcc = R[3]
            self.passes = 8 if "32x32x16" in op else 4 if "16x16x32" in op else None
            assert self.passes
        elif op.startswith("v_"):
            self.kind = "valu"
            if op.startswith("v_permlane") and "swap" in op:
                self.dst = flat(R[:2]); self.src = flat(R[:2])
            elif re.match(r"v_(add|sub|subrev|addc|subb)_co_", op):
                self.dst = flat(R[:2]); self.src = flat(R[2:])
            else:
                self.dst = R[0]; self.src = flat(R[1:])
                if op.startswith(("v_fmac", "v_dot2c", "v_pk_fmac", "v_writelane")) or "_dpp" in op:
                    self.src = self.src + R[0]
        elif op.startswith("ds_"):
            self.kind = "ds"
            if op.startswith("ds_read") or "_rtn_" in op: self.dst = R[0]; self.src = flat(R[1:])
            else: self.dst = []; self.src = flat(R)
        elif op.startswith(("buffer_", "global_")):
            self.kind = "vm"
            ml = mods.split()
            if "load" in op and "lds" in ml:
                self.lds = True; self.dst = []; self.src = flat(R) + [("x", "m0")]
            elif "load" in op: self.dst = R[0]; self.src = flat(R[1:])
            elif "atomic" in op: self.dst = R[0] if "sc0" in ml else []; self.src = flat(R)
            else: self.dst = []; self.src = flat(R)
        elif op.startswith(("s_load", "s_memtime", "s_memrealtime")):
            self.kind = "smem"; self.dst = R[0]; self.src = flat(R[1:])
        elif op.startswith(("s_cbranch", "s_branch")):
            self.kind = "branch"; self.dst = []; self.src = []
        elif op in ("s_waitcnt", "s_barrier", "s_nop", "s_endpgm", "s_sleep", "s_setprio"):
            self.kind = "ctl"; self.dst = []; self.src = []
        elif op.startswith("s_cmp"):
            self.kind = "salu"; self.dst = []; self.src = flat(R)
        elif op.startswith("s_"):
            self.kind = "salu"; self.dst = R[0]; self.src = flat(R[1:])
            if "saveexec" in op: self.dst = self.dst + [("x", "exec")]
        else:
            self.kind, self.dst, self.src = "dir", [], []

class Op:
    __slots__ = ("seq", "dst", "cnt", "text")
    def __init__(self, seq, dst, cnt, text): self.seq, self.dst, self.cnt, self.text = seq, set(dst), cnt, text

class State:
    def __init__(self):
        self.q = {"vm": [], "lg": []}
        self.haz = []
        self.dead = False
    def copy(self):
        s = State(); s.q = {k: [list(e) for e in v] for k, v in self.q.items()}
        s.haz = [list(e) for e in self.haz]; return s
    def merge(self, o):
        if self.dead:
            c = o.copy(); self.q, self.haz, self.dead = c.q, c.haz, False; return
        for k in self.q:
            a = {e[0].seq: e for e in self.q[k]}; b = {e[0].seq: e for e in o.q[k]}
            out = []
            for s in sorted(set(a) | set(b)):
                if s in a and s in b: out.append([a[s][0], a[s][1] and b[s][1]])
                else: out.append([(a.get(s) or b.get(s))[0], False])
            self.q[k] = out
        d = {}
        for ins, age in self.haz + o.haz:
            if id(ins) not in d or age < d[id(ins)][1]: d[id(ins)] = [ins, age]
        self.haz = list(d.values())

class Prog:
    def __init__(self):
        self.out = []; self.st = State(); self.seq = 0; self.snap = {}; self.nlab = 0
        self.nops = 0; self.seen_labels = set(); self.maxv = -1; self.maxa = -1; self.maxs = -1
    def lab(self, base="L"):
        self.nlab += 1; return f"{base}_{self.nlab}"
    def _need(self, p, c):
        ps, cs_src, cs_dst = set(p.dst), set(c.src), set(c.dst)
        n = 0
        if p.kind == "valu":
            vd = {r for r in ps if r[0] in "va"}; sd = {r for r in ps if r[0] in "sx"}
            if c.kind == "mfma" and vd & cs_src: n = max(n, 2)
            if c.kind == "valu":
                if vd & cs_src:
                    if "_dpp" in c.op or c.op.startswith("v_permlane"): n = max(n, 2)
                    if c.op.startswith(("v_readlane", "v_readfirstlane")): n = max(n, 1)
                    if p.op.split("_e")[0] in TRANS and c.op.split("_e")[0] not in TRANS: n = max(n, 1)
                    if p.op in TRANS and c.op not in TRANS: n = max(n, 1)
                if sd & cs_src: n = max(n, 4 if c.op.startswith(("v_readlane", "v_writelane")) else 2)
            if p.op.startswith("v_dot") and c.op != p.op and c.kind in ("valu", "vm", "ds", "mfma") and vd & (cs_src | cs_dst): n = max(n, 3)
            if p.op.startswith("v_dot") and c.op == p.op and vd & set(c.src[:len(c.src) - len(c.dst)]): n = max(n, 3)
            if c.kind in ("vm",) and sd & cs_src: n = max(n, 5)
            if c.kind in ("vm", "ds") and vd & cs_src and p.op in TRANS: n = max(n, 1)
        elif p.kind == "mfma":
            big = 12 if p.passes == 8 else 8
            if c.kind == "mfma":
                ab = set(c.src[:len(c.src) - len(c.srcc)])
                if ps & ab: n = max(n, big)
                cc = set(c.srcc)
                if ps & cc and not (c.srcc == p.dst and c.passes == p.passes): n = max(n, big - 2)
                if ps & cs_dst and not (c.dst == p.dst and c.srcc == p.dst): n = max(n, big - 2)
            elif c.kind in ("valu", "vm", "ds"):
                if ps & (cs_src | cs_dst): n = max(n, big)
                if c.kind == "valu" and set(p.srcc) & cs_dst: n = max(n, 7 if p.passes == 8 else 3)
        elif p.kind == "vm" and "store" in p.op and ("x4" in p.op or "x3" in p.op):
            data = set(parse_reg(p.ops[0]))
            if data & cs_dst: n = max(n, 2)
        elif p.kind == "salu":
            if ("x", "m0") in ps and c.kind == "vm" and c.lds: n = max(n, 1)
        return n
    def _age(self, k):
        self.st.haz = [[i, a + k] for i, a in self.st.haz if a + k < 13]
    def _check_pending(self, c):
        touched = set(c.src) | set(c.dst)
        for k in self.st.q:
            for o, _ in self.st.q[k]:
                if o.dst & touched:
                    raise RuntimeError(f"use of pending load result: '{c.text}' touches {sorted(o.dst & touched)} of '{o.text}'")
    def _emit(self, c):
        for r in c.src + c.dst:
            if r[0] == "v": self.maxv = max(self.maxv, r[1])
            if r[0] == "a": self.maxa = max(self.maxa, r[1])
            if r[0] == "s": self.maxs = max(self.maxs, r[1])
        if c.kind == "dir": self.out.append(c.text); return None
        if c.kind == "label":
            name = c.op[:-1]; self.seen_labels.add(name)
            for s in self.snap.pop(name, []): self.st.merge(s)
            assert not self.st.dead, f"unreachable label {name}"
            self.out.append(c.text); return None
        assert not self.st.dead, "code after unconditional branch: " + c.text
        need = 0
        for p, age in self.st.haz: need = max(need, self._need(p, c) - age)
        if need > 0:
            self.out.append(f"s_nop {need - 1}"); self.nops += need; self._age(need)
        self._check_pending(c)
        self.out.append(c.text)
        h = None
        if c.op == "s_waitcnt":
            for k, nm in (("vm", "vmcnt"), ("lg", "lgkmcnt")):
                m = re.search(nm + r"\((\d+)\)", c.text)
                if m: self._pop(k, int(m.group(1)))
        if c.kind in ("vm", "ds", "smem"):
            self.seq += 1
            k = "vm" if c.kind == "vm" else "lg"
            h = Op(self.seq, c.dst, k, c.text); h.dst = {r for r in h.dst}
            if c.kind == "smem": h.cnt = "smem"
            self.st.q[k].append([h, True])
        self._age(int(c.ops[0]) + 1 if c.op == "s_nop" else 1)
        if c.kind in ("valu", "mfma", "salu") or (c.kind == "vm" and "store" in c.op):
            self.st.haz.append([c, 0])
        if c.kind == "branch":
            tgt = c.ops[0]
            if tgt not in self.seen_labels: self.snap.setdefault(tgt, []).append(self.st.copy())
            if c.op == "s_branch": self.st.dead = True
        if c.op == "s_endpgm": self.st.dead = True
        return h
    def _pop(self, k, n):
        q = self.st.q[k]
        if k == "lg" and n > 0 and any(o.cnt == "smem" for o, _ in q): return
        keep = []; younger = 0
        for e in reversed(q):
            if younger < n: keep.append(e)
            if e[1]: younger += 1
        self.st.q[k] = list(reversed(keep))
    def __call__(self, text):
        h = None
        for ln in text.split("\n"):
            ln = ln.strip()
            if not ln or ln.startswith(";"): continue
            h = self._emit(Ins(ln))
        return h
    def wait(self, *hs):
        arg = []
        for k, nm, mx in (("vm", "vmcnt", 63), ("lg", "lgkmcnt", 15)):
            q = self.st.q[k]; best = None
            for h in hs:
                if h is None: continue
                idx = [i for i, e in enumerate(q) if e[0] is h]
                if not idx: continue
                n = sum(1 for e in q[idx[0] + 1:] if e[1])
                if k == "lg" and any(o.cnt == "smem" for o, _ in q): n = 0
                best = n if best is None else min(best, n)
            if best is not None: arg.append(f"{nm}({min(best, mx)})")
        if arg: self("s_waitcnt " + " ".join(arg))
    def waitall(self, vm=True, lg=True):
        arg = []
        if vm and self.st.q["vm"]: arg.append("vmcnt(0)")
        if lg and self.st.q["lg"]: arg.append("lgkmcnt(0)")
        if arg: self("s_waitcnt " + " ".join(arg))
    def raw(self, text):
        for ln in text.split("\n"):
            if ln.strip(): self.out.append(ln.strip())
    def assume_done(self, h):
        q = self.st.q["vm"]; idx = [i for i, e in enumerate(q) if e[0] is h]
        if idx: self.st.q["vm"] = q[idx[0] + 1:]
    def forget(self, pred):
        self.st.q["vm"] = [x for x in self.st.q["vm"] if x[1] or not pred(x[0])]
    def nvm(self): return len(self.st.q["vm"])
    def text(self):
        assert not self.snap, f"unresolved labels {list(self.snap)}"
        return "\n".join(self.out) + "\n"

COST = {"trans": 8, "valu4": 4, "valu8": 5}
def mix(p, main, fill, budget, flush=True):
    fill = list(fill); credit = 0
    for m in main:
        m(); credit += budget
        while fill and (fill[0][0] <= credit or (credit >= budget and fill[0][0] > budget)):
            c, f = fill.pop(0); f(); credit -= c
        credit = min(credit, budget)
    if not flush: return fill
    for c, f in fill: f()
```

```python
import sys
from emit import Prog, mix

NAME = "interleave_layers__ssm_conv_h3__linear_kernel_hedgehog__prompt_kernel"
O_EPOCH = 0
O_FU, O_FW, O_FID, O_FX0, O_FY = 0x1000, 0x1400, 0x1800, 0x2000, 0x3000
O_FR = 0x4000
O_FP = 0x8000
O_FK = [0xC000, 0xE000]
O_CS = 0x1C0000
O_ST = [0x40000, 0x60000, 0x80000]
O_P2 = [0xA0000, 0x120000]
O_PROF = 0x1A0000
O_WO = 0x200000
O_P1 = 0x2C0000
O_U = 0x680000
O_Y = O_U + 0x240000
O_WP = O_Y + 0x240000
O_Z, O_O = O_U, O_Y
WS_USED = O_WP + 3 * 0x240000
TEN = 2048 * 576 * 2
SUB = 36864
L_W = 2 * SUB
L_M = L_W + 82944
L_K, L_V, L_Q, L_PHI, L_WOT, L_WR = 0, 10240, 20480, 32768, 36864, 40960
CONV_STRIDE = 21248; CP = 4160; L_CU = 16640
LM_CS = L_M
LM_SY = L_M + 1024
LDS_BYTES = 163840
WS = "s[4:7]"
SA, SB, SC, SD, SE = "s[36:39]", "s[40:43]", "s[44:47]", "s[48:51]", "s[52:55]"
sX, sJ, sRB, sHG, sI4, sW, sN, sHI = "s56", "s57", "s58", "s59", "s60", "s61", "s62", "s63"
sT0, sT1, sT2, sT3, sT4, sT5 = "s66", "s67", "s68", "s69", "s70", "s71"
sCH, sLC, sHEAD, sPC = "s72", "s73", "s74", "s75"
M8 = "s[76:77]"
M48 = "s[78:79]"
MU1 = "s[80:81]"
sONE, sONEH, sONE2, sCONV = "s82", "s83", "s84", "s85"
sKB, sFH, sFOLD, sO, sWP, sZ, sW10, sNC, sFAST, sFR, sG4 = "s89", "s90", "s91", "s92", "s93", "s94", "s95", "s96", "s97", "s98", "s99"
PTR = dict(q=8, k=10, v=12, shift=14, ssm=16, D=18, wqkv=22, wphi=24, wo=26, out=28, dbg=30)
LOG2E = 0x3fb8aa3b; INV576 = 0x3ae38e39; EPS = 0x3727c5ac; EPS6 = 0x358637bd
SPIN = 200000
RES, vXT, vSTA, v16L, YT = 2, 12, 13, 14, 16
M32 = "v_mfma_f32_32x32x16_bf16"; M16 = "v_mfma_f32_16x16x32_bf16"

def vr(a, n): return f"v[{a}:{a+n-1}]" if n > 1 else f"v{a}"
def wreg(f): return f"a[{4*f}:{4*f+3}]" if f < 64 else vr(224 + 4 * (f - 64), 4)
def run(F):
    for c, f in F: f()

class K:
    STAMP_REGS = [34, 35, 64, 65, 100, 101, 20, 21, 3] + list(range(8, 20)) + [22, 23, 24, 25, 30, 31, 32, 33]
    def __init__(self, prof=False, opt=None):
        self.p = Prog(); self.prof = prof; self.nstamp = 0; self.names = []; self.opt = opt or {}; self.tail = []
        self.OZ, self.OO = (O_WP + 0x240000, O_WP + 2 * 0x240000) if self.opt.get("noalias") else (O_Z, O_O)
    def srd(self, dst, name, nbytes):
        b = int(dst[2:].split(":")[0]); s = PTR[name]
        self.p(f"s_mov_b32 s{b}, s{s}\ns_mov_b32 s{b+1}, s{s+1}\ns_mov_b32 s{b+2}, {nbytes}\ns_mov_b32 s{b+3}, 0x20000")
    def stamp(self, name=""):
        if not self.prof: return
        if self.opt.get("only") and self.nstamp and name not in self.opt["only"]: return
        p = self.p; i = self.nstamp; self.nstamp += 1; self.names.append(name)
        p(("s_memtime" if self.opt.get("cyc") else "s_memrealtime") + f" s[86:87]\ns_waitcnt lgkmcnt(0)\ns_mov_b32 s{self.STAMP_REGS[i]}, s86")
    def stamp_flush(self):
        if not self.prof: return
        p = self.p
        for i in range(self.nstamp): p(f"v_writelane_b32 v2, s{self.STAMP_REGS[i]}, {i}")
        p(f"v_writelane_b32 v2, {sFAST}, 31")
        p(f"s_lshl_b32 s88, s2, 9\ns_lshl_b32 s86, {sW}, 7\ns_add_u32 s88, s88, s86\ns_add_u32 s88, s88, {O_PROF}\nv_lshlrev_b32 v3, 2, v1\ns_mov_b32 exec_hi, 0\nbuffer_store_dword v2, v3, {WS}, s88 offen\ns_mov_b64 exec, -1")
    def onwave(self, w):
        L = self.p.lab("w"); self.p(f"s_cmp_lg_u32 {sW}, {w}\ns_cbranch_scc1 {L}"); return L
    def barrier(self): self.p("s_barrier")
    def dual(self, text):
        p = self.p; S, E = p.lab("slow"), p.lab("back")
        p(f"s_cmp_eq_u32 {sFAST}, 0"); p.raw(f"s_cbranch_scc1 {S}")
        n = len(p.out); h = p(text); body = p.out[n:]; p.raw(f"{E}:")
        self.tail += [f"{S}:"] + [l + " sc1" if l.startswith("buffer_store") else l for l in body] + [f"s_branch {E}"]
        return h
    def setflag(self, soff, tmp, local=False, off=0):
        t = f"s_mov_b64 exec, 1\nv_mov_b32 v{tmp}, {sN}\nbuffer_store_dword v{tmp}, off, {WS}, {soff} offset:{off}"
        if local: self.dual(t + "\ns_mov_b64 exec, -1")
        else: self.p(t + " sc1\ns_mov_b64 exec, -1")
    def poll(self, vaddr, soff, tmp, wide=False, off=0):
        p = self.p; L = p.lab("poll"); E = p.lab("polle")
        p.waitall(lg=False)
        p(f"s_mov_b32 {sPC}, 0\n{L}:")
        if wide: p(f"buffer_load_dwordx4 {vr(tmp,4)}, v{vaddr}, {WS}, {soff} offen offset:{off} sc1")
        else: p(f"buffer_load_dword v{tmp}, v{vaddr}, {WS}, {soff} offen offset:{off} sc1")
        p(f"s_add_u32 {sPC}, {sPC}, 1\ns_waitcnt vmcnt(0)")
        if wide:
            for i in range(4): p(f"v_xor_b32 v{tmp+i}, {sN}, v{tmp+i}")
            p(f"v_or3_b32 v{tmp}, v{tmp}, v{tmp+1}, v{tmp+2}\nv_or_b32 v{tmp}, v{tmp}, v{tmp+3}\nv_cmp_ne_u32 vcc, 0, v{tmp}")
        else: p(f"v_cmp_ne_u32 vcc, {sN}, v{tmp}")
        p(f"s_cmp_gt_u32 {sPC}, {SPIN}\ns_cbranch_scc1 {E}\ns_cbranch_vccnz {L}\n{E}:")
    def rowhop(self, kind, tmp, between=None):
        p = self.p
        p.waitall(); self.barrier()
        L = self.onwave(0)
        p(f"s_lshl_b32 {sT5}, {sHG}, 2\ns_add_u32 {sT5}, {sT5}, {sFR}"); self.setflag(sT5, tmp, True, 32 * kind); p(f"{L}:")
        if between: between()
        L = self.onwave(0)
        p(f"v_and_b32 v{tmp}, 7, v1\nv_lshlrev_b32 v{tmp}, 2, v{tmp}")
        self.poll(tmp, sFR, tmp + 1, off=32 * kind); p(f"{L}:")
        self.barrier()
    def lds_signal(self, word, t, val=1):
        self.p(f"s_mov_b64 exec, 1\nv_mov_b32 v{t}, {LM_SY + 4*word}\nv_mov_b32 v{t+1}, {val}\nds_add_u32 v{t}, v{t+1}\ns_mov_b64 exec, -1")
    def lds_wait(self, word, val, t):
        p = self.p; L = p.lab("lw"); E = p.lab("lwe")
        p.waitall(vm=False)
        p(f"v_mov_b32 v{t}, {LM_SY + 4*word}\ns_mov_b32 {sPC}, 0\n{L}:\nds_read_b32 v{t+1}, v{t}\ns_add_u32 {sPC}, {sPC}, 1\ns_waitcnt lgkmcnt(0)")
        p(f"v_readfirstlane_b32 {sT5}, v{t+1}\ns_cmp_gt_u32 {sPC}, {SPIN*20}\ns_cbranch_scc1 {E}\ns_cmp_lt_u32 {sT5}, {val}\ns_cbranch_scc1 {L}\n{E}:")
    def onehot(self, dst, idx, val_lo, val_hi, t):
        p = self.p
        p(f"v_and_b32 v{t}, 1, v{idx}\nv_cmp_eq_u32 vcc, 1, v{t}\nv_mov_b32 v{t}, {val_lo}\nv_mov_b32 v{t+1}, {val_hi}\nv_cndmask_b32 v{t}, v{t}, v{t+1}, vcc\nv_ashrrev_i32 v{t+1}, 1, v{idx}")
        for jj in range(4): p(f"v_cmp_eq_u32 vcc, {jj}, v{t+1}\nv_cndmask_b32 v{dst+jj}, 0, v{t}, vcc")
    def unpack(self, dst, src, n):
        for d in range(n): self.p(f"v_lshlrev_b32 v{dst+2*d}, 16, v{src+d}\nv_and_b32 v{dst+2*d+1}, {sHI}, v{src+d}")
    def rowstats(self, X, T, which, local):
        p = self.p; S, Q = T, T + 2
        p("s_mov_b32 exec_lo, 0")
        for r in range(4): p(f"v_mov_b32 v{X+16+r}, 0")
        p("s_mov_b32 exec_lo, -1")
        p(f"v_pk_add_f32 {vr(S,2)}, {vr(X,2)}, {vr(X+2,2)}\nv_pk_mul_f32 {vr(Q,2)}, {vr(X,2)}, {vr(X,2)}")
        for i in range(2, 20, 2):
            if i > 2: p(f"v_pk_add_f32 {vr(S,2)}, {vr(S,2)}, {vr(X+i,2)}")
            p(f"v_pk_fma_f32 {vr(Q,2)}, {vr(X+i,2)}, {vr(X+i,2)}, {vr(Q,2)}")
        p(f"""v_add_f32 v{S}, v{S}, v{S+1}
        v_add_f32 v{Q}, v{Q}, v{Q+1}
        s_lshl_b32 {sT1}, {sRB}, 3
        s_add_u32 {sT1}, {sT1}, {sHG}
        v_permlane16_swap_b32 v{S}, v{Q}
        v_add_f32 v{S}, v{S}, v{Q}
        v_mov_b32 v{Q}, v{S}
        s_lshl_b32 {sT1}, {sT1}, 9
        s_add_u32 {sT1}, {sT1}, {O_ST[which]}
        v_permlane32_swap_b32 v{S}, v{Q}
        v_add_f32 v{S}, v{S}, v{Q}""")
        t = f"s_mov_b32 exec_hi, 0\nbuffer_store_dword v{S}, v{vSTA}, {WS}, {sT1} offen{'' if local else ' sc1'}\ns_mov_b32 exec_hi, -1"
        self.dual(t) if local else p(t)
    def tile_stats_load(self, which, d, t):
        p = self.p
        p(f"""v_and_b32 v{t}, 15, v1
        v_lshlrev_b32 v{t}, 3, v{t}
        v_lshrrev_b32 v{t+1}, 4, v1
        v_lshl_add_u32 v{t}, v{t+1}, 10, v{t}
        s_lshl_b32 {sT1}, {sRB}, 12
        s_lshl_b32 {sT2}, {sW}, 7
        s_add_u32 {sT1}, {sT1}, {sT2}
        s_add_u32 {sT1}, {sT1}, {O_ST[which]}""")
        return lambda: p(f"buffer_load_dwordx2 {vr(d,2)}, v{t}, {WS}, {sT1} offen sc1\nbuffer_load_dwordx2 {vr(d+2,2)}, v{t}, {WS}, {sT1} offen offset:512 sc1")
    def tile_stats_finish(self, d, R):
        self.p(f"""v_pk_add_f32 {vr(d,2)}, {vr(d,2)}, {vr(d+2,2)}
        s_mov_b32 {sT2}, {INV576}
        v_permlane16_swap_b32 v{d}, v{d+1}
        v_add_f32 v{d}, v{d}, v{d+1}
        v_mov_b32 v{d+1}, v{d}
        v_permlane32_swap_b32 v{d}, v{d+1}
        v_add_f32 v{d}, v{d}, v{d+1}
        v_mul_f32 v{d}, {INV576}, v{d}
        v_mov_b32 v{d+1}, v{d}
        v_permlane16_swap_b32 v{d}, v{d+1}
        v_fma_f32 v{d+1}, -v{d}, v{d}, v{d+1}
        v_max_f32 v{d+1}, 0, v{d+1}
        v_add_f32 v{d+1}, {EPS}, v{d+1}
        v_rsq_f32 v{R}, v{d+1}
        v_mul_f32 v{R+1}, -v{d}, v{R}""")
    def norm_tile(self, Tt, X, R):
        for i in range(0, 20, 2): self.p(f"v_pk_fma_f32 {vr(Tt+i,2)}, {vr(X+i,2)}, {vr(R,2)}, {vr(R,2)} op_sel:[0,0,1] op_sel_hi:[1,0,1]")
    def publish_z(self, L, X, Tt, Y, tmp):
        p = self.p
        p(f"s_mul_i32 {sT0}, {sHG}, 4608\ns_add_u32 {sT0}, {sT0}, {sZ}\ns_add_u32 {sT2}, {sT0}, 4096")
        for i in range(0, 20, 2): p(f"v_pk_fma_f32 {vr(X+i,2)}, {vr(Tt+i,2)}, {vr(Y+i,2)}, {vr(X+i,2)}")
        for d in range(10): p(f"v_cvt_pk_bf16_f32 v{RES+d}, v{X+2*d}, v{X+2*d+1}")
        self.dual(f"""buffer_store_dwordx4 {vr(RES,4)}, v{vXT}, {WS}, {sT0} offen
        buffer_store_dwordx4 {vr(RES+4,4)}, v{vXT}, {WS}, {sT0} offen offset:2048
        s_mov_b32 exec_hi, 0
        buffer_store_dwordx2 {vr(RES+8,2)}, v15, {WS}, {sT2} offen
        s_mov_b32 exec_hi, -1""")
        self.rowstats(X, tmp, 1, True)
        self.stamp("zst")
        self.rowhop(3 * L, tmp)
        self.stamp("zseen")

    def prologue(self):
        p = self.p
        p(f"""s_cmp_ge_u32 s2, 256
        s_cbranch_scc1 L_end
        s_load_dwordx16 s[8:23], s[0:1], 0
        s_load_dwordx8 s[24:31], s[0:1], 64
        s_load_dwordx2 s[32:33], s[0:1], 96
        v_and_b32 v1, 63, v0
        v_lshrrev_b32 v2, 6, v0
        s_and_b32 {sX}, s2, 7
        v_readfirstlane_b32 {sW}, v2
        s_lshr_b32 {sJ}, s2, 3
        s_and_b32 {sHG}, {sJ}, 7
        s_lshr_b32 {sI4}, {sJ}, 3
        s_lshl_b32 {sRB}, {sX}, 2
        s_add_u32 {sRB}, {sRB}, {sI4}""")
        for i in range(3):
            p(f"""v_add_u32 v5, {256*i}, v0
            v_mul_u32_u24 v6, 7282, v5
            v_lshrrev_b32 v6, 16, v6
            v_mul_u32_u24 v7, 9, v6
            v_sub_u32 v7, v5, v7
            v_mul_u32_u24 v6, 1152, v6
            v_lshl_add_u32 v{2+i}, v7, 4, v6""")
        p(f"""s_mul_i32 {sT0}, {sJ}, {64*1152}
        s_mul_i32 {sT1}, {sX}, 144
        s_add_u32 {sT0}, {sT0}, {sT1}
        s_sub_u32 {sT2}, {sT0}, {4*1152}
        v_add_u32 v6, {sT2}, v2
        v_add_u32 v7, {sT2}, v3
        v_add_u32 v8, {sT2}, v4
        s_lshl_b32 {sW10}, {sW}, 10
        s_waitcnt lgkmcnt(0)
        s_mov_b32 s4, s32
        s_mov_b32 s5, s33
        s_mov_b32 s6, {WS_USED}
        s_mov_b32 s7, 0x20000""")
        self.srd(SA, "k", TEN); self.srd(SB, "v", TEN)

    def phase0(self):
        p = self.p; o = self.opt
        self.stamp("start")
        for i in range(2):
            p(f"s_add_u32 m0, {sW10}, {L_K + 4096*i}\nbuffer_load_dwordx4 v{6+i}, {SA}, 0 offen lds")
            p(f"s_add_u32 m0, {sW10}, {L_V + 4096*i}\nbuffer_load_dwordx4 v{2+i}, {SB}, {sT0} offen lds")
        L1 = p.lab("t3")
        p(f"s_cmp_ge_u32 {sW}, 2\ns_cbranch_scc1 {L1}")
        p(f"s_add_u32 m0, {sW10}, {L_K + 8192}\nbuffer_load_dwordx4 v8, {SA}, 0 offen lds")
        p(f"s_cmp_ge_u32 {sW}, 1\ns_cbranch_scc1 {L1}")
        p(f"s_mov_b32 m0, {L_V + 8192}\nbuffer_load_dwordx4 v4, {SB}, {sT0} offen lds")
        p(f"{L1}:")
        self.srd(SD, "shift", 4608)
        p(f"""s_mov_b32 {sHI}, 0xffff0000
        s_mov_b32 s78, 0x00ffffff
        s_mov_b32 s79, 0x00ffffff
        s_mov_b32 {sONE}, 0x3f80
        s_mov_b32 {sONEH}, 0x3f800000
        s_mov_b32 {sONE2}, 0x3f803f80
        s_cmp_eq_u32 {sW}, 2
        s_cselect_b64 s[80:81], -1, 0
        v_and_b32 v40, 15, v1
        v_lshrrev_b32 v41, 4, v1
        v_and_b32 v42, 3, v1
        v_bfe_u32 v43, v1, 2, 2
        v_lshl_add_u32 v43, v41, 3, v43
        s_mul_i32 {sT3}, {sX}, 72
        s_lshl_b32 {sT4}, {sJ}, 6""")
        for s in range(3):
            p(f"""s_cmp_eq_u32 {sW}, 2
            s_cselect_b32 {sT1}, {32*s}, {sW10}
            s_cselect_b32 {sT2}, 48, {16*s}""")
            p(f"s_cbranch_scc0 Lu{s}\ns_lshl_b32 {sT1}, {sT1}, 5\nLu{s}:\ns_lshr_b32 {sT1}, {sT1}, 5")
            if s < 2:
                p(f"""v_add_u32 v44, {sT1}, v43
                v_lshl_add_u32 v45, v42, 2, {sT2}
                v_lshl_add_u32 v46, v41, 3, {sT1}
                v_add_u32 v47, {sT2}, v40""")
            else:
                p(f"""v_lshrrev_b32 v5, 1, v42
                v_lshlrev_b32 v5, 5, v5
                v_mov_b32 v6, {sT1}
                v_cndmask_b32 v5, v6, v5, s[80:81]
                v_add_u32 v44, v5, v43
                v_and_b32 v5, 1, v42
                v_lshl_add_u32 v5, v5, 2, 64
                v_lshl_add_u32 v45, v42, 2, 32
                v_cndmask_b32 v45, v45, v5, s[80:81]
                v_lshrrev_b32 v5, 3, v40
                v_lshlrev_b32 v5, 5, v5
                v_cndmask_b32 v5, v6, v5, s[80:81]
                v_lshl_add_u32 v46, v41, 3, v5
                v_and_b32 v5, 7, v40
                v_add_u32 v5, 64, v5
                v_add_u32 v47, 32, v40
                v_cndmask_b32 v47, v47, v5, s[80:81]""")
            p(f"""v_add_u32 v47, {sT3}, v47
            v_lshlrev_b32 v5, 3, v47""")
            hcrit = p(f"buffer_load_dwordx2 {vr(26+2*s,2)}, v5, {SD}, 0 offen")
            p(f"""v_mul_u32_u24 v44, 144, v44
            v_lshl_add_u32 v{32+s}, v45, 1, v44
            v_add_u32 v46, {sT4}, v46
            v_sub_u32 v46, 2040, v46
            v_lshlrev_b32 v46, 1, v46
            v_lshl_add_u32 v{36+s}, v47, 12, v46""")
        hcrit = p(f"buffer_load_dword v9, off, {WS}, 0 sc1")
        p(f"v_lshlrev_b32 v6, 2, v1\nv_add_u32 v6, {LM_SY}, v6\nv_mov_b32 v7, 0\nds_write_b32 v6, v7")
        p.waitall(vm=False)
        self.barrier()
        self.stamp("crit")
        self.srd(SA, "ssm", TEN); self.srd(SB, "D", 1152)
        p(f"""s_lshl_b32 {sT1}, {sW}, 5
        s_add_u32 {sT1}, {sT1}, {sJ}
        s_add_u32 {sCH}, {sT3}, {sT1}
        s_mul_i32 {sLC}, {sW}, {CONV_STRIDE}
        s_add_u32 {sLC}, {sLC}, {L_W}
        v_lshlrev_b32 v{v16L}, 4, v1
        s_cmp_ge_u32 {sT1}, 72
        s_cselect_b32 {sCONV}, 0, 1""")
        LW3, LNC, LJ = p.lab("w3"), p.lab("nc"), p.lab("j")
        p(f"s_cbranch_scc1 {LNC}")
        p(f"s_lshl_b32 {sT1}, {sCH}, 12\ns_lshl_b32 {sT2}, {sCH}, 1\ns_add_u32 m0, {sLC}, 32")
        for i in range(4): p(f"buffer_load_dwordx4 v{v16L}, {SA}, {sT1} offen offset:{1024*i} lds")
        p(f"buffer_load_ushort v45, off, {SB}, {sT2}")
        p.wait(hcrit); p(f"s_branch {LJ}\n{LNC}:\ns_cmp_eq_u32 {sW}, 3\ns_cbranch_scc1 {LW3}")
        p.wait(hcrit); p(f"s_branch {LJ}\n{LW3}:")
        self.srd(SC, "wqkv", 576 * 3456); self.srd(SD, "wphi", 32 * 648); self.srd(SE, "wo", 576 * 1152)
        p(f"s_mul_i32 {sT1}, {sHG}, 2592\ns_mov_b32 m0, {L_PHI}")
        for i in range(3): p(f"buffer_load_dwordx4 v{v16L}, {SD}, {sT1} offen offset:{1024*i} lds")
        p(f"s_mul_i32 {sT1}, {sHG}, 144\ns_add_u32 {sT2}, {sT1}, 1152\ns_add_u32 {sT3}, {sT1}, 2304\nv_mov_b32 v47, 0x40000000")
        for i in range(4):
            p(f"""v_add_u32 v5, {64*i}, v1
            v_mul_u32_u24 v6, 7282, v5
            v_lshrrev_b32 v6, 16, v6
            v_mul_u32_u24 v7, 9, v6
            v_sub_u32 v5, v5, v7
            v_and_b32 v7, 7, v6
            v_lshrrev_b32 v6, 3, v6
            v_lshl_add_u32 v6, v6, 5, {sRB}
            v_cmp_gt_u32 vcc, 72, v6
            v_mul_u32_u24 v8, 57, v6
            s_mov_b64 s[86:87], vcc
            v_lshrrev_b32 v8, 9, v8
            v_mul_u32_u24 v8, 9, v8
            v_sub_u32 v6, v6, v8
            v_cmp_eq_u32 vcc, 8, v6
            v_lshlrev_b32 v8, 3, v8
            v_lshrrev_b32 v40, 2, v6
            v_and_b32 v41, 3, v6
            v_lshlrev_b32 v41, 2, v41
            v_lshl_add_u32 v40, v40, 5, v41
            v_lshrrev_b32 v41, 2, v7
            v_lshl_add_u32 v40, v41, 4, v40
            v_and_b32 v41, 3, v7
            v_add_u32 v40, v40, v41
            v_add_u32 v41, 64, v7
            v_cndmask_b32 v40, v40, v41, vcc
            v_add_u32 v40, v40, v8
            v_mul_u32_u24 v40, 3456, v40
            v_lshl_add_u32 v40, v5, 4, v40
            v_cndmask_b32 v40, v47, v40, s[86:87]
            s_mov_b32 m0, {L_WR + 1024*i}
            buffer_load_dwordx4 v40, {SC}, {sT1} offen lds
            s_mov_b32 m0, {L_WR + 4096 + 1024*i}
            buffer_load_dwordx4 v40, {SC}, {sT2} offen lds
            s_mov_b32 m0, {L_WR + 8192 + 1024*i}
            buffer_load_dwordx4 v40, {SC}, {sT3} offen lds
            v_mad_u32_u24 v41, v6, 9, v7
            v_mad_u32_u24 v42, v7, 9, 8
            v_cndmask_b32 v41, v41, v42, vcc
            v_add_u32 v41, v41, v8
            v_mul_u32_u24 v41, 1152, v41
            v_lshl_add_u32 v41, v5, 4, v41
            v_cndmask_b32 v41, v47, v41, s[86:87]
            s_mov_b32 m0, {L_WOT + 1024*i}""")
            hf = p(f"buffer_load_dwordx4 v41, {SE}, {sT1} offen lds")
        p.wait(hcrit); p(f"{LJ}:")
        p("v_add_u32 v9, 1, v9"); self.stamp("landed"); self.barrier()
        p(f"v_readfirstlane_b32 {sN}, v9")
        self.stamp("bar1")
        LU3, LUE = p.lab("u3"), p.lab("ue")
        p(f"s_cmp_eq_u32 {sW}, 3\ns_cbranch_scc1 {LU3}")
        hs = []
        for s in range(3):
            b = 48 + 10 * s
            h = [p(f"ds_read_b64_tr_b16 {vr(b+2*i,2)}, v{32+s} offset:{L_K + 576*i}") for i in range(3)]
            h += [p(f"ds_read_b64_tr_b16 {vr(b+6+2*i,2)}, v{32+s} offset:{L_V + 576*i}") for i in range(2)]
            hs.append(h)
        lo = lambda d, s: p(f"v_lshlrev_b32 v{d}, 16, v{s}")
        hi = lambda d, s: p(f"v_and_b32 v{d}, {sHI}, v{s}")
        p(f"s_mov_b32 {sT0}, {O_U}")
        for s in range(3):
            b = 48 + 10 * s; P, W, A, V, O = 80, 94, 98, 106, 114 + 4 * s
            lo(W, 26+2*s); hi(W+1, 26+2*s); lo(W+2, 27+2*s); hi(W+3, 27+2*s)
            p.wait(*hs[s])
            hi(P+0, b); hi(P+1, b+2); lo(P+2, b+1); lo(P+3, b+3); hi(P+4, b+1); hi(P+5, b+3)
            lo(P+6, b+2); lo(P+7, b+4); hi(P+8, b+2); hi(P+9, b+4); lo(P+10, b+3); lo(P+11, b+5); hi(P+12, b+3); hi(P+13, b+5)
            Pp = lambda x: vr(P + 2 * (x + 3), 2)
            for q in range(4): p(f"v_pk_mul_f32 {vr(A+2*q,2)}, {Pp(q)}, {vr(W,2)} op_sel_hi:[1,0]")
            for q in range(4): p(f"v_pk_fma_f32 {vr(A+2*q,2)}, {Pp(q-1)}, {vr(W,2)}, {vr(A+2*q,2)} op_sel:[0,1,0]")
            lo(V+0, b+6); lo(V+1, b+8); hi(V+2, b+6); hi(V+3, b+8); lo(V+4, b+7); lo(V+5, b+9); hi(V+6, b+7); hi(V+7, b+9)
            for q in range(4): p(f"v_pk_fma_f32 {vr(A+2*q,2)}, {Pp(q-2)}, {vr(W+2,2)}, {vr(A+2*q,2)} op_sel_hi:[1,0,1]")
            for q in range(4): p(f"v_pk_fma_f32 {vr(A+2*q,2)}, {Pp(q-3)}, {vr(W+2,2)}, {vr(A+2*q,2)} op_sel:[0,1,0]")
            for q in range(4): p(f"v_pk_mul_f32 {vr(A+2*q,2)}, {vr(A+2*q,2)}, {vr(V+2*q,2)}")
            p(f"""v_cvt_pk_bf16_f32 v{O}, v{A+7}, v{A+5}
            v_cvt_pk_bf16_f32 v{O+1}, v{A+3}, v{A+1}
            v_cvt_pk_bf16_f32 v{O+2}, v{A+6}, v{A+4}
            v_cvt_pk_bf16_f32 v{O+3}, v{A+2}, v{A}
            buffer_store_dwordx4 {vr(O,4)}, v{36+s}, {WS}, {sT0} offen sc1""")
        self.stamp("ust")
        self.fold_prep()
        p.waitall(); p(f"s_branch {LUE}\n{LU3}:")
        self.srd(SA, "q", TEN)
        p(f"s_mul_i32 {sT1}, {sRB}, {64*1152}\ns_mul_i32 {sT2}, {sHG}, 144\ns_add_u32 {sT1}, {sT1}, {sT2}")
        for i in range(9):
            p(f"""v_add_u32 v5, {64*i}, v1
            v_mul_u32_u24 v6, 7282, v5
            v_lshrrev_b32 v6, 16, v6
            v_mul_u32_u24 v6, {1152 - 144}, v6
            v_lshl_add_u32 v5, v5, 4, v6
            s_mov_b32 m0, {L_Q + 1024*i}
            buffer_load_dwordx4 v5, {SA}, {sT1} offen lds""")
        self.fold_prep()
        p.wait(hf); p(f"{LUE}:")
        self.barrier()
        L5 = self.onwave(0)
        p(f"""s_getreg_b32 {sT4}, hwreg(HW_REG_XCC_ID, 0, 4)
        s_lshl_b32 {sT1}, {sN}, 4
        s_or_b32 {sT4}, {sT4}, {sT1}
        s_lshl_b32 {sT0}, {sX}, 7
        s_lshl_b32 {sT1}, {sJ}, 2
        s_add_u32 {sT0}, {sT0}, {sT1}
        s_add_u32 {sT0}, {sT0}, {O_FU}
        s_mov_b64 exec, 1
        v_mov_b32 v5, {sT4}
        buffer_store_dword v5, off, {WS}, {sT0} sc1
        s_mov_b64 exec, -1
        {L5}:""")
        self.stamp("uflag")
        self.fold()
        self.tables()
        self.stamp("p0end")

    def fold_prep(self):
        p = self.p
        p(f"""v_and_b32 v5, 15, v1
        s_lshl_b32 {sT1}, {sW}, 4
        v_add_u32 v7, {sT1}, v5
        v_lshrrev_b32 v5, 4, v1
        v_lshlrev_b32 v{vSTA}, 3, v7
        v_lshl_add_u32 v{vSTA}, v5, 2, v{vSTA}
        v_and_b32 v7, 31, v7
        v_lshlrev_b32 v7, 4, v7
        s_lshr_b32 {sT1}, {sW}, 1
        s_mul_i32 {sT1}, {sT1}, {SUB}
        v_add_u32 v7, {sT1}, v7
        v_lshl_add_u32 v{vXT}, v5, 9, v7
        s_lshl_b32 {sHEAD}, {sHG}, 2
        s_add_u32 {sHEAD}, {sHEAD}, {sW}
        s_mul_i32 {sWP}, {sHEAD}, 73728
        s_add_u32 {sWP}, {sWP}, {O_WP}
        s_mul_i32 {sZ}, {sRB}, 73728
        s_add_u32 {sZ}, {sZ}, {self.OZ}
        s_lshl_b32 {sFR}, {sRB}, 8
        s_add_u32 {sFR}, {sFR}, {O_FR}
        s_lshl_b32 {sG4}, {sX}, 3
        s_add_u32 {sG4}, {sG4}, {sHG}
        s_lshl_b32 {sG4}, {sG4}, 2
        v_mov_b32 v160, 0x40000000
        v_cndmask_b32 v15, v160, v{v16L}, {M48}
        v_bfe_u32 v5, v1, 3, 2
        v_and_b32 v6, 3, v1
        v_lshl_add_u32 v190, v5, 2, v6
        v_bfe_u32 v191, v1, 2, 1
        v_mul_u32_u24 v5, 9, v191
        v_add_u32 v5, v5, v190
        s_mul_i32 {sT0}, {sW}, 648
        s_add_u32 {sT0}, {sT0}, {L_PHI}
        v_lshl_add_u32 v161, v5, 1, {sT0}
        v_lshrrev_b32 v7, 5, v1
        v_mul_u32_u24 v8, 288, v7
        v_add_u32 v162, v161, v8
        v_bfe_u32 v8, v1, 4, 1
        v_lshl_add_u32 v8, v8, 1, v191
        v_lshl_add_u32 v6, v8, 3, v6
        v_bfe_u32 v8, v1, 3, 1
        v_lshl_add_u32 v6, v8, 2, v6
        v_mul_u32_u24 v6, 144, v6
        s_mul_i32 {sT0}, {sW}, 36
        s_add_u32 {sT0}, {sT0}, {L_WR}
        v_add_u32 v163, {sT0}, v6
        v_lshl_add_u32 v164, v7, 4, v163
        v_lshl_add_u32 v8, v7, 5, {sRB}
        v_and_b32 v6, 31, v1
        v_lshlrev_b32 v6, 4, v6
        v_lshrrev_b32 v167, 1, v8
        v_lshl_add_u32 v6, v167, 11, v6
        v_and_b32 v8, 1, v8
        v_lshl_add_u32 v167, v8, 9, v6
        v_lshlrev_b32 v7, 3, v7
        v_sub_u32 v5, v5, v7
        v_mov_b32 v7, -64
        v_add_u32 v8, -9, v5
        v_cmp_gt_u32 vcc, 9, v190
        v_cndmask_b32 v8, v8, v7, vcc""")
        self.onehot(174, 8, sONE, sONEH, 168)
        p(f"""v_add_u32 v8, -2, v5
        v_add_u32 v6, -9, v190
        v_cmp_lt_u32 vcc, 1, v6
        v_cndmask_b32 v8, v8, v7, vcc""")
        self.onehot(178, 8, sONE, sONEH, 168)
        p(f"""v_add_u32 v8, -16, v8
        v_cmp_gt_u32 vcc, 32, v1
        v_cndmask_b32 v8, v7, v8, vcc""")
        self.onehot(182, 8, sONE, sONEH, 168)
        p("v_mov_b32 v188, v182\nv_mov_b32 v182, 0\nv_mov_b32 v187, 0\nv_mov_b32 v189, 0\nv_mov_b32 v207, 0\nv_add_u32 v165, 4096, v164\nv_add_u32 v166, 8192, v164")

    def fold(self):
        p = self.p
        hph = [p(f"ds_read_u16 v{32+e}, v162 offset:{36*e}") for e in range(8)] + [p(f"ds_read_u16 v{40+e}, v161 offset:{576+36*e}") for e in range(2)]
        for m in range(3):
            p(f"ds_read2_b32 {vr(192+4*m,2)}, v{164+m} offset0:0 offset1:1\nds_read2_b32 {vr(194+4*m,2)}, v{164+m} offset0:2 offset1:3")
        for m in range(3): hW = p(f"ds_read_b32 v{204+m}, v163 offset:{4096*m + 32}")
        p(f"""v_bfe_u32 v30, v1, 2, 2
        v_mul_u32_u24 v30, 144, v30
        s_mul_i32 {sT0}, {sW}, 1152
        s_add_u32 {sT0}, {sT0}, {L_WOT}
        v_add_u32 v30, {sT0}, v30
        v_and_b32 v31, 1, v1
        v_lshl_add_u32 v66, v31, 3, v30
        v_and_b32 v31, 3, v1
        v_lshl_add_u32 v30, v31, 3, v30
        v_lshrrev_b32 v31, 4, v1
        v_lshl_add_u32 v30, v31, 5, v30""")
        p.wait(*hph)
        p("""ds_read_b64_tr_b16 v[68:69], v30
        ds_read_b64_tr_b16 v[70:71], v30 offset:576
        ds_read_b64_tr_b16 v[72:73], v66 offset:128""")
        hwt = p("ds_read_b64_tr_b16 v[74:75], v66 offset:704")
        p("v_cmp_gt_u32 vcc, 9, v190")
        for jj in range(4): p(f"v_lshl_or_b32 v{170+jj}, v{33+2*jj}, 16, v{32+2*jj}")
        p("v_lshl_or_b32 v183, v41, 16, v40")
        for jj in range(4): p(f"v_cndmask_b32 v{170+jj}, 0, v{170+jj}, vcc")
        p("v_cndmask_b32 v183, 0, v183, vcc\ns_mov_b32 exec_lo, 0\nv_mov_b32 v183, 0\ns_mov_b32 exec_lo, -1\nv_mov_b32 v186, v183")
        p.wait(hW)
        p(f"""{M32} v[128:143], v[196:199], v[170:173], 0
        {M32} v[144:159], v[192:195], v[170:173], 0
        {M32} v[128:143], v[200:203], v[174:177], v[128:143]
        {M32} v[144:159], v[200:203], v[178:181], v[144:159]
        {M32} v[128:143], v[204:207], v[182:185], v[128:143]
        {M32} v[144:159], v[204:207], v[186:189], v[144:159]""")
        Lw = p.lab("nwo")
        p(f"""s_lshl_b32 {sT2}, {sW}, 5
        s_add_u32 {sT2}, {sT2}, {sRB}
        s_cmp_ge_u32 {sT2}, 72
        s_cbranch_scc1 {Lw}
        v_and_b32 v66, 15, v1
        v_lshlrev_b32 v66, 4, v66
        v_lshl_add_u32 v66, v31, 10, v66
        s_lshr_b32 {sT0}, {sT2}, 2
        s_mul_i32 {sT0}, {sT0}, 4608
        s_mul_i32 {sT1}, {sHG}, 82944
        s_add_u32 {sT0}, {sT0}, {sT1}
        s_add_u32 {sT0}, {sT0}, {O_WO}
        s_and_b32 {sT1}, {sT2}, 3
        s_lshl_b32 {sT1}, {sT1}, 7
        s_add_u32 {sT2}, {sT0}, {sT1}
        s_add_u32 {sT2}, {sT2}, 4096
        s_lshl_b32 {sT1}, {sT1}, 1
        s_add_u32 {sT0}, {sT0}, {sT1}""")
        p.wait(hwt)
        p(f"""buffer_store_dwordx4 v[68:71], v66, {WS}, {sT0} offen sc1
        s_mov_b64 exec, 0xff
        buffer_store_dwordx4 v[72:75], v66, {WS}, {sT2} offen sc1
        s_mov_b64 exec, -1
        {Lw}:""")
        p.waitall(vm=False)
        p(f"""s_lshl_b32 {sT1}, {sHEAD}, 5
        s_add_u32 {sT1}, {sT1}, {sRB}
        s_lshl_b32 {sT1}, {sT1}, 8
        s_add_u32 {sT1}, {sT1}, {O_CS}
        s_add_u32 {sT2}, {sWP}, 65536
        v_mov_b32 v64, 0
        v_mov_b32 v65, 0
        v_lshlrev_b32 v26, 2, v1""")
        for d in range(8): p(f"v_cvt_pk_bf16_f32 v{48+d}, v{128+2*d}, v{129+2*d}")
        for d in range(8): p(f"v_cvt_pk_bf16_f32 v{56+d}, v{144+2*d}, v{145+2*d}")
        Lw = p.lab("n3")
        p(f"""buffer_store_dwordx4 v[48:51], v167, {WS}, {sWP} offen sc1
        buffer_store_dwordx4 v[56:59], v167, {WS}, {sWP} offen offset:1024 sc1
        s_cmp_ge_u32 {sRB}, 8
        s_cbranch_scc1 {Lw}
        s_mov_b32 exec_hi, 0
        buffer_store_dwordx4 v[52:55], v167, {WS}, {sT2} offen sc1
        buffer_store_dwordx4 v[60:63], v167, {WS}, {sT2} offen offset:1024 sc1
        s_mov_b32 exec_hi, -1
        {Lw}:""")
        for d in range(8):
            if d == 4: p("s_mov_b32 exec_hi, 0")
            p(f"v_dot2c_f32_bf16 v64, {sONE2}, v{48+d}\nv_dot2c_f32_bf16 v65, {sONE2}, v{56+d}")
        p("s_mov_b32 exec_hi, -1")
        p(f"v_permlane32_swap_b32 v64, v65\nv_add_f32 v64, v64, v65\nbuffer_store_dword v64, v26, {WS}, {sT1} offen sc1")

    def tables(self):
        p = self.p
        L7 = p.lab("noconv2")
        p(f"s_cmp_eq_u32 {sCONV}, 0\ns_cbranch_scc1 {L7}\nv_add_u32 v27, {sLC}, v{v16L}")
        h = []
        for i in range(4):
            p(f"ds_read_b128 {vr(224+6*i,4)}, v27 offset:{32 + 1024*i}")
            h.append(p(f"ds_read_b64 {vr(228+6*i,2)}, v27 offset:{48 + 1024*i}"))
        p(f"""v_mov_b32 v32, 0
        v_mov_b32 v33, 0
        v_mov_b32 v34, 0
        v_mov_b32 v35, 0
        v_lshlrev_b32 v26, 3, v1
        v_add_u32 v26, {sLC}, v26
        ds_write_b64 v26, v[32:33] offset:{L_CU + 4096}""")
        for i in range(4):
            D = 224 + 6 * i; F = 64 + 12 * (i & 1)
            p.wait(h[i])
            if i == 0: p("v_readfirstlane_b32 s86, v224\nv_readfirstlane_b32 s87, v225")
            for q in range(4): p(f"v_alignbit_b32 v{F+q}, v{D+q+1}, v{D+q}, 16")
            p(f"ds_write_b128 v27, {vr(F,4)} offset:{CP + 32 + 1024*i}")
            for q in range(4): p(f"v_mov_b32 v{F+4+q}, v{D+q+1}")
            p(f"ds_write_b128 v27, {vr(F+4,4)} offset:{2*CP + 32 + 1024*i}")
            for q in range(3): p(f"v_mov_b32 v{F+8+q}, v{F+q+1}")
            p(f"v_alignbit_b32 v{F+11}, v{D+5}, v{D+4}, 16")
            p(f"ds_write_b128 v27, {vr(F+8,4)} offset:{3*CP + 32 + 1024*i}")
        p(f"""v_lshlrev_b32 v28, 4, v1
        v_sub_u32 v28, 48, v28
        v_lshlrev_b64 v[36:37], v28, s[86:87]
        v_lshlrev_b64 v[36:37], 16, v[36:37]
        v_mul_u32_u24 v26, {CP}, v1
        v_add_u32 v26, {sLC}, v26
        s_mov_b64 exec, 15
        ds_write_b128 v26, v[32:35]
        ds_write_b128 v26, v[34:37] offset:16
        s_mov_b64 exec, -1
        v_and_b32 v26, 15, v1
        v_lshrrev_b32 v27, 4, v1
        v_lshlrev_b32 v28, 3, v27
        v_add_u32 v28, v28, v26
        v_sub_u32 v29, 15, v28
        v_lshlrev_b32 v44, 16, v45""")
        self.onehot(192, 29, "v45", "v44", 30)
        p(f"""v_add_u32 v28, 1, v26
        v_and_b32 v29, 3, v28
        v_mul_u32_u24 v29, {CP}, v29
        v_lshrrev_b32 v28, 2, v28
        v_lshl_add_u32 v29, v28, 3, v29
        v_lshl_add_u32 v29, v27, 4, v29
        v_add_u32 v196, {sLC}, v29
        v_lshlrev_b32 v28, 5, v26
        v_lshlrev_b32 v29, 4, v27
        v_sub_u32 v29, v29, v28
        s_add_u32 {sT0}, {sLC}, {L_CU + 4064 - 3584}
        v_add_u32 v197, {sT0}, v29
        v_and_b32 v28, 1, v27
        v_lshlrev_b32 v28, 2, v28
        v_lshrrev_b32 v29, 2, v26
        v_add_u32 v28, v28, v29
        v_mul_u32_u24 v28, 73728, v28
        v_and_b32 v29, 3, v26
        v_lshl_add_u32 v28, v29, 5, v28
        v_lshrrev_b32 v29, 1, v27
        v_lshl_add_u32 v198, v29, 4, v28""")
        p(f"{L7}:")

    def wp_loads(self):
        p = self.p; out = []
        for f in range(72):
            def g(f=f):
                if f % 4 == 0: p(f"s_add_u32 {sO}, {sWP}, {f*1024}")
                p(f"buffer_load_dwordx4 {wreg(f)}, v{v16L if f % 2 == 0 else 15}, {WS}, {sO} offen offset:{(f%4)*1024} sc1")
            out.append(g)
        return out
    def small_loads(self):
        p = self.p
        self.tile_stats_load(0, 64, 26)()
        p(f"s_lshl_b32 {sT0}, {sHEAD}, 13\ns_add_u32 {sT0}, {sT0}, {O_CS}\ns_add_u32 {sT1}, {sT0}, 4096")
        for i in range(8): p(f"buffer_load_dwordx4 {vr(32+4*i,4)}, v{v16L}, {WS}, {sT0 if i < 4 else sT1} offen offset:{(i%4)*1024} sc1")

    def conv(self):
        p = self.p; o = self.opt
        n1 = o.get("w_in_conv", 20)
        LE, LJ = p.lab("noconv3"), p.lab("convend")
        p(f"s_cmp_lt_u32 {sJ}, 8\ns_cselect_b32 {sNC}, 3, 2")
        p(f"s_cmp_eq_u32 {sCONV}, 0\ns_cbranch_scc1 {LE}")
        p.waitall(); self.lds_signal(0, 26)
        L8 = self.onwave(0); Lr, Le = p.lab("pu"), p.lab("pue")
        p(f"""v_and_b32 v26, 31, v1
        v_lshlrev_b32 v26, 2, v26
        s_lshl_b32 {sT0}, {sX}, 7
        s_add_u32 {sT0}, {sT0}, {O_FU}
        s_mov_b32 {sPC}, 0
        {Lr}:
        buffer_load_dword v27, v26, {WS}, {sT0} offen sc1
        s_add_u32 {sPC}, {sPC}, 1
        s_waitcnt vmcnt(0)
        v_xor_b32 v27, {sT4}, v27
        v_cmp_lt_u32 vcc, 15, v27
        s_cmp_gt_u32 {sPC}, {SPIN}
        s_cbranch_scc1 {Le}
        s_cbranch_vccnz {Lr}
        {Le}:
        v_cmp_ne_u32 vcc, 0, v27
        s_nop 4
        s_cmp_eq_u64 vcc, 0
        s_cselect_b32 {sT2}, {1 if o.get('slow') else 2}, 1""")
        self.lds_signal(1, 26, sT2); p(f"{L8}:")
        self.lds_wait(1, 1, 26)
        p(f"s_cmp_lt_u32 {sJ}, 8\ns_cselect_b64 vcc, -1, 0")
        self.stamp("useen")
        p(f"s_lshl_b32 {sT1}, {sCH}, 12\ns_add_u32 {sT1}, {sT1}, {O_U}\ns_add_u32 m0, {sLC}, {L_CU}")
        hu = [p(f"buffer_load_dwordx4 v{v16L}, {WS}, {sT1} offen offset:{1024*i} sc1 lds") for i in range(4)]
        ACC, AB, BB = 32, 64, 128
        hA = {}; hB = {}
        def rdA(m, t):
            b = AB + 32 * (m & 1) + 4 * t
            p(f"ds_read_b64 {vr(b,2)}, v196 offset:{512*t + 64*m}")
            hA[m, t] = p(f"ds_read_b64 {vr(b+2,2)}, v196 offset:{512*t + 64*m + 8}")
        def rdB(m, be):
            hB[m, be] = p(f"ds_read_b128 {vr(BB + 32*(m&1) + 4*be, 4)}, v197 offset:{512*(7-be) + 64*m}")
        for t in range(8): rdA(0, t)
        p.wait(*hu)
        self.stamp("udma")
        for be in range(8): rdB(0, be)
        wl = self.wp_loads()
        def guarded(g):
            def f():
                L = p.lab("g"); p(f"s_cbranch_vccz {L}"); g(); p(f"{L}:")
            return f
        bg = [guarded(g) for g in wl[:n1]]
        m0 = o.get("w_step", 6)
        for m in range(8):
            main = []
            if m == 0:
                for b in range(8):
                    def g(b=b):
                        p.wait(hB[0, b]); p(f"{M16} {vr(ACC+4*b,4)}, v[192:195], {vr(BB+4*b,4)}, 0")
                    main.append(g)
            for (t, be) in sorted([(t, be) for t in range(8) for be in range(8 - t)], key=lambda x: (max(x), x[0] + x[1])):
                def g(t=t, be=be):
                    p.wait(hA[m, t], hB[m, be])
                    d = vr(ACC + 4 * (t + be), 4)
                    p(f"{M16} {d}, {vr(AB+32*(m&1)+4*t,4)}, {vr(BB+32*(m&1)+4*be,4)}, {d}")
                main.append(g)
            fill = []
            if m < 7:
                for t in range(8):
                    fill.append((8, lambda t=t: rdB(m + 1, t))); fill.append((8, lambda t=t: rdA(m + 1, t)))
            if m >= m0 and n1:
                if m == m0:
                    Lg = p.lab("g"); p(f"s_cbranch_vccz {Lg}"); self.lds_wait(2, 1, 26); p(f"{Lg}:")
                k = min(-(-len(bg) // (8 - m)), len(bg))
                extra, bg = bg[:k], bg[k:]
                fill += [(16, g) for g in extra]
            mix(p, main, fill, 8)
            if m in (1, 3, 5): self.stamp(f"m{m}")
        p(f"s_lshl_b32 {sT1}, {sCH}, 7\ns_add_u32 {sT1}, {sT1}, {O_Y}")
        for bp in range(4):
            for d in range(4): p(f"v_cvt_pk_bf16_f32 v{64+4*bp+d}, v{ACC+8*bp+2*d}, v{ACC+8*bp+2*d+1}")
        for bp in range(4):
            O = 64 + 4 * bp
            p(f"v_permlane16_swap_b32 v{O}, v{O+2}\nv_permlane16_swap_b32 v{O+1}, v{O+3}")
            hy = p(f"buffer_store_dwordx4 {vr(O,4)}, v198, {WS}, {sT1} offen sc1")
            p(f"s_add_u32 {sT1}, {sT1}, {8*73728}")
        self.stamp("convE")
        self.lds_wait(2, 1, 26)
        self.small_loads()
        npre = o.get("w_pre_ack", 8)
        for g in wl[n1:n1 + npre]: g()
        p.wait(hy)
        p(f"s_mov_b64 exec, 1\nv_mov_b32 v26, {LM_SY + 12}\nv_mov_b32 v27, 1")
        h = p("ds_add_rtn_u32 v27, v26, v27")
        p("s_mov_b64 exec, -1"); p.wait(h)
        Lf = p.lab("nf")
        p(f"v_readfirstlane_b32 {sT0}, v27\ns_add_u32 {sT0}, {sT0}, 1\ns_cmp_lg_u32 {sT0}, {sNC}\ns_cbranch_scc1 {Lf}")
        p(f"s_lshl_b32 {sT0}, {sRB}, 7\ns_lshl_b32 {sT1}, {sHG}, 2\ns_add_u32 {sT0}, {sT0}, {sT1}\ns_add_u32 {sT0}, {sT0}, {O_FY}")
        self.setflag(sT0, 26); p(f"{Lf}:")
        self.stamp("yflag")
        for g in wl[n1 + npre:]: g()
        p(f"s_cbranch_vccnz {LJ}")
        for g in wl[:n1]: g()
        p(f"s_branch {LJ}")
        p(f"{LE}:")
        p.waitall(); self.lds_signal(0, 26)
        L = self.onwave(3)
        p(f"v_mul_u32_u24 v26, 144, v1\nv_mov_b32 v28, 0\nv_mov_b32 v29, 0")
        hq = [p(f"ds_read_b128 {vr(32+4*i,4)}, v26 offset:{L_Q + 16*i}") for i in range(9)]
        self.lds_wait(0, 4, 26)
        p(f"""s_lshl_b32 {sT0}, {sHG}, 7
        s_add_u32 {sT0}, {sT0}, {O_FW}
        s_lshl_b32 {sT1}, {sRB}, 2
        s_add_u32 {sT1}, {sT1}, {sT0}""")
        self.setflag(sT1, 26)
        for d in range(36): p(f"v_dot2c_f32_bf16 v28, {sONE2}, v{32+d}\nv_dot2c_f32_bf16 v29, v{32+d}, v{32+d}")
        p(f"""s_lshl_b32 {sT1}, {sRB}, 3
        s_add_u32 {sT1}, {sT1}, {sHG}
        s_lshl_b32 {sT1}, {sT1}, 9
        s_add_u32 {sT1}, {sT1}, {O_ST[0]}
        v_lshlrev_b32 v26, 3, v1
        buffer_store_dwordx2 v[28:29], v26, {WS}, {sT1} offen sc1""")
        p.waitall()
        p(f"s_lshl_b32 {sT1}, {sRB}, 7\ns_add_u32 {sT1}, {sT1}, {O_FX0}\ns_lshl_b32 {sT2}, {sHG}, 2\ns_add_u32 {sT2}, {sT2}, {sT1}")
        self.setflag(sT2, 26)
        p(f"""v_and_b32 v26, 31, v1
        v_lshl_add_u32 v26, v26, 2, {sT0}
        v_and_b32 v27, 7, v1
        v_lshl_add_u32 v27, v27, 2, {sT1}
        v_cmp_gt_u32 vcc, 32, v1
        v_cndmask_b32 v26, v27, v26, vcc""")
        self.poll(26, 0, 27); self.lds_signal(2, 26)
        p(f"""v_lshlrev_b32 v28, 7, v1
        s_lshl_b32 {sT2}, {sRB}, 3
        s_add_u32 {sT2}, {sT2}, {sHG}
        s_lshl_b32 {sT2}, {sT2}, 9
        s_add_u32 {sT2}, {sT2}, {O_ST[1]}
        s_mov_b64 exec, 15
        buffer_load_dword v68, v28, {WS}, {sT2} offen
        s_mov_b64 exec, 3
        buffer_load_dword v69, v28, {WS}, {sFR} offen
        s_mov_b64 exec, -1""")
        p(f"{L}:")
        self.lds_wait(2, 1, 26)
        self.small_loads()
        for g in wl: g()
        p(f"{LJ}:")
        X, Tt, Y, R = 76, 96, 116, 136
        hm = p(f"buffer_load_dword v31, off, {WS}, 0")
        self.lds_wait(1, 1, 26)
        p(f"""s_sub_u32 {sFAST}, {sT5}, 1
        v_and_b32 v26, 15, v1
        s_lshl_b32 {sT0}, {sW}, 4
        v_add_u32 v27, {sT0}, v26
        v_mul_u32_u24 v27, 144, v27
        v_lshrrev_b32 v28, 4, v1
        v_lshl_add_u32 v27, v28, 3, v27""")
        for t in range(5): hq = p(f"ds_read_b64 {vr(RES+2*t,2)}, v27 offset:{L_Q + 32*t}")
        p(f"""v_and_b32 v27, 1, v26
        v_lshlrev_b32 v27, 7, v27
        v_lshrrev_b32 v28, 3, v26
        v_lshl_add_u32 v27, v28, 6, v27
        v_bfe_u32 v28, v26, 1, 2
        v_lshl_add_u32 v26, v28, 4, v27
        s_lshl_b32 {sT0}, {sW}, 8
        s_add_u32 {sT0}, {sT0}, {LM_CS}
        v_add_u32 v26, {sT0}, v26
        v_lshrrev_b32 v27, 1, v1
        v_lshlrev_b32 v27, 7, v27
        v_and_b32 v28, 1, v1
        v_lshl_add_u32 v27, v28, 4, v27
        v_mov_b32 v28, 0x40000000
        v_cmp_gt_u32 vcc, 16, v1
        v_cndmask_b32 v29, v28, v27, vcc
        s_mul_i32 {sT4}, {sW}, 3072
        v_lshl_add_u32 v30, v1, 3, {sT4}
        s_mul_i32 {sT3}, {sRB}, 73728
        s_mul_i32 {sT1}, {sHG}, 9216
        s_add_u32 {sT3}, {sT3}, {sT1}
        s_lshl_b32 {sT1}, {sW}, 5
        s_add_u32 {sT3}, {sT3}, {sT1}
        s_add_u32 {sT3}, {sT3}, {O_Y}""")
        p.wait(hm)
        self.stamp("wland")
        for i in range(1, 8):
            for h in (0, 2): p(f"v_pk_add_f32 {vr(32+h,2)}, {vr(32+h,2)}, {vr(32+4*i+h,2)}")
        for sw in ("16", "32"):
            for i in range(4): p(f"v_mov_b32 v{36+i}, v{32+i}")
            for i in range(4): p(f"v_permlane{sw}_swap_b32 v{32+i}, v{36+i}")
            for h in (0, 2): p(f"v_pk_add_f32 {vr(32+h,2)}, {vr(32+h,2)}, {vr(36+h,2)}")
        p("s_mov_b64 exec, 0xffff\nds_write_b128 v26, v[32:35]\ns_mov_b64 exec, -1")
        p.wait(hq)
        self.tile_stats_finish(64, R); self.unpack(X, RES, 10); self.norm_tile(Tt, X, R)
        p(f"v_lshrrev_b32 v28, 4, v1\nv_mul_u32_u24 v28, 504, v28\nv_sub_u32 v15, v{vXT}, v28")
        self.barrier()
        Lp = self.onwave(3)
        p(f"s_mov_b32 {sT0}, {O_FY}")
        self.poll(27, sT0, 32, wide=True); p(f"{Lp}:")
        self.barrier()
        self.stamp("yseen")
        for i in range(3):
            p(f"s_add_u32 m0, {sT4}, {1024*i}")
            hy = p(f"buffer_load_dwordx4 v{27 if i < 2 else 29}, {WS}, {sT3} offen sc1 lds")
            if i < 2: p(f"s_add_u32 {sT3}, {sT3}, 4096")
        p.wait(hy)
        hy = [p(f"ds_read_b64_tr_b16 {vr(YT+2*t,2)}, v30 offset:{512*t}") for t in range(5)]
        for t in range(5): p.wait(hy[t]); self.unpack(Y + 4 * t, YT + 2 * t, 2)
        self.stamp("yland")
        self.publish_z(0, X, Tt, Y, 140)

    def wo_dma(self):
        p = self.p; out = []
        out.append(lambda: p(f"s_mul_i32 {sNC}, {sHG}, 82944\ns_add_u32 {sNC}, {sNC}, {O_WO}\ns_add_u32 {sNC}, {sNC}, {sW10}"))
        for i in range(21):
            def g(i=i):
                L = None
                if i == 20: L = p.lab("wo"); p(f"s_cmp_ge_u32 {sW}, 1\ns_cbranch_scc1 {L}")
                p(f"s_add_u32 m0, {sW10}, {L_W + 4096*i}\ns_add_u32 {sO}, {sNC}, {4096*i}\nbuffer_load_dwordx4 v{v16L}, {WS}, {sO} offen sc1 lds")
                if L: p(f"{L}:")
            out.append(g)
        return out

    def softmax(self, t, rl, E, tmp, out, pk):
        p = self.p; F = []
        a = lambda c, s: F.append((c, lambda: p(s)))
        mx, mn, c1, c2 = tmp, tmp + 1, tmp + 2, tmp + 3
        a(4, f"v_max3_f32 v{mx}, v{t}, v{t+1}, v{t+2}"); a(4, f"v_max3_f32 v{mn}, -v{t}, -v{t+1}, -v{t+2}")
        for i in (3, 5, 7):
            a(4, f"v_max3_f32 v{mx}, v{mx}, v{t+i}, v{t+i+1}"); a(4, f"v_max3_f32 v{mn}, v{mn}, -v{t+i}, -v{t+i+1}")
        a(12, f"v_permlane32_swap_b32 v{mx}, v{mn}")
        a(4, f"v_max_f32 v{mx}, v{mx}, v{mn}")
        a(4, f"v_mul_f32 v{c1}, -v{mx}, v{rl}"); a(4, f"v_mul_f32 v{c2}, -v{mx}, v{rl}")
        a(12, f"v_permlane32_swap_b32 v{c1}, v{c2}")
        P, N = E, E + 10
        assert rl % 2 == 0 and c1 % 2 == 0
        if pk:
            for i in range(0, 8, 2):
                a(5, f"v_pk_fma_f32 {vr(P+i,2)}, {vr(t+i,2)}, {vr(rl,2)}, {vr(c1,2)} op_sel_hi:[1,0,0]")
                a(5, f"v_pk_fma_f32 {vr(N+i,2)}, {vr(t+i,2)}, {vr(rl,2)}, {vr(c1,2)} op_sel:[0,0,1] op_sel_hi:[1,0,1] neg_lo:[1,0,0] neg_hi:[1,0,0]")
        for i in range(8 if pk else 0, 9):
            a(4, f"v_fma_f32 v{P+i}, v{t+i}, v{rl}, v{c1}"); a(4, f"v_fma_f32 v{N+i}, -v{t+i}, v{rl}, v{c2}")
        for i in range(9):
            a(8, f"v_exp_f32 v{P+i}, v{P+i}"); a(8, f"v_exp_f32 v{N+i}, v{N+i}")
        s1, s2 = tmp, tmp + 2
        if pk:
            a(5, f"v_pk_add_f32 {vr(s1,2)}, {vr(P,2)}, {vr(P+2,2)}"); a(5, f"v_pk_add_f32 {vr(s2,2)}, {vr(N,2)}, {vr(N+2,2)}")
            for i in (4, 6):
                a(5, f"v_pk_add_f32 {vr(s1,2)}, {vr(s1,2)}, {vr(P+i,2)}"); a(5, f"v_pk_add_f32 {vr(s2,2)}, {vr(s2,2)}, {vr(N+i,2)}")
        else:
            for h in range(2):
                a(4, f"v_add_f32 v{s1+h}, v{P+h}, v{P+2+h}"); a(4, f"v_add_f32 v{s2+h}, v{N+h}, v{N+2+h}")
            for i in (4, 6):
                for h in range(2):
                    a(4, f"v_add_f32 v{s1+h}, v{s1+h}, v{P+i+h}"); a(4, f"v_add_f32 v{s2+h}, v{s2+h}, v{N+i+h}")
        a(4, f"v_add_f32 v{s1}, v{s1}, v{s1+1}"); a(4, f"v_add_f32 v{s2}, v{s2}, v{s2+1}")
        a(4, f"v_add_f32 v{s1}, v{s1}, v{P+8}"); a(4, f"v_add_f32 v{s2}, v{s2}, v{N+8}")
        a(12, f"v_permlane32_swap_b32 v{s1}, v{s2}")
        a(4, f"v_add_f32 v{s1}, v{s1}, v{s2}")
        a(8, f"v_rcp_f32 v{s1}, v{s1}"); a(8, f"v_mov_b32 v{s1+1}, v{s1}")
        a(12, f"v_permlane32_swap_b32 v{s1}, v{s1+1}")
        if pk:
            for i in range(0, 8, 2):
                a(5, f"v_pk_mul_f32 {vr(P+i,2)}, {vr(P+i,2)}, {vr(s1,2)} op_sel_hi:[1,0]")
                a(5, f"v_pk_mul_f32 {vr(N+i,2)}, {vr(N+i,2)}, {vr(s1,2)} op_sel:[0,1]")
        for i in range(8 if pk else 0, 9):
            a(4, f"v_mul_f32 v{P+i}, v{P+i}, v{s1}"); a(4, f"v_mul_f32 v{N+i}, v{N+i}, v{s1+1}")
        for i in range(4): a(4, f"v_cvt_pk_bf16_f32 v{out[i]}, v{P+2*i}, v{P+2*i+1}")
        for i in range(4): a(4, f"v_cvt_pk_bf16_f32 v{out[4+i]}, v{N+2*i}, v{N+2*i+1}")
        a(4, f"v_cvt_pk_bf16_f32 v{out[8]}, v{P+8}, v{N+8}")
        return F

    def layer(self, L):
        p = self.p; o = self.opt
        A_, B_ = [32, 48], [64, 80]; FB, CS, PK, E, TMP = 96, 128, [156, 172], 188, 208
        RL = [212, 214]; RS = [216, 217]; vB = 218
        WA = [219, 220, 221, 222]; RA = [26, 27, 28]
        hZ = {}; hst = []
        def zdma(n):
            T, i = divmod(n, 9)
            p(f"s_add_u32 m0, {sW10}, {SUB*T + 4096*i}\ns_add_u32 {sO}, {sT3}, {SUB*T + 4096*i}")
            hZ[n] = p(f"buffer_load_dwordx4 v{v16L}, {WS}, {sO} offen sc1 lds")
        p(f"s_add_u32 {sT3}, {sZ}, {sW10}")
        NU = o.get("NU", 6)
        for n in range(NU): zdma(n)
        p(f"""v_lshrrev_b32 v29, 5, v1
        v_lshlrev_b32 v29, 7, v29
        s_lshl_b32 {sT0}, {sW}, 8
        s_add_u32 {sT0}, {sT0}, {LM_CS}
        v_add_u32 v29, {sT0}, v29
        v_add_u32 v{vB}, {SUB}, v{v16L}
        v_lshlrev_b32 v31, 3, v1
        s_lshl_b32 {sT4}, {sRB}, 12
        s_add_u32 {sT4}, {sT4}, {O_ST[1]}""")
        for i in range(7): hcs = p(f"ds_read_b128 {vr(CS+4*i,4)}, v29 offset:{16*i}")
        bud = o.get("budget", 16)
        stl = [(lambda i=i: hst.append(p(f"buffer_load_dwordx2 {vr(PK[1]+2*i,2)}, v31, {WS}, {sT4} offen offset:{512*i} sc1"))) for i in range(8)]
        zl = [(lambda n=n: zdma(n)) for n in range(NU, 18)]
        mem = {1 + 2 * i: g for i, g in enumerate(zl[:13 - NU] + stl + zl[13 - NU:])}
        def touch():
            p(f"""v_lshlrev_b32 v31, 7, v1
            s_mul_i32 {sT0}, {sG4}, {4*3840}
            s_mul_i32 {sT1}, {sI4}, 3840
            s_add_u32 {sT0}, {sT0}, {sT1}
            s_add_u32 {sT0}, {sT0}, {O_P1}
            v_lshrrev_b32 v223, 5, v1
            v_mul_u32_u24 v223, {4*3840 - 4096}, v223
            v_add_u32 v223, v31, v223
            buffer_load_dword v15, v223, {WS}, {sT0} offen
            s_add_u32 {sT0}, {sT0}, {8*3840}
            buffer_load_dword v223, v223, {WS}, {sT0} offen
            s_lshl_b32 {sT0}, {sRB}, 3
            s_add_u32 {sT0}, {sT0}, {sHG}
            s_lshl_b32 {sT0}, {sT0}, 9
            s_add_u32 {sT0}, {sT0}, {O_ST[2]}
            s_lshl_b32 {sT1}, {sG4}, 5
            s_add_u32 {sT1}, {sT1}, {O_FP}
            s_sub_u32 {sT0}, {sT0}, {sT1}
            v_add_u32 v31, {sT0}, v31
            v_cmp_gt_u32 vcc, 4, v1
            v_cndmask_b32 v31, 0, v31, vcc
            s_mov_b64 exec, 31
            buffer_load_dword v31, v31, {WS}, {sT1} offen
            s_mov_b64 exec, -1""")
        def lines(text, c=4): return [(c, (lambda s=s: p(s))) for s in text.strip().split("\n")]
        S = PK[1]
        stats = [(0, lambda: p.wait(*hst))]
        for i in range(1, 8): stats += lines(f"v_add_f32 v{S}, v{S}, v{S+2*i}\nv_add_f32 v{S+1}, v{S+1}, v{S+2*i+1}")
        stats += lines(f"""v_mul_f32 v{RL[0]+1}, {INV576 | 0x80000000}, v{S}
        v_mul_f32 v{S+1}, {INV576}, v{S+1}
        v_fma_f32 v{S+1}, -v{RL[0]+1}, v{RL[0]+1}, v{S+1}
        v_mov_b32 v{RL[1]+1}, v{RL[0]+1}
        v_max_f32 v{S+1}, 0, v{S+1}
        v_add_f32 v{S+1}, {EPS}, v{S+1}
        v_rsq_f32 v{RS[0]}, v{S+1}
        v_permlane32_swap_b32 v{RL[0]+1}, v{RL[1]+1}
        v_mov_b32 v{RS[1]}, v{RS[0]}
        s_nop 1
        v_permlane32_swap_b32 v{RS[0]}, v{RS[1]}
        v_mul_f32 v{RL[0]}, {LOG2E}, v{RS[0]}
        v_mul_f32 v{RL[1]}, {LOG2E}, v{RS[1]}""")
        addr = lines(f"""v_and_b32 v{E}, 31, v1
        v_bfe_u32 v{E+1}, v1, 1, 1
        v_lshlrev_b32 v{E+1}, 2, v{E+1}
        v_and_b32 v{E+2}, 1, v1
        v_lshl_add_u32 v{E+1}, v{E+2}, 1, v{E+1}
        v_bfe_u32 v{E+2}, v1, 2, 1
        v_add_u32 v{E+1}, v{E+1}, v{E+2}
        v_lshlrev_b32 v{E+1}, 4, v{E+1}
        v_lshl_add_u32 v{E}, v{E}, 7, v{E+1}
        s_lshl_b32 {sT0}, {sW}, 13
        v_add_u32 v{E}, {sT0}, v{E}
        v_lshrrev_b32 v{E+1}, 5, v1
        v_lshlrev_b32 v{E+2}, 5, v{E+1}
        v_xor_b32 v{WA[0]}, v{E}, v{E+2}
        v_xor_b32 v{WA[1]}, 16, v{WA[0]}
        v_lshlrev_b32 v{E+2}, 4, v{E+1}
        v_or_b32 v{E+2}, 64, v{E+2}
        v_xor_b32 v{WA[2]}, v{E}, v{E+2}
        v_xor_b32 v{WA[3]}, 32, v{WA[2]}
        v_bfe_u32 v{E}, v1, 2, 2
        v_lshl_add_u32 v{E}, v{E+1}, 2, v{E}
        v_bfe_u32 v{E+2}, v{E}, 1, 1
        v_lshlrev_b32 v{E+2}, 2, v{E+2}
        v_and_b32 v{E+3}, 1, v{E}
        v_lshl_add_u32 v{E+2}, v{E+3}, 1, v{E+2}
        v_add_u32 v{E+2}, v{E+2}, v{E+1}
        v_lshlrev_b32 v{E+2}, 4, v{E+2}
        v_lshl_add_u32 v{E}, v{E}, 7, v{E+2}
        v_add_u32 v{E}, {sT0}, v{E}
        v_and_b32 v{E+1}, 1, v1
        v_bfe_u32 v{E+2}, v1, 1, 1
        v_bfe_u32 v{E+3}, v1, 4, 1
        v_lshlrev_b32 v{RA[0]}, 5, v{E+1}
        v_lshl_add_u32 v{RA[0]}, v{E+3}, 4, v{RA[0]}
        v_xor_b32 v{RA[0]}, v{E}, v{RA[0]}
        v_lshl_add_u32 v{RA[0]}, v{E+2}, 3, v{RA[0]}
        v_lshlrev_b32 v{RA[1]}, 4, v{E+1}
        v_or_b32 v{RA[1]}, 64, v{RA[1]}
        v_xor_b32 v{RA[1]}, v{E}, v{RA[1]}
        v_xor_b32 v{RA[2]}, 32, v{RA[1]}
        v_lshl_add_u32 v{RA[2]}, v{E+2}, 3, v{RA[2]}
        v_add_u32 v{E+4}, 8, v{RA[1]}
        v_cmp_eq_u32 vcc, 1, v{E+3}
        v_lshrrev_b32 v29, 5, v1
        v_cndmask_b32 v{RA[2]}, v{RA[2]}, v{E+4}, vcc
        v_mul_u32_u24 v29, 24, v29
        v_and_b32 v30, 31, v1
        v_add_u32 v30, v29, v30
        v_lshlrev_b32 v29, 4, v30
        v_lshlrev_b32 v30, 5, v30""")
        def kpart(T):
            A, k, nm, r = A_[T], PK[T], RL[T] + 1, RS[T]
            F = [(0, lambda: p.wait(hcs))]
            F += lines("\n".join(f"v_fmac_f32 v{A+i}, v{CS+i}, v{nm}" for i in range(16)))
            F += self.softmax(A, RL[T], E, TMP, [k + i for i in range(9)], False)
            F += lines("\n".join(f"v_mul_f32 v{A+i}, v{A+i}, v{r}" for i in range(9, 16)))
            F += lines("\n".join(f"v_cvt_pk_bf16_f32 v{k+12+i}, v{A+9+2*i}, v{A+10+2*i}" for i in range(3)))
            F += lines(f"v_mov_b32 v{k+9}, 0\nv_mov_b32 v{k+11}, 0")
            return F
        def vtail(T):
            A, B, k, nm, r = A_[T], B_[T], PK[T], RL[T] + 1, RS[T]
            return lines(f"""v_fmac_f32 v{B+9}, v{CS+25}, v{nm}
            v_fmac_f32 v{B+10}, v{CS+26}, v{nm}
            v_mul_f32 v{B+9}, v{B+9}, v{r}
            v_mul_f32 v{B+10}, v{B+10}, v{r}
            v_cvt_pk_bf16_f32 v{k+15}, v{A+15}, v{B+9}
            v_cvt_pk_bf16_f32 v{k+10}, v{B+10}, 1.0""")
        hw = {}
        def wr(T, idx):
            def g():
                for i in idx: hw[T] = p(f"ds_write_b128 v{WA[i]}, {vr(PK[T]+4*i,4)} offset:{4096*T}")
            return [(4 * len(idx), g)]
        hA = {}; FR = [156, 188, 96, 108]
        def rd_part(s):
            def g():
                p.wait(hw[s >> 1])
                for i in range(3):
                    for rd in range(2): hA[s] = p(f"ds_read_b64_tr_b16 {vr(FR[s]+4*i+2*rd,2)}, v{RA[i]} offset:{2048*s + 1024*rd}")
            return [(24, g)]
        seq = [(tile, T, ks) for tile in range(2) for T in range(2) for ks in range(36)]
        PD = o.get("PD", 6); hF = {}
        def rd_frag(n):
            tile, T, ks = seq[n]
            hF[n] = p(f"ds_read_b128 {vr(FB + 4*(n&7), 4)}, v{vB if T else v16L} offset:{1024*ks}")
        need = {4: (1, 0), 8: (3, 3), 16: (5, 10), 24: (8, 18), 36: (12, 30), 52: (17, 49)}
        fa = o.get("free_at", 110); WG = o.get("WG", 2); nxt = [4]
        def step(n):
            def g():
                tile, T, ks = seq[n]; d = vr((A_, B_)[tile][T], 16)
                p.wait(hF[n])
                p(f"{M32} {d}, {wreg(2*ks+tile)}, {vr(FB + 4*(n&7), 4)}, {d if ks else 0}")
                for _ in range(2):
                    m = nxt[0]
                    if m >= 144 or m > n + PD or (m in need and n < need[m][1]): break
                    if m in need: p.wait(hZ[need[m][0]]); self.barrier()
                    rd_frag(m); nxt[0] += 1
                if n in mem: mem[n]()
                if n == fa: self.barrier()
                if n % WG == WG - 1 and n < 143 and n > 8: p.wait(hF[min(n + WG, 143)])
            return g
        p.wait(hZ[0]); self.barrier()
        self.stamp("z0")
        for n in range(4): rd_frag(n)
        if L == 0:
            mem[44] = touch
            for i, g in enumerate(self.wo_dma()): mem[o.get("wo_at", 52) + 3 * i] = g
        K0, K1 = kpart(0), kpart(1)
        mix(p, [step(n) for n in range(0, 38)], addr, bud)
        self.stamp("p1")
        left = mix(p, [step(n) for n in range(38, 74)], stats + K0, bud, False)
        self.stamp("p2")
        left = mix(p, [step(n) for n in range(74, fa + 1)], left + K1, bud, False)
        self.stamp("p3")
        mix(p, [step(n) for n in range(fa + 1, 144)], vtail(0) + wr(0, [0, 1]) + wr(0, [2, 3]) + left + wr(1, [0, 1]) + rd_part(0) + rd_part(1), bud)
        self.stamp("gemm")
        KV0, KV1 = A_
        def mm_part(s):
            b = FR[s]; p.wait(hA[s])
            p(f"{M32} {vr(KV0,16)}, {vr(b,4)}, {vr(b+8,4)}, {vr(KV0,16) if s else 0}")
            p(f"{M32} {vr(KV1,16)}, {vr(b+4,4)}, {vr(b+8,4)}, {vr(KV1,16) if s else 0}")
        p(f"""s_add_u32 {sT1}, {sG4}, {sW}
        s_lshl_b32 {sT1}, {sT1}, 2
        s_add_u32 {sT1}, {sT1}, {sI4}
        s_mul_i32 {sT1}, {sT1}, 3840
        s_add_u32 {sT1}, {sT1}, {O_P1}""")
        run(vtail(1)); run(wr(1, [2, 3]))
        mm_part(0); mm_part(1)
        run(rd_part(2)); run(rd_part(3))
        mm_part(2); mm_part(3)
        self.dual(f"s_mov_b64 exec, {M48}\n" + "\n".join(
            f"buffer_store_dwordx4 {vr(KV0+4*jj if jj < 4 else KV1,4)}, v{30 if jj < 4 else 29}, {WS}, {sT1} offen offset:{1536*(jj>>1) + 16*(jj&1)}" for jj in range(5)) + "\ns_mov_b64 exec, -1")
        self.stamp("part")
        def qsoft(T, half):
            A, B, rl = A_[T], B_[T], RL[T]
            F = lines("\n".join(f"v_pk_fma_f32 {vr(B+i,2)}, {vr(CS+16+i,2)}, {vr(rl,2)}, {vr(B+i,2)} op_sel:[0,1,0]" for i in range(0, 8, 2)))
            F += lines(f"v_fmac_f32 v{B+8}, v{CS+24}, v{rl+1}")
            F += self.softmax(B, rl, E, TMP, [A + i for i in range(9)], True)
            F += lines("\n".join(f"v_mov_b32 v{A+9+i}, 0" for i in range(3)))
            n = o.get("qsplit", 45)
            run(F[:n] if half == 0 else F[n:])
        qsoft(0, 0)
        p.waitall(); self.barrier()
        self.stamp("ack1")
        Lf = self.onwave(0)
        p(f"s_lshl_b32 {sT0}, {sG4}, 5\ns_add_u32 {sT0}, {sT0}, {O_FP + 16*L}\ns_lshl_b32 {sT1}, {sI4}, 2\ns_add_u32 {sT1}, {sT1}, {sT0}")
        self.setflag(sT1, 96, True); p(f"{Lf}:")
        qsoft(0, 1)
        p(f"""v_lshlrev_b32 v116, 3, v0
        v_mov_b32 v118, 0x40000000
        v_cmp_gt_u32 vcc, 240, v0
        v_lshlrev_b32 v117, 4, v0
        v_cndmask_b32 v116, v118, v116, vcc
        v_lshrrev_b32 v30, 1, v29
        s_add_u32 {sT2}, {sG4}, {sI4}
        s_mul_i32 {sT2}, {sT2}, {4*3840}
        s_add_u32 {sT2}, {sT2}, {O_P1}
        s_lshl_b32 {sT3}, {sHG}, 2
        s_add_u32 {sT3}, {sT3}, {sI4}
        s_lshl_b32 {sT3}, {sT3}, 3
        s_add_u32 {sT3}, {sT3}, {sX}
        s_lshl_b32 {sT3}, {sT3}, 11
        s_add_u32 {sT3}, {sT3}, {O_P2[L]}""")
        Lf = self.onwave(0)
        p("v_and_b32 v96, 3, v1\nv_lshlrev_b32 v96, 2, v96")
        self.poll(96, sT0, 97); p(f"{Lf}:")
        self.barrier()
        self.stamp("Fp")
        hr = []
        for pp in range(4):
            hr.append(p(f"buffer_load_dwordx4 {vr(96+4*pp,4)}, v117, {WS}, {sT2} offen sc1"))
            if pp < 3: p(f"s_add_u32 {sT2}, {sT2}, 3840")
        p.wait(hr[1])
        p("v_pk_add_f32 v[96:97], v[96:97], v[100:101]\nv_pk_add_f32 v[98:99], v[98:99], v[102:103]")
        p.wait(hr[3])
        p("""v_pk_add_f32 v[104:105], v[104:105], v[108:109]
        v_pk_add_f32 v[106:107], v[106:107], v[110:111]
        v_pk_add_f32 v[96:97], v[96:97], v[104:105]
        v_pk_add_f32 v[98:99], v[98:99], v[106:107]
        v_cvt_pk_bf16_f32 v96, v96, v97
        v_cvt_pk_bf16_f32 v97, v98, v99""")
        hs = p(f"buffer_store_dwordx2 v[96:97], v116, {WS}, {sT3} offen sc1")
        self.stamp("lred")
        qsoft(1, 0); qsoft(1, 1)
        p.wait(hs); self.barrier()
        self.stamp("ack2")
        Lf = self.onwave(0)
        p(f"""s_lshl_b32 {sT0}, {sHG}, 10
        s_add_u32 {sT0}, {sT0}, {O_FK[L]}
        s_lshl_b32 {sT1}, {sX}, 7
        s_lshl_b32 {sT2}, {sI4}, 2
        s_add_u32 {sT1}, {sT1}, {sT2}
        s_add_u32 {sT1}, {sT1}, {sT0}""")
        self.setflag(sT1, 96)
        p("v_bfe_u32 v96, v1, 2, 3\nv_lshlrev_b32 v96, 7, v96\nv_and_b32 v97, 3, v1\nv_lshl_add_u32 v96, v97, 2, v96")
        self.poll(96, sT0, 97); p(f"{Lf}:")
        p(f"""s_lshl_b32 {sT0}, {sHEAD}, 14
        s_add_u32 {sT0}, {sT0}, {O_P2[L]}
        s_mul_i32 {sT3}, {sHG}, 2304
        s_add_u32 {sT3}, {sT3}, {sZ}
        s_add_u32 {sT3}, {sT3}, {self.OO - self.OZ}
        s_add_u32 {sT4}, {sT3}, 36864
        v_bfe_u32 v26, v1, 4, 1
        v_mul_u32_u24 v26, 18432, v26
        v_and_b32 v27, 15, v1
        v_lshl_add_u32 v26, v27, 4, v26
        v_lshrrev_b32 v27, 5, v1
        s_lshl_b32 {sT2}, {sW}, 1
        v_add_u32 v27, {sT2}, v27
        v_lshl_add_u32 v28, v27, 1, v26
        v_lshl_add_u32 v26, v27, 8, v26
        v_mov_b32 v205, 0
        v_mov_b32 v206, 0
        v_mov_b32 v207, 0""")
        self.barrier()
        self.stamp("Fk")
        p(f"s_mov_b64 exec, {M48}")
        hg_ = []; GB, SU, KF = 96, 176, 196
        for xx in range(8):
            b = GB + 10 * xx; of = (xx & 1) * 2048
            p(f"buffer_load_dwordx4 {vr(b,4)}, v29, {WS}, {sT0} offen offset:{of} sc1")
            p(f"buffer_load_dwordx4 {vr(b+4,4)}, v29, {WS}, {sT0} offen offset:{of+768} sc1")
            hg_.append(p(f"buffer_load_dword v{b+8}, v30, {WS}, {sT0} offen offset:{of+1536} sc1"))
            if xx & 1 and xx < 7: p(f"s_add_u32 {sT0}, {sT0}, 4096")
        p("s_mov_b64 exec, -1")
        for xx in range(8):
            b = GB + 10 * xx; p.wait(hg_[xx])
            if xx == 0: self.stamp("g0"); self.unpack(SU, b, 9)
            else:
                for d in range(9): p(f"v_dot2c_f32_bf16 v{SU+2*d}, {sONE}, v{b+d}\nv_dot2c_f32_bf16 v{SU+2*d+1}, {sONEH}, v{b+d}")
        for d in range(9): p(f"v_cvt_pk_bf16_f32 v{KF+d}, v{SU+2*d}, v{SU+2*d+1}")
        self.stamp("gath")
        for T in range(2):
            for s in range(3):
                d = vr(B_[T], 16)
                p(f"{M32} {d}, {vr(KF+4*s,4)}, {vr(A_[T]+4*s,4)}, {d if s else 0}")
        p(f"""v_add_u32 v208, {L_W}, v{v16L}
        v_add_u32 v209, {L_W + 9*4608}, v{v16L}
        v_lshrrev_b32 v210, 4, v1
        v_lshlrev_b32 v210, 3, v210
        v_and_b32 v211, 7, v1
        v_add_u32 v210, v210, v211
        v_lshlrev_b32 v210, 4, v210
        v_add_u32 v211, {L_W + 9*4608 + 4096}, v210
        v_add_u32 v210, {L_W + 4096}, v210""")
        for T in range(2):
            B = B_[T]; O = 96 + 4 * T
            p(f"v_add_f32 v{B+10}, {EPS6}, v{B+9}\nv_rcp_f32 v{B+10}, v{B+10}")
            for i in range(0, 8, 2): p(f"v_pk_mul_f32 {vr(B+i,2)}, {vr(B+i,2)}, {vr(B+10,2)} op_sel_hi:[1,0]")
            p(f"v_mul_f32 v{B+8}, v{B+8}, v{B+10}")
            for i in range(4): p(f"v_cvt_pk_bf16_f32 v{O+i}, v{B+2*i}, v{B+2*i+1}")
            p(f"v_cvt_pk_bf16_f32 v{B+8}, v{B+8}, v{B+8}")
            so = sT3 if T == 0 else sT4
            self.dual(f"buffer_store_dwordx4 {vr(O,4)}, v26, {WS}, {so} offen\nbuffer_store_short v{B+8}, v28, {WS}, {so} offen offset:2048")
        self.stamp("ost")
        AC, OF, WF, NS = 32, 52, 124, 4
        hwo = {}
        def rd_wo(s, t):
            a = (208 if t < 4 else 210) + (s >= 9)
            hwo[s, t] = p(f"ds_read_b128 {vr(WF + 20*(s%NS) + 4*t, 4)}, v{a} offset:{4608*(s%9) + 1024*(t&3)}")
        def pre():
            for s in range(NS):
                for t in range(5): rd_wo(s, t)
            p(f"s_mul_i32 {sT0}, {sW}, 18432\ns_add_u32 {sT0}, {sT0}, {sZ}\ns_add_u32 {sT0}, {sT0}, {self.OO - self.OZ}")
        self.rowhop(1 + 3 * L, 212, pre)
        self.stamp("Fo")
        hO = {}; NO = o.get("NO", 6)
        def ld_o(s):
            hO[s] = p(f"buffer_load_dwordx4 {vr(OF+4*s,4)}, v{v16L}, {WS}, {sT0} offen offset:{(s%4)*1024} sc1")
            if s % 4 == 3: p(f"s_add_u32 {sT0}, {sT0}, 4096")
        for s in range(NO): ld_o(s)
        for s in range(18):
            p.wait(hO[s], hwo[s, 4])
            if s == 0: self.stamp("o0")
            for t in range(5):
                d = vr(AC + 4 * t, 4)
                p(f"{M16} {d}, {vr(WF + 20*(s%NS) + 4*t, 4)}, {vr(OF+4*s,4)}, {d if s else 0}")
                if t == 0 and s + NO < 18: ld_o(s + NO)
                if s and s - 1 + NS < 18: rd_wo(s - 1 + NS, t)
        self.stamp("mm")
        X, Tt, Y, R = 56, 76, 96, 116
        self.unpack(X, RES, 10)
        if L == 0:
            for t in range(5):
                for d in (0, 2): p(f"v_pk_add_f32 {vr(X+4*t+d,2)}, {vr(X+4*t+d,2)}, {vr(AC+4*t+d,2)}")
            self.rowstats(X, 124, 2, True)
            ld = {}
            def mid():
                self.unpack(Y, YT, 10); ld[0] = self.tile_stats_load(2, 124, 128)
            self.stamp("s2st")
            p(f"v_lshrrev_b32 v28, 4, v1\nv_mul_u32_u24 v28, 504, v28\nv_sub_u32 v15, v{vXT}, v28")
            self.rowhop(2, 140, mid)
            self.stamp("s2seen")
            h = ld[0](); p.wait(h)
            self.tile_stats_finish(124, R); self.norm_tile(Tt, X, R)
            self.publish_z(1, X, Tt, Y, 124)
        else:
            self.srd(SA, "out", TEN)
            p(f"""v_and_b32 v26, 15, v1
            v_mul_u32_u24 v26, 1152, v26
            v_lshrrev_b32 v27, 4, v1
            v_lshl_add_u32 v26, v27, 3, v26
            s_lshl_b32 {sT0}, {sRB}, 2
            s_add_u32 {sT0}, {sT0}, {sW}
            s_mul_i32 {sT0}, {sT0}, 18432
            s_mul_i32 {sT1}, {sHG}, 144
            s_add_u32 {sT0}, {sT0}, {sT1}""")
            for t in range(5):
                for d in (0, 2): p(f"v_pk_add_f32 {vr(X+4*t+d,2)}, {vr(X+4*t+d,2)}, {vr(AC+4*t+d,2)}")
                for d in range(2): p(f"v_cvt_pk_bf16_f32 v{Y+2*t+d}, v{X+4*t+2*d}, v{X+4*t+2*d+1}")
                if t == 4: p("s_mov_b32 exec_hi, 0")
                p(f"buffer_store_dwordx2 {vr(Y+2*t,2)}, v26, {SA}, {sT0} offen offset:{32*t}")
            p("s_mov_b64 exec, -1")

    def build(self):
        p = self.p
        self.prologue(); self.phase0(); self.conv(); self.layer(0); self.layer(1)
        if self.prof: self.stamp("out"); p.waitall(); self.stamp("end"); self.stamp_flush()
        L = p.lab("ep")
        p(f"s_or_b32 {sT0}, s2, {sW}\ns_cmp_lg_u32 {sT0}, 0\ns_cbranch_scc1 {L}")
        p(f"s_mov_b32 {sT0}, {O_EPOCH}"); self.setflag(sT0, 26)
        p(f"{L}:\nL_end:\ns_endpgm")
        p.raw("\n".join(self.tail))
        return p.text()

HEADER = open("interleave_layers__ssm_conv_h3__linear_kernel_hedgehog__prompt.s.ref").read().split("; Override launch")[0]

def full(prof=False, opt=None):
    k = K(prof, opt); body = k.build()
    assert k.p.maxv <= 255 and k.p.maxa <= 255 and k.p.maxs <= 101
    txt = HEADER + f"; @launch grid=(256,1,1) block=(256,1,1) lds={LDS_BYTES}\n"
    txt += f""".amdgcn_target "amdgcn-amd-amdhsa--gfx950"
.text
.globl {NAME}
.p2align 8
.type {NAME},@function
{NAME}:
{body}.section .rodata,"a"
.p2align 6
.amdhsa_kernel {NAME}
  .amdhsa_next_free_vgpr 512
  .amdhsa_next_free_sgpr 102
  .amdhsa_accum_offset 256
  .amdhsa_group_segment_fixed_size 0
  .amdhsa_kernarg_size 104
  .amdhsa_user_sgpr_count 2
  .amdhsa_user_sgpr_kernarg_segment_ptr 1
  .amdhsa_system_sgpr_workgroup_id_x 1
.end_amdhsa_kernel
"""
    return txt, k
```

```python
import sys, json, importlib
sys.path.insert(0,"exp"); sys.path.insert(0,"gen")
from asmlib import build
import kern5 as kern
FRONT=["crit","landed","bar1","ust","uflag","p0end","useen","udma","convE","yflag","wland","yseen","yland","zst","zseen","z0","gemm","s2st","s2seen","mm","out","end"]
BACK=["z0","gemm","part","Fp","lred","ack2","Fk","g0","gath","ost","Fo","o0","mm","out","end"]
def make(name, prof=False, opt=None):
    path=f"gen/{name}.s"
    txt,k = kern.full(prof=prof, opt=opt); open(path,"w").write(txt)
    build(path, kern.NAME, 13, lists=True)
    open(path[:-2]+".nst","w").write(",".join(k.names)); print(name, "lines", len(k.p.out), "nops", k.p.nops, "stamps", k.nstamp)
if __name__=="__main__":
    name=sys.argv[1]; o=json.loads(sys.argv[2]) if len(sys.argv)>2 else {}; kinds=sys.argv[3] if len(sys.argv)>3 else "kfB"
    if "k" in kinds: make(name, opt=o)
    if "f" in kinds: make(name+"_prof_f", True, dict(o, only=FRONT))
    if "F" in kinds: make(name+"_prof_cyc_f", True, dict(o, only=FRONT, cyc=1))
    if "G" in kinds: make(name+"_prof_cyc_g", True, dict(o, only=["useen","udma","m1","m3","m5","convE","zseen","z0","p1","p2","p3","gemm","Fo","o0","mm"], cyc=1))
    if "B" in kinds: make(name+"_prof_cyc_b", True, dict(o, only=BACK, cyc=1))
```

```python
import sys
from emit import Prog, mix

NAME = "interleave_layers__ssm_conv_h3__linear_kernel_hedgehog__prompt_kernel"
O_EPOCH = 0
O_FU, O_FW, O_FID, O_FX0, O_FY = 0x1000, 0x1400, 0x1800, 0x2000, 0x3000
O_FR = 0x10000
O_FP = 0x8000
O_FK = [0xC000, 0xE000]
O_CS = 0x1C0000
O_ST = [0x40000, 0x60000, 0x80000]
O_P2 = [0xA0000, 0x120000]
O_PROF = 0x1A0000
O_WO = 0x200000
O_P1 = 0x2C0000
O_U = 0x680000
O_Y = O_U + 0x240000
O_WP = O_Y + 0x240000
O_Z, O_O = O_U, O_Y
WS_USED = O_WP + 3 * 0x240000
TEN = 2048 * 576 * 2
SUB = 36864
L_W = 2 * SUB
L_M = L_W + 82944
L_K, L_V, L_Q, L_PHI, L_WOT, L_WR = 0, 10240, 20480, 32768, 36864, 40960
CONV_STRIDE = 21248; CP = 4160; L_CU = 16640
LM_CS = L_M
LM_SY = L_M + 1024
LDS_BYTES = 163840
WS = "s[4:7]"
SA, SB, SC, SD, SE = "s[36:39]", "s[40:43]", "s[44:47]", "s[48:51]", "s[52:55]"
sX, sJ, sRB, sHG, sI4, sW, sN, sHI = "s56", "s57", "s58", "s59", "s60", "s61", "s62", "s63"
sT0, sT1, sT2, sT3, sT4, sT5 = "s66", "s67", "s68", "s69", "s70", "s71"
sCH, sLC, sHEAD, sPC = "s72", "s73", "s74", "s75"
M8 = "s[76:77]"
M48 = "s[78:79]"
MU1 = "s[80:81]"
sONE, sONEH, sONE2, sCONV = "s82", "s83", "s84", "s85"
sKB, sFH, sFOLD, sO, sWP, sZ, sW10, sNC, sFAST, sFR, sG4 = "s89", "s90", "s91", "s92", "s93", "s94", "s95", "s96", "s97", "s98", "s99"
PTR = dict(q=8, k=10, v=12, shift=14, ssm=16, D=18, wqkv=22, wphi=24, wo=26, out=28, dbg=30)
LOG2E = 0x3fb8aa3b; INV576 = 0x3ae38e39; EPS = 0x3727c5ac; EPS6 = 0x358637bd
SPIN = 200000
RES, vXT, vSTA, v16L, YT = 2, 12, 13, 14, 16
M32 = "v_mfma_f32_32x32x16_bf16"; M16 = "v_mfma_f32_16x16x32_bf16"

def vr(a, n): return f"v[{a}:{a+n-1}]" if n > 1 else f"v{a}"
def wreg(f): return f"a[{4*f}:{4*f+3}]" if f < 64 else vr(224 + 4 * (f - 64), 4)
def run(F):
    for c, f in F: f()

class K:
    STAMP_REGS = [34, 35, 64, 65, 100, 101, 20, 21, 3] + list(range(10, 20)) + [22, 23, 24, 25, 30, 31, 32, 33, 88, 8, 9]
    def __init__(self, prof=False, opt=None):
        self.p = Prog(); self.prof = prof; self.nstamp = 0; self.names = []; self.opt = opt or {}; self.tail = []
        self.OZ, self.OO = (O_WP + 0x240000, O_WP + 2 * 0x240000) if self.opt.get("noalias") else (O_Z, O_O)
    def srd(self, dst, name, nbytes):
        b = int(dst[2:].split(":")[0]); s = PTR[name]
        self.p(f"s_mov_b32 s{b}, s{s}\ns_mov_b32 s{b+1}, s{s+1}\ns_mov_b32 s{b+2}, {nbytes}\ns_mov_b32 s{b+3}, 0x20000")
    def stamp(self, name=""):
        if not self.prof: return
        if self.opt.get("only") and self.nstamp and name not in self.opt["only"]: return
        p = self.p; i = self.nstamp; self.nstamp += 1; self.names.append(name)
        p(("s_memtime" if self.opt.get("cyc") else "s_memrealtime") + f" s[86:87]\ns_waitcnt lgkmcnt(0)\ns_mov_b32 s{self.STAMP_REGS[i]}, s86")
    def stamp_flush(self):
        if not self.prof: return
        p = self.p
        for i in range(self.nstamp): p(f"v_writelane_b32 v2, s{self.STAMP_REGS[i]}, {i}")
        p(f"v_writelane_b32 v2, {sFAST}, 31")
        p(f"s_lshl_b32 s88, s2, 9\ns_lshl_b32 s86, {sW}, 7\ns_add_u32 s88, s88, s86\ns_add_u32 s88, s88, {O_PROF}\nv_lshlrev_b32 v3, 2, v1\ns_mov_b32 exec_hi, 0\nbuffer_store_dword v2, v3, {WS}, s88 offen\ns_mov_b64 exec, -1")
    def onwave(self, w):
        L = self.p.lab("w"); self.p(f"s_cmp_lg_u32 {sW}, {w}\ns_cbranch_scc1 {L}"); return L
    def barrier(self): self.p("s_barrier")
    def dual(self, text):
        p = self.p; S, E = p.lab("slow"), p.lab("back")
        p(f"s_cmp_eq_u32 {sFAST}, 0"); p.raw(f"s_cbranch_scc1 {S}")
        n = len(p.out); h = p(text); body = p.out[n:]; p.raw(f"{E}:")
        self.tail += [f"{S}:"] + [l + " sc1" if l.startswith("buffer_store") else l for l in body] + [f"s_branch {E}"]
        return h
    def setflag(self, soff, tmp, local=False, off=0):
        t = f"s_mov_b64 exec, 1\nv_mov_b32 v{tmp}, {sN}\nbuffer_store_dword v{tmp}, off, {WS}, {soff} offset:{off}"
        if local: self.dual(t + "\ns_mov_b64 exec, -1")
        else: self.p(t + " sc1\ns_mov_b64 exec, -1")
    def poll(self, vaddr, soff, tmp, wide=False, off=0):
        p = self.p; L = p.lab("poll"); E = p.lab("polle")
        p.waitall(lg=False)
        p(f"s_mov_b32 {sPC}, 0\n{L}:")
        if wide: p(f"buffer_load_dwordx4 {vr(tmp,4)}, v{vaddr}, {WS}, {soff} offen offset:{off} sc1")
        else: p(f"buffer_load_dword v{tmp}, v{vaddr}, {WS}, {soff} offen offset:{off} sc1")
        p(f"s_add_u32 {sPC}, {sPC}, 1\ns_waitcnt vmcnt(0)")
        if wide:
            for i in range(4): p(f"v_xor_b32 v{tmp+i}, {sN}, v{tmp+i}")
            p(f"v_or3_b32 v{tmp}, v{tmp}, v{tmp+1}, v{tmp+2}\nv_or_b32 v{tmp}, v{tmp}, v{tmp+3}\nv_cmp_ne_u32 vcc, 0, v{tmp}")
        else: p(f"v_cmp_ne_u32 vcc, {sN}, v{tmp}")
        p(f"s_cmp_gt_u32 {sPC}, {SPIN}\ns_cbranch_scc1 {E}\ns_cbranch_vccnz {L}\n{E}:")
    def rowhop(self, kind, tmp, between=None, own=False):
        p = self.p; mode = self.opt.get("hop", "bar")
        if mode == "bar":
            p(f"s_lshl_b32 {sT5}, {sHG}, 2\ns_add_u32 {sT5}, {sT5}, {sFR}\nv_and_b32 v{tmp+2}, 7, v1\nv_lshlrev_b32 v{tmp+2}, 2, v{tmp+2}")
            p.waitall(); self.barrier()
            L = self.onwave(0); self.setflag(sT5, tmp, True, 128 * kind); p(f"{L}:")
        else:
            p(f"s_lshl_b32 {sT5}, {sHG}, 4\ns_lshl_b32 {sPC}, {sW}, 2\ns_add_u32 {sT5}, {sT5}, {sPC}\ns_add_u32 {sT5}, {sT5}, {sFR}")
            if own and mode == "wave": p(f"v_and_b32 v{tmp+2}, 7, v1\nv_lshl_add_u32 v{tmp+2}, v{tmp+2}, 4, {sPC}")
            else: p(f"v_and_b32 v{tmp+2}, 31, v1\nv_lshlrev_b32 v{tmp+2}, 2, v{tmp+2}")
            p.waitall(); self.setflag(sT5, tmp, True, 128 * kind)
        if between: between()
        if mode == "wave": self.poll(tmp + 2, sFR, tmp + 1, off=128 * kind); return
        L = self.onwave(0); self.poll(tmp + 2, sFR, tmp + 1, off=128 * kind); p(f"{L}:")
        self.barrier()
    def last_of(self, word, count, t):
        p = self.p; L = p.lab("nl")
        p(f"s_mov_b64 exec, 1\nv_mov_b32 v{t}, {LM_SY + 4*word}\nv_mov_b32 v{t+1}, 1")
        h = p(f"ds_add_rtn_u32 v{t+1}, v{t}, v{t+1}")
        p("s_mov_b64 exec, -1"); p.wait(h)
        p(f"v_readfirstlane_b32 {sT5}, v{t+1}\ns_cmp_lg_u32 {sT5}, {count - 1}\ns_cbranch_scc1 {L}")
        return L
    def lds_signal(self, word, t, val=1):
        self.p(f"s_mov_b64 exec, 1\nv_mov_b32 v{t}, {LM_SY + 4*word}\nv_mov_b32 v{t+1}, {val}\nds_add_u32 v{t}, v{t+1}\ns_mov_b64 exec, -1")
    def lds_wait(self, word, val, t):
        p = self.p; L = p.lab("lw"); E = p.lab("lwe")
        p.waitall(vm=False)
        p(f"v_mov_b32 v{t}, {LM_SY + 4*word}\ns_mov_b32 {sPC}, 0\n{L}:\nds_read_b32 v{t+1}, v{t}\ns_add_u32 {sPC}, {sPC}, 1\ns_waitcnt lgkmcnt(0)")
        p(f"v_readfirstlane_b32 {sT5}, v{t+1}\ns_cmp_gt_u32 {sPC}, {SPIN*20}\ns_cbranch_scc1 {E}\ns_cmp_lt_u32 {sT5}, {val}\ns_cbranch_scc1 {L}\n{E}:")
    def onehot(self, dst, idx, val_lo, val_hi, t):
        p = self.p
        p(f"v_and_b32 v{t}, 1, v{idx}\nv_cmp_eq_u32 vcc, 1, v{t}\nv_mov_b32 v{t}, {val_lo}\nv_mov_b32 v{t+1}, {val_hi}\nv_cndmask_b32 v{t}, v{t}, v{t+1}, vcc\nv_ashrrev_i32 v{t+1}, 1, v{idx}")
        for jj in range(4): p(f"v_cmp_eq_u32 vcc, {jj}, v{t+1}\nv_cndmask_b32 v{dst+jj}, 0, v{t}, vcc")
    def unpack(self, dst, src, n):
        for d in range(n): self.p(f"v_lshlrev_b32 v{dst+2*d}, 16, v{src+d}\nv_and_b32 v{dst+2*d+1}, {sHI}, v{src+d}")
    def rowstats(self, X, T, which, local):
        p = self.p; S, Q = T, T + 2
        p("s_mov_b32 exec_lo, 0")
        for r in range(4): p(f"v_mov_b32 v{X+16+r}, 0")
        p("s_mov_b32 exec_lo, -1")
        p(f"v_pk_add_f32 {vr(S,2)}, {vr(X,2)}, {vr(X+2,2)}\nv_pk_mul_f32 {vr(Q,2)}, {vr(X,2)}, {vr(X,2)}")
        for i in range(2, 20, 2):
            if i > 2: p(f"v_pk_add_f32 {vr(S,2)}, {vr(S,2)}, {vr(X+i,2)}")
            p(f"v_pk_fma_f32 {vr(Q,2)}, {vr(X+i,2)}, {vr(X+i,2)}, {vr(Q,2)}")
        p(f"""v_add_f32 v{S}, v{S}, v{S+1}
        v_add_f32 v{Q}, v{Q}, v{Q+1}
        s_lshl_b32 {sT1}, {sRB}, 3
        s_add_u32 {sT1}, {sT1}, {sHG}
        v_permlane16_swap_b32 v{S}, v{Q}
        v_add_f32 v{S}, v{S}, v{Q}
        v_mov_b32 v{Q}, v{S}
        s_lshl_b32 {sT1}, {sT1}, 9
        s_add_u32 {sT1}, {sT1}, {O_ST[which]}
        v_permlane32_swap_b32 v{S}, v{Q}
        v_add_f32 v{S}, v{S}, v{Q}""")
        t = f"s_mov_b32 exec_hi, 0\nbuffer_store_dword v{S}, v{vSTA}, {WS}, {sT1} offen{'' if local else ' sc1'}\ns_mov_b32 exec_hi, -1"
        self.dual(t) if local else p(t)
    def tile_stats_load(self, which, d, t):
        p = self.p
        p(f"""v_and_b32 v{t}, 15, v1
        v_lshlrev_b32 v{t}, 3, v{t}
        v_lshrrev_b32 v{t+1}, 4, v1
        v_lshl_add_u32 v{t}, v{t+1}, 10, v{t}
        s_lshl_b32 {sT1}, {sRB}, 12
        s_lshl_b32 {sT2}, {sW}, 7
        s_add_u32 {sT1}, {sT1}, {sT2}
        s_add_u32 {sT1}, {sT1}, {O_ST[which]}""")
        return lambda: p(f"buffer_load_dwordx2 {vr(d,2)}, v{t}, {WS}, {sT1} offen sc1\nbuffer_load_dwordx2 {vr(d+2,2)}, v{t}, {WS}, {sT1} offen offset:512 sc1")
    def tile_stats_finish(self, d, R):
        self.p(f"""v_pk_add_f32 {vr(d,2)}, {vr(d,2)}, {vr(d+2,2)}
        s_mov_b32 {sT2}, {INV576}
        v_permlane16_swap_b32 v{d}, v{d+1}
        v_add_f32 v{d}, v{d}, v{d+1}
        v_mov_b32 v{d+1}, v{d}
        v_permlane32_swap_b32 v{d}, v{d+1}
        v_add_f32 v{d}, v{d}, v{d+1}
        v_mul_f32 v{d}, {INV576}, v{d}
        v_mov_b32 v{d+1}, v{d}
        v_permlane16_swap_b32 v{d}, v{d+1}
        v_fma_f32 v{d+1}, -v{d}, v{d}, v{d+1}
        v_max_f32 v{d+1}, 0, v{d+1}
        v_add_f32 v{d+1}, {EPS}, v{d+1}
        v_rsq_f32 v{R}, v{d+1}
        v_mul_f32 v{R+1}, -v{d}, v{R}""")
    def norm_tile(self, Tt, X, R):
        for i in range(0, 20, 2): self.p(f"v_pk_fma_f32 {vr(Tt+i,2)}, {vr(X+i,2)}, {vr(R,2)}, {vr(R,2)} op_sel:[0,0,1] op_sel_hi:[1,0,1]")
    def publish_z(self, L, X, Tt, Y, tmp):
        p = self.p
        p(f"s_mul_i32 {sT0}, {sHG}, 4608\ns_add_u32 {sT0}, {sT0}, {sZ}\ns_add_u32 {sT2}, {sT0}, 4096")
        for i in range(0, 20, 2): p(f"v_pk_fma_f32 {vr(X+i,2)}, {vr(Tt+i,2)}, {vr(Y+i,2)}, {vr(X+i,2)}")
        for d in range(10): p(f"v_cvt_pk_bf16_f32 v{RES+d}, v{X+2*d}, v{X+2*d+1}")
        self.dual(f"""buffer_store_dwordx4 {vr(RES,4)}, v{vXT}, {WS}, {sT0} offen
        buffer_store_dwordx4 {vr(RES+4,4)}, v{vXT}, {WS}, {sT0} offen offset:2048
        s_mov_b32 exec_hi, 0
        buffer_store_dwordx2 {vr(RES+8,2)}, v223, {WS}, {sT2} offen
        s_mov_b32 exec_hi, -1""")
        self.rowstats(X, tmp, 1, True)
        self.stamp("zst")
        self.rowhop(3 * L, tmp)
        self.stamp("zseen")

    def prologue(self):
        p = self.p
        if self.opt.get("first"): self.stamp("first")
        p(f"""s_cmp_ge_u32 s2, 256
        s_cbranch_scc1 L_end
        s_load_dwordx16 s[8:23], s[0:1], 0
        s_load_dwordx8 s[24:31], s[0:1], 64
        s_load_dwordx2 s[32:33], s[0:1], 96
        v_and_b32 v1, 63, v0
        v_lshrrev_b32 v2, 6, v0
        s_and_b32 {sX}, s2, 7
        v_readfirstlane_b32 {sW}, v2
        s_lshr_b32 {sJ}, s2, 3
        s_and_b32 {sHG}, {sJ}, 7
        s_lshr_b32 {sI4}, {sJ}, 3
        s_lshl_b32 {sRB}, {sX}, 2
        s_add_u32 {sRB}, {sRB}, {sI4}""")
        for i in range(3):
            p(f"""v_add_u32 v5, {256*i}, v0
            v_mul_u32_u24 v6, 7282, v5
            v_lshrrev_b32 v6, 16, v6
            v_mul_u32_u24 v7, 9, v6
            v_sub_u32 v7, v5, v7
            v_mul_u32_u24 v6, 1152, v6
            v_lshl_add_u32 v{2+i}, v7, 4, v6""")
        p(f"""s_mul_i32 {sT0}, {sJ}, {64*1152}
        s_mul_i32 {sT1}, {sX}, 144
        s_add_u32 {sT0}, {sT0}, {sT1}
        s_sub_u32 {sT2}, {sT0}, {4*1152}
        v_add_u32 v6, {sT2}, v2
        v_add_u32 v7, {sT2}, v3
        v_add_u32 v8, {sT2}, v4
        s_lshl_b32 {sW10}, {sW}, 10
        s_waitcnt lgkmcnt(0)
        s_mov_b32 s4, s32
        s_mov_b32 s5, s33
        s_mov_b32 s6, {WS_USED}
        s_mov_b32 s7, 0x20000""")
        self.srd(SA, "k", TEN); self.srd(SB, "v", TEN)

    def phase0(self):
        p = self.p; o = self.opt
        self.stamp("start")
        if self.opt.get("skew"):
            p(f"s_lshl_b32 s88, s2, 2\ns_add_u32 s88, s88, {O_PROF}\nv_mov_b32 v9, s34\nbuffer_store_dword v9, off, {WS}, s88 sc1")
        for i in range(2):
            p(f"s_add_u32 m0, {sW10}, {L_K + 4096*i}\nbuffer_load_dwordx4 v{6+i}, {SA}, 0 offen lds")
            p(f"s_add_u32 m0, {sW10}, {L_V + 4096*i}\nbuffer_load_dwordx4 v{2+i}, {SB}, {sT0} offen lds")
        L1 = p.lab("t3")
        p(f"s_cmp_ge_u32 {sW}, 2\ns_cbranch_scc1 {L1}")
        p(f"s_add_u32 m0, {sW10}, {L_K + 8192}\nbuffer_load_dwordx4 v8, {SA}, 0 offen lds")
        p(f"s_cmp_ge_u32 {sW}, 1\ns_cbranch_scc1 {L1}")
        p(f"s_mov_b32 m0, {L_V + 8192}\nbuffer_load_dwordx4 v4, {SB}, {sT0} offen lds")
        p(f"{L1}:")
        self.srd(SD, "shift", 4608)
        p(f"""s_mov_b32 {sHI}, 0xffff0000
        s_mov_b32 s78, 0x00ffffff
        s_mov_b32 s79, 0x00ffffff
        s_mov_b32 {sONE}, 0x3f80
        s_mov_b32 {sONEH}, 0x3f800000
        s_mov_b32 {sONE2}, 0x3f803f80
        s_cmp_eq_u32 {sW}, 2
        s_cselect_b64 s[80:81], -1, 0
        v_and_b32 v40, 15, v1
        v_lshrrev_b32 v41, 4, v1
        v_and_b32 v42, 3, v1
        v_bfe_u32 v43, v1, 2, 2
        v_lshl_add_u32 v43, v41, 3, v43
        s_mul_i32 {sT3}, {sX}, 72
        s_lshl_b32 {sT4}, {sJ}, 6""")
        for s in range(3):
            p(f"""s_cmp_eq_u32 {sW}, 2
            s_cselect_b32 {sT1}, {32*s}, {sW10}
            s_cselect_b32 {sT2}, 48, {16*s}""")
            p(f"s_cbranch_scc0 Lu{s}\ns_lshl_b32 {sT1}, {sT1}, 5\nLu{s}:\ns_lshr_b32 {sT1}, {sT1}, 5")
            if s < 2:
                p(f"""v_add_u32 v44, {sT1}, v43
                v_lshl_add_u32 v45, v42, 2, {sT2}
                v_lshl_add_u32 v46, v41, 3, {sT1}
                v_add_u32 v47, {sT2}, v40""")
            else:
                p(f"""v_lshrrev_b32 v5, 1, v42
                v_lshlrev_b32 v5, 5, v5
                v_mov_b32 v6, {sT1}
                v_cndmask_b32 v5, v6, v5, s[80:81]
                v_add_u32 v44, v5, v43
                v_and_b32 v5, 1, v42
                v_lshl_add_u32 v5, v5, 2, 64
                v_lshl_add_u32 v45, v42, 2, 32
                v_cndmask_b32 v45, v45, v5, s[80:81]
                v_lshrrev_b32 v5, 3, v40
                v_lshlrev_b32 v5, 5, v5
                v_cndmask_b32 v5, v6, v5, s[80:81]
                v_lshl_add_u32 v46, v41, 3, v5
                v_and_b32 v5, 7, v40
                v_add_u32 v5, 64, v5
                v_add_u32 v47, 32, v40
                v_cndmask_b32 v47, v47, v5, s[80:81]""")
            p(f"""v_add_u32 v47, {sT3}, v47
            v_lshlrev_b32 v5, 3, v47""")
            hcrit = p(f"buffer_load_dwordx2 {vr(26+2*s,2)}, v5, {SD}, 0 offen")
            p(f"""v_mul_u32_u24 v44, 144, v44
            v_lshl_add_u32 v{32+s}, v45, 1, v44
            v_add_u32 v46, {sT4}, v46
            v_sub_u32 v46, 2040, v46
            v_lshlrev_b32 v46, 1, v46
            v_lshl_add_u32 v{36+s}, v47, 12, v46""")
        hcrit = p(f"buffer_load_dword v9, off, {WS}, 0 sc1")
        p(f"v_lshlrev_b32 v6, 2, v1\nv_add_u32 v6, {LM_SY}, v6\nv_mov_b32 v7, 0\nds_write_b32 v6, v7")
        p.waitall(vm=False)
        self.barrier()
        self.stamp("crit")
        self.srd(SA, "ssm", TEN); self.srd(SB, "D", 1152)
        p(f"""s_lshl_b32 {sT1}, {sW}, 5
        s_add_u32 {sT1}, {sT1}, {sJ}
        s_add_u32 {sCH}, {sT3}, {sT1}
        s_mul_i32 {sLC}, {sW}, {CONV_STRIDE}
        s_add_u32 {sLC}, {sLC}, {L_W}
        v_lshlrev_b32 v{v16L}, 4, v1
        s_cmp_ge_u32 {sT1}, 72
        s_cselect_b32 {sCONV}, 0, 1""")
        LW3, LNC, LJ = p.lab("w3"), p.lab("nc"), p.lab("j")
        p(f"s_cbranch_scc1 {LNC}")
        p(f"s_lshl_b32 {sT1}, {sCH}, 12\ns_lshl_b32 {sT2}, {sCH}, 1\ns_add_u32 m0, {sLC}, 32")
        for i in range(4): p(f"buffer_load_dwordx4 v{v16L}, {SA}, {sT1} offen offset:{1024*i} lds")
        self.hh = p(f"buffer_load_ushort v45, off, {SB}, {sT2}")
        self.fold_prep(); self.conv_addr()
        p.wait(hcrit); p(f"s_branch {LJ}\n{LNC}:\ns_cmp_eq_u32 {sW}, 3\ns_cbranch_scc1 {LW3}")
        self.fold_prep()
        p.wait(hcrit); p(f"s_branch {LJ}\n{LW3}:")
        self.srd(SC, "wqkv", 576 * 3456); self.srd(SD, "wphi", 32 * 648); self.srd(SE, "wo", 576 * 1152)
        p(f"s_mul_i32 {sT1}, {sHG}, 2592\ns_mov_b32 m0, {L_PHI}")
        for i in range(3): p(f"buffer_load_dwordx4 v{v16L}, {SD}, {sT1} offen offset:{1024*i} lds")
        p(f"s_mul_i32 {sT1}, {sHG}, 144\ns_add_u32 {sT2}, {sT1}, 1152\ns_add_u32 {sT3}, {sT1}, 2304\nv_mov_b32 v47, 0x40000000")
        for i in range(4):
            p(f"""v_add_u32 v5, {64*i}, v1
            v_mul_u32_u24 v6, 7282, v5
            v_lshrrev_b32 v6, 16, v6
            v_mul_u32_u24 v7, 9, v6
            v_sub_u32 v5, v5, v7
            v_and_b32 v7, 7, v6
            v_lshrrev_b32 v6, 3, v6
            v_lshl_add_u32 v6, v6, 5, {sRB}
            v_cmp_gt_u32 vcc, 72, v6
            v_mul_u32_u24 v8, 57, v6
            s_mov_b64 s[86:87], vcc
            v_lshrrev_b32 v8, 9, v8
            v_mul_u32_u24 v8, 9, v8
            v_sub_u32 v6, v6, v8
            v_cmp_eq_u32 vcc, 8, v6
            v_lshlrev_b32 v8, 3, v8
            v_lshrrev_b32 v40, 2, v6
            v_and_b32 v41, 3, v6
            v_lshlrev_b32 v41, 2, v41
            v_lshl_add_u32 v40, v40, 5, v41
            v_lshrrev_b32 v41, 2, v7
            v_lshl_add_u32 v40, v41, 4, v40
            v_and_b32 v41, 3, v7
            v_add_u32 v40, v40, v41
            v_add_u32 v41, 64, v7
            v_cndmask_b32 v40, v40, v41, vcc
            v_add_u32 v40, v40, v8
            v_mul_u32_u24 v40, 3456, v40
            v_lshl_add_u32 v40, v5, 4, v40
            v_cndmask_b32 v40, v47, v40, s[86:87]
            s_mov_b32 m0, {L_WR + 1024*i}
            buffer_load_dwordx4 v40, {SC}, {sT1} offen lds
            s_mov_b32 m0, {L_WR + 4096 + 1024*i}
            buffer_load_dwordx4 v40, {SC}, {sT2} offen lds
            s_mov_b32 m0, {L_WR + 8192 + 1024*i}
            buffer_load_dwordx4 v40, {SC}, {sT3} offen lds
            v_mad_u32_u24 v41, v6, 9, v7
            v_mad_u32_u24 v42, v7, 9, 8
            v_cndmask_b32 v41, v41, v42, vcc
            v_add_u32 v41, v41, v8
            v_mul_u32_u24 v41, 1152, v41
            v_lshl_add_u32 v41, v5, 4, v41
            v_cndmask_b32 v41, v47, v41, s[86:87]
            s_mov_b32 m0, {L_WOT + 1024*i}""")
            hf = p(f"buffer_load_dwordx4 v41, {SE}, {sT1} offen lds")
        self.fold_prep()
        p.wait(hcrit); p(f"{LJ}:")
        p("v_add_u32 v9, 1, v9"); self.stamp("landed"); self.barrier()
        p(f"v_readfirstlane_b32 {sN}, v9\ns_getreg_b32 {sT4}, hwreg(HW_REG_XCC_ID, 0, 4)\ns_lshl_b32 {sT1}, {sN}, 4\ns_or_b32 {sT4}, {sT4}, {sT1}")
        self.stamp("bar1")
        LU3, LUE = p.lab("u3"), p.lab("ue")
        p(f"s_cmp_eq_u32 {sW}, 3\ns_cbranch_scc1 {LU3}")
        hs = []
        for s in range(3):
            b = 48 + 10 * s
            h = [p(f"ds_read_b64_tr_b16 {vr(b+2*i,2)}, v{32+s} offset:{L_K + 576*i}") for i in range(3)]
            h += [p(f"ds_read_b64_tr_b16 {vr(b+6+2*i,2)}, v{32+s} offset:{L_V + 576*i}") for i in range(2)]
            hs.append(h)
        lo = lambda d, s: p(f"v_lshlrev_b32 v{d}, 16, v{s}")
        hi = lambda d, s: p(f"v_and_b32 v{d}, {sHI}, v{s}")
        p(f"s_mov_b32 {sT0}, {O_U}")
        for s in range(3):
            b = 48 + 10 * s; P, W, A, V, O = 80, 94, 98, 106, 114 + 4 * s
            lo(W, 26+2*s); hi(W+1, 26+2*s); lo(W+2, 27+2*s); hi(W+3, 27+2*s)
            p.wait(*hs[s])
            hi(P+0, b); hi(P+1, b+2); lo(P+2, b+1); lo(P+3, b+3); hi(P+4, b+1); hi(P+5, b+3)
            lo(P+6, b+2); lo(P+7, b+4); hi(P+8, b+2); hi(P+9, b+4); lo(P+10, b+3); lo(P+11, b+5); hi(P+12, b+3); hi(P+13, b+5)
            Pp = lambda x: vr(P + 2 * (x + 3), 2)
            for q in range(4): p(f"v_pk_mul_f32 {vr(A+2*q,2)}, {Pp(q)}, {vr(W,2)} op_sel_hi:[1,0]")
            for q in range(4): p(f"v_pk_fma_f32 {vr(A+2*q,2)}, {Pp(q-1)}, {vr(W,2)}, {vr(A+2*q,2)} op_sel:[0,1,0]")
            lo(V+0, b+6); lo(V+1, b+8); hi(V+2, b+6); hi(V+3, b+8); lo(V+4, b+7); lo(V+5, b+9); hi(V+6, b+7); hi(V+7, b+9)
            for q in range(4): p(f"v_pk_fma_f32 {vr(A+2*q,2)}, {Pp(q-2)}, {vr(W+2,2)}, {vr(A+2*q,2)} op_sel_hi:[1,0,1]")
            for q in range(4): p(f"v_pk_fma_f32 {vr(A+2*q,2)}, {Pp(q-3)}, {vr(W+2,2)}, {vr(A+2*q,2)} op_sel:[0,1,0]")
            for q in range(4): p(f"v_pk_mul_f32 {vr(A+2*q,2)}, {vr(A+2*q,2)}, {vr(V+2*q,2)}")
            p(f"""v_cvt_pk_bf16_f32 v{O}, v{A+7}, v{A+5}
            v_cvt_pk_bf16_f32 v{O+1}, v{A+3}, v{A+1}
            v_cvt_pk_bf16_f32 v{O+2}, v{A+6}, v{A+4}
            v_cvt_pk_bf16_f32 v{O+3}, v{A+2}, v{A}
            buffer_store_dwordx4 {vr(O,4)}, v{36+s}, {WS}, {sT0} offen sc1""")
        self.stamp("ust")
        self.tables()
        p.waitall()
        L5 = self.last_of(5, 3, 5)
        p(f"""s_lshl_b32 {sT0}, {sX}, 7
        s_lshl_b32 {sT1}, {sJ}, 2
        s_add_u32 {sT0}, {sT0}, {sT1}
        s_add_u32 {sT0}, {sT0}, {O_FU}
        s_mov_b64 exec, 1
        v_mov_b32 v5, {sT4}
        buffer_store_dword v5, off, {WS}, {sT0} sc1
        s_mov_b64 exec, -1
        {L5}:""")
        self.stamp("uflag")
        self.lds_wait(6, 1, 26)
        p(f"s_branch {LUE}\n{LU3}:")
        p.wait(hf); self.lds_signal(6, 26); p(f"{LUE}:")
        self.fold()
        self.stamp("p0end")

    def fold_prep(self):
        p = self.p
        p(f"""v_and_b32 v5, 15, v1
        s_lshl_b32 {sT1}, {sW}, 4
        v_add_u32 v7, {sT1}, v5
        v_lshrrev_b32 v5, 4, v1
        v_lshlrev_b32 v{vSTA}, 3, v7
        v_lshl_add_u32 v{vSTA}, v5, 2, v{vSTA}
        v_and_b32 v7, 31, v7
        v_lshlrev_b32 v7, 4, v7
        s_lshr_b32 {sT1}, {sW}, 1
        s_mul_i32 {sT1}, {sT1}, {SUB}
        v_add_u32 v7, {sT1}, v7
        v_lshl_add_u32 v{vXT}, v5, 9, v7
        s_lshl_b32 {sHEAD}, {sHG}, 2
        s_add_u32 {sHEAD}, {sHEAD}, {sW}
        s_mul_i32 {sWP}, {sHEAD}, 73728
        s_add_u32 {sWP}, {sWP}, {O_WP}
        s_mul_i32 {sZ}, {sRB}, 73728
        s_add_u32 {sZ}, {sZ}, {self.OZ}
        s_lshl_b32 {sFR}, {sRB}, 10
        s_add_u32 {sFR}, {sFR}, {O_FR}
        s_lshl_b32 {sG4}, {sX}, 3
        s_add_u32 {sG4}, {sG4}, {sHG}
        s_lshl_b32 {sG4}, {sG4}, 2
        v_mov_b32 v160, 0x40000000
        v_mov_b32 v214, v160
        v_mov_b32 v212, 0
        v_mov_b32 v213, 0
        v_cndmask_b32 v15, v160, v{v16L}, {M48}
        v_bfe_u32 v5, v1, 3, 2
        v_and_b32 v6, 3, v1
        v_lshl_add_u32 v190, v5, 2, v6
        v_bfe_u32 v191, v1, 2, 1
        v_mul_u32_u24 v5, 9, v191
        v_add_u32 v5, v5, v190
        s_mul_i32 {sT0}, {sW}, 648
        s_add_u32 {sT0}, {sT0}, {L_PHI}
        v_lshl_add_u32 v161, v5, 1, {sT0}
        v_lshrrev_b32 v7, 5, v1
        v_mul_u32_u24 v8, 288, v7
        v_add_u32 v162, v161, v8
        v_bfe_u32 v8, v1, 4, 1
        v_lshl_add_u32 v8, v8, 1, v191
        v_lshl_add_u32 v6, v8, 3, v6
        v_bfe_u32 v8, v1, 3, 1
        v_lshl_add_u32 v6, v8, 2, v6
        v_mul_u32_u24 v6, 144, v6
        s_mul_i32 {sT0}, {sW}, 36
        s_add_u32 {sT0}, {sT0}, {L_WR}
        v_add_u32 v163, {sT0}, v6
        v_lshl_add_u32 v164, v7, 4, v163
        v_lshl_add_u32 v8, v7, 5, {sRB}
        v_and_b32 v6, 31, v1
        v_lshlrev_b32 v6, 4, v6
        v_lshrrev_b32 v167, 1, v8
        v_lshl_add_u32 v6, v167, 10, v6
        v_and_b32 v8, 1, v8
        v_lshl_add_u32 v167, v8, 9, v6
        v_lshlrev_b32 v7, 3, v7
        v_sub_u32 v5, v5, v7
        v_mov_b32 v7, -64
        v_add_u32 v8, -9, v5
        v_cmp_gt_u32 vcc, 9, v190
        v_cndmask_b32 v8, v8, v7, vcc""")
        self.onehot(174, 8, sONE, sONEH, 168)
        p(f"""v_add_u32 v8, -2, v5
        v_add_u32 v6, -9, v190
        v_cmp_lt_u32 vcc, 1, v6
        v_cndmask_b32 v8, v8, v7, vcc""")
        self.onehot(178, 8, sONE, sONEH, 168)
        p(f"""v_add_u32 v8, -16, v8
        v_cmp_gt_u32 vcc, 32, v1
        v_cndmask_b32 v8, v7, v8, vcc""")
        self.onehot(182, 8, sONE, sONEH, 168)
        p("v_mov_b32 v188, v182\nv_mov_b32 v182, 0\nv_mov_b32 v187, 0\nv_mov_b32 v189, 0\nv_mov_b32 v207, 0\nv_add_u32 v165, 4096, v164\nv_add_u32 v166, 8192, v164")

    def fold(self):
        p = self.p
        hph = [p(f"ds_read_u16 v{32+e}, v162 offset:{36*e}") for e in range(8)] + [p(f"ds_read_u16 v{40+e}, v161 offset:{576+36*e}") for e in range(2)]
        for m in range(3):
            p(f"ds_read2_b32 {vr(192+4*m,2)}, v{164+m} offset0:0 offset1:1\nds_read2_b32 {vr(194+4*m,2)}, v{164+m} offset0:2 offset1:3")
        for m in range(3): hW = p(f"ds_read_b32 v{204+m}, v163 offset:{4096*m + 32}")
        p(f"""v_bfe_u32 v30, v1, 2, 2
        v_mul_u32_u24 v30, 144, v30
        s_mul_i32 {sT0}, {sW}, 1152
        s_add_u32 {sT0}, {sT0}, {L_WOT}
        v_add_u32 v30, {sT0}, v30
        v_and_b32 v31, 1, v1
        v_lshl_add_u32 v66, v31, 3, v30
        v_and_b32 v31, 3, v1
        v_lshl_add_u32 v30, v31, 3, v30
        v_lshrrev_b32 v31, 4, v1
        v_lshl_add_u32 v30, v31, 5, v30""")
        p.wait(*hph)
        p("""ds_read_b64_tr_b16 v[68:69], v30
        ds_read_b64_tr_b16 v[70:71], v30 offset:576
        ds_read_b64_tr_b16 v[72:73], v66 offset:128""")
        hwt = p("ds_read_b64_tr_b16 v[74:75], v66 offset:704")
        p("v_cmp_gt_u32 vcc, 9, v190")
        for jj in range(4): p(f"v_lshl_or_b32 v{170+jj}, v{33+2*jj}, 16, v{32+2*jj}")
        p("v_lshl_or_b32 v183, v41, 16, v40")
        for jj in range(4): p(f"v_cndmask_b32 v{170+jj}, 0, v{170+jj}, vcc")
        p("v_cndmask_b32 v183, 0, v183, vcc\ns_mov_b32 exec_lo, 0\nv_mov_b32 v183, 0\ns_mov_b32 exec_lo, -1\nv_mov_b32 v186, v183")
        p.wait(hW)
        p(f"""{M32} v[128:143], v[196:199], v[170:173], 0
        {M32} v[144:159], v[192:195], v[170:173], 0
        {M32} v[128:143], v[200:203], v[174:177], v[128:143]
        {M32} v[144:159], v[200:203], v[178:181], v[144:159]
        {M32} v[128:143], v[204:207], v[182:185], v[128:143]
        {M32} v[144:159], v[204:207], v[186:189], v[144:159]""")
        Lw = p.lab("nwo")
        p(f"""s_lshl_b32 {sT2}, {sW}, 5
        s_add_u32 {sT2}, {sT2}, {sRB}
        s_cmp_ge_u32 {sT2}, 72
        s_cbranch_scc1 {Lw}
        v_and_b32 v66, 15, v1
        v_lshlrev_b32 v66, 4, v66
        v_lshl_add_u32 v66, v31, 10, v66
        s_lshr_b32 {sT0}, {sT2}, 2
        s_mul_i32 {sT0}, {sT0}, 4608
        s_mul_i32 {sT1}, {sHG}, 82944
        s_add_u32 {sT0}, {sT0}, {sT1}
        s_add_u32 {sT0}, {sT0}, {O_WO}
        s_and_b32 {sT1}, {sT2}, 3
        s_lshl_b32 {sT1}, {sT1}, 7
        s_add_u32 {sT2}, {sT0}, {sT1}
        s_add_u32 {sT2}, {sT2}, 4096
        s_lshl_b32 {sT1}, {sT1}, 1
        s_add_u32 {sT0}, {sT0}, {sT1}""")
        p.wait(hwt)
        p(f"""buffer_store_dwordx4 v[68:71], v66, {WS}, {sT0} offen sc1
        s_mov_b64 exec, 0xff
        buffer_store_dwordx4 v[72:75], v66, {WS}, {sT2} offen sc1
        s_mov_b64 exec, -1
        {Lw}:""")
        p.waitall(vm=False)
        p(f"""s_lshl_b32 {sT1}, {sHEAD}, 5
        s_add_u32 {sT1}, {sT1}, {sRB}
        s_lshl_b32 {sT1}, {sT1}, 8
        s_add_u32 {sT1}, {sT1}, {O_CS}
        s_add_u32 {sT2}, {sWP}, 32768
        s_add_u32 {sT0}, {sWP}, 36864
        s_add_u32 {sT3}, {sWP}, {36864 + 32768}
        v_mov_b32 v64, 0
        v_mov_b32 v65, 0
        v_lshlrev_b32 v26, 2, v1""")
        for d in range(8): p(f"v_cvt_pk_bf16_f32 v{48+d}, v{128+2*d}, v{129+2*d}")
        for d in range(8): p(f"v_cvt_pk_bf16_f32 v{56+d}, v{144+2*d}, v{145+2*d}")
        Lw = p.lab("n3")
        p(f"""buffer_store_dwordx4 v[48:51], v167, {WS}, {sWP} offen sc1
        buffer_store_dwordx4 v[56:59], v167, {WS}, {sT0} offen sc1
        s_cmp_ge_u32 {sRB}, 8
        s_cbranch_scc1 {Lw}
        s_mov_b32 exec_hi, 0
        buffer_store_dwordx4 v[52:55], v167, {WS}, {sT2} offen sc1
        buffer_store_dwordx4 v[60:63], v167, {WS}, {sT3} offen sc1
        s_mov_b32 exec_hi, -1
        {Lw}:""")
        for d in range(8):
            if d == 4: p("s_mov_b32 exec_hi, 0")
            p(f"v_dot2c_f32_bf16 v64, {sONE2}, v{48+d}\nv_dot2c_f32_bf16 v65, {sONE2}, v{56+d}")
        p("s_mov_b32 exec_hi, -1")
        p(f"v_permlane32_swap_b32 v64, v65\nv_add_f32 v64, v64, v65\nbuffer_store_dword v64, v26, {WS}, {sT1} offen sc1")

    def upoll(self):
        p = self.p; o = self.opt
        Lr, Le = p.lab("pu"), p.lab("pue")
        p(f"""v_and_b32 v27, 31, v1
        v_lshlrev_b32 v27, 2, v27
        s_lshl_b32 {sT0}, {sX}, 7
        s_add_u32 {sT0}, {sT0}, {O_FU}
        s_mov_b32 {sPC}, 0
        {Lr}:
        buffer_load_dword v28, v27, {WS}, {sT0} offen sc1
        s_add_u32 {sPC}, {sPC}, 1
        s_waitcnt vmcnt(0)
        v_xor_b32 v28, {sT4}, v28
        v_cmp_lt_u32 vcc, 15, v28
        s_cmp_gt_u32 {sPC}, {SPIN}
        s_cbranch_scc1 {Le}
        s_cbranch_vccnz {Lr}
        {Le}:
        v_cmp_ne_u32 vcc, 0, v28
        s_nop 4
        s_cmp_eq_u64 vcc, 0
        s_cselect_b32 {sT0}, {1 if o.get('slow') else 2}, 1""")
        self.lds_signal(1, 27, sT0)

    def conv_addr(self):
        p = self.p
        p("v_and_b32 v216, 15, v1\nv_lshrrev_b32 v217, 4, v1")
        p(f"""v_add_u32 v218, 1, v216
        v_and_b32 v219, 3, v218
        v_mul_u32_u24 v219, {CP}, v219
        v_lshrrev_b32 v218, 2, v218
        v_lshl_add_u32 v219, v218, 3, v219
        v_lshl_add_u32 v219, v217, 4, v219
        v_add_u32 v212, {sLC}, v219
        v_lshlrev_b32 v218, 5, v216
        v_lshlrev_b32 v219, 4, v217
        v_sub_u32 v219, v219, v218
        s_add_u32 {sT5}, {sLC}, {L_CU + 4064 - 3584}
        v_add_u32 v213, {sT5}, v219
        v_and_b32 v218, 1, v217
        v_lshlrev_b32 v218, 2, v218
        v_lshrrev_b32 v219, 2, v216
        v_add_u32 v218, v218, v219
        v_mul_u32_u24 v218, 73728, v218
        v_and_b32 v219, 3, v216
        v_lshl_add_u32 v218, v219, 5, v218
        v_lshrrev_b32 v219, 1, v217
        v_lshl_add_u32 v214, v219, 4, v218""")

    def tables(self):
        p = self.p
        L7 = p.lab("noconv2")
        p(f"s_cmp_eq_u32 {sCONV}, 0\ns_cbranch_scc1 {L7}\nv_add_u32 v27, {sLC}, v{v16L}")
        p.raw("s_waitcnt vmcnt(3)"); p.assume_done(self.hh)
        h = []
        for i in range(4):
            p(f"ds_read_b128 {vr(224+6*i,4)}, v27 offset:{32 + 1024*i}")
            h.append(p(f"ds_read_b64 {vr(228+6*i,2)}, v27 offset:{48 + 1024*i}"))
        p(f"""v_mov_b32 v32, 0
        v_mov_b32 v33, 0
        v_mov_b32 v34, 0
        v_mov_b32 v35, 0
        v_lshlrev_b32 v26, 3, v1
        v_add_u32 v26, {sLC}, v26
        ds_write_b64 v26, v[32:33] offset:{L_CU + 4096}""")
        for i in range(4):
            D = 224 + 6 * i; F = 64 + 12 * (i & 1)
            p.wait(h[i])
            if i == 0: p("v_readfirstlane_b32 s86, v224\nv_readfirstlane_b32 s87, v225")
            for q in range(4): p(f"v_alignbit_b32 v{F+q}, v{D+q+1}, v{D+q}, 16")
            p(f"ds_write_b128 v27, {vr(F,4)} offset:{CP + 32 + 1024*i}")
            for q in range(4): p(f"v_mov_b32 v{F+4+q}, v{D+q+1}")
            p(f"ds_write_b128 v27, {vr(F+4,4)} offset:{2*CP + 32 + 1024*i}")
            for q in range(3): p(f"v_mov_b32 v{F+8+q}, v{F+q+1}")
            p(f"v_alignbit_b32 v{F+11}, v{D+5}, v{D+4}, 16")
            p(f"ds_write_b128 v27, {vr(F+8,4)} offset:{3*CP + 32 + 1024*i}")
        p(f"""v_lshlrev_b32 v28, 4, v1
        v_sub_u32 v28, 48, v28
        v_lshlrev_b64 v[36:37], v28, s[86:87]
        v_lshlrev_b64 v[36:37], 16, v[36:37]
        v_mul_u32_u24 v26, {CP}, v1
        v_add_u32 v26, {sLC}, v26
        s_mov_b64 exec, 15
        ds_write_b128 v26, v[32:35]
        ds_write_b128 v26, v[34:37] offset:16
        s_mov_b64 exec, -1
        v_and_b32 v26, 15, v1
        v_lshrrev_b32 v27, 4, v1
        v_lshlrev_b32 v28, 3, v27
        v_add_u32 v28, v28, v26
        v_sub_u32 v29, 15, v28
        v_lshlrev_b32 v44, 16, v45""")
        self.onehot(208, 29, "v45", "v44", 30)
        p(f"{L7}:")

    def wp_loads(self):
        p = self.p; out = []
        for tile in range(2):
            for ks in range(36):
                def g(f=2 * ks + tile, ks=ks, tile=tile):
                    if ks % 2 == 0: p(f"s_add_u32 {sKB}, {sWP}, {tile*36864 + ks*1024}")
                    self.hW[f] = p(f"buffer_load_dwordx4 {wreg(f)}, v{15 if tile else v16L}, {WS}, {sKB} offen offset:{(ks%2)*1024} sc1")
                out.append(g)
        return out
    def small_loads(self):
        p = self.p
        p(f"s_lshl_b32 {sT0}, {sHEAD}, 13\ns_add_u32 {sT0}, {sT0}, {O_CS}\ns_add_u32 {sT1}, {sT0}, 4096")
        for i in range(8): p(f"buffer_load_dwordx4 {vr(32+4*i,4)}, v{v16L}, {WS}, {sT0 if i < 4 else sT1} offen offset:{(i%4)*1024} sc1")

    def conv(self):
        p = self.p; o = self.opt
        self.hW = {}
        NP = self.NP = o.get("w_pre", 54)
        n1 = o.get("w_in_conv", 0)
        LE, LJ = p.lab("noconv3"), p.lab("convend")
        La, Lb = p.lab("q3"), p.lab("q3e")
        p(f"s_cmp_eq_u32 {sW}, 3\ns_cbranch_scc1 {La}")
        p.waitall(); p(f"s_branch {Lb}\n{La}:")
        self.lds_wait(5, 3, 26); q0 = p.nvm()
        self.srd(SA, "q", TEN)
        p(f"s_mul_i32 {sT1}, {sRB}, {64*1152}\ns_mul_i32 {sT2}, {sHG}, 144\ns_add_u32 {sT1}, {sT1}, {sT2}")
        for i in range(9):
            p(f"""v_add_u32 v26, {64*i}, v1
            v_mul_u32_u24 v27, 7282, v26
            v_lshrrev_b32 v27, 16, v27
            v_mul_u32_u24 v27, {1152 - 144}, v27
            v_lshl_add_u32 v26, v26, 4, v27
            s_mov_b32 m0, {L_Q + 1024*i}
            buffer_load_dwordx4 v26, {SA}, {sT1} offen lds""")
        if o.get("touch0", 1):
            p(f"""v_lshlrev_b32 v26, 7, v1
            s_mul_i32 {sT3}, {sG4}, {4*3840}
            s_mul_i32 {sT2}, {sI4}, 3840
            s_add_u32 {sT3}, {sT3}, {sT2}
            s_add_u32 {sT3}, {sT3}, {O_P1}
            v_lshrrev_b32 v27, 5, v1
            v_mul_u32_u24 v27, {4*3840 - 4096}, v27
            v_add_u32 v27, v26, v27
            buffer_load_dword v220, v27, {WS}, {sT3} offen
            s_add_u32 {sT3}, {sT3}, {8*3840}
            buffer_load_dword v221, v27, {WS}, {sT3} offen
            s_lshl_b32 {sT3}, {sRB}, 3
            s_add_u32 {sT3}, {sT3}, {sHG}
            s_lshl_b32 {sT3}, {sT3}, 9
            s_add_u32 {sT3}, {sT3}, {O_ST[1]}
            v_and_b32 v27, 0x180, v26
            v_bfe_u32 v28, v1, 2, 1
            v_mul_u32_u24 v28, {O_ST[2] - O_ST[1]}, v28
            v_add3_u32 v27, v27, v28, {sT3}
            v_and_b32 v28, 0x380, v26
            v_add_u32 v28, {sFR}, v28
            v_cmp_gt_u32 vcc, 8, v1
            v_cndmask_b32 v27, v28, v27, vcc
            s_lshl_b32 {sT2}, {sG4}, 5
            s_add_u32 {sT2}, {sT2}, {O_FP}
            v_mov_b32 v28, {sT2}
            v_cmp_gt_u32 vcc, 13, v1
            v_cndmask_b32 v27, v28, v27, vcc
            s_mov_b64 exec, 0x3fff
            buffer_load_dword v222, v27, {WS}, 0 offen
            s_mov_b64 exec, -1""")
        p(f"s_waitcnt vmcnt({p.nvm() - q0})\n{Lb}:")
        p(f"""s_lshl_b32 {sT0}, {sHG}, 7
        s_add_u32 {sT0}, {sT0}, {O_FW}
        s_lshl_b32 {sT1}, {sRB}, 2
        s_add_u32 {sT1}, {sT1}, {sT0}""")
        L = self.last_of(0, 4, 26)
        self.setflag(sT1, 26); p(f"{L}:")
        p(f"s_cmp_eq_u32 {sCONV}, 0\ns_cbranch_scc1 {LE}")
        self.lds_wait(1, 1, 26)
        self.stamp("useen")
        p(f"s_lshl_b32 {sT1}, {sCH}, 12\ns_add_u32 {sT1}, {sT1}, {O_U}\ns_add_u32 m0, {sLC}, {L_CU}")
        hu = [p(f"buffer_load_dwordx4 v{v16L}, {WS}, {sT1} offen offset:{1024*i} sc1 lds") for i in range(4)]
        p(f"v_mov_b32 v216, -1\nv_mov_b32 v217, -1\nv_mov_b32 v218, -1\nv_mov_b32 v219, -1\ns_lshl_b32 {sT1}, {sCH}, 7\ns_add_u32 {sT1}, {sT1}, {O_Y}")
        for bp in range(1 if "Y" in o.get("abl", "") else 4):
            hp = p(f"buffer_store_dwordx4 v[216:219], v{160 if 'Y' in o.get('abl', '') else 214}, {WS}, {sT1} offen sc1"); p(f"s_add_u32 {sT1}, {sT1}, {8*73728}")
        ACC, AB, BB = 32, 64, 128
        hA = {}; hB = {}
        def rdA(m, t):
            b = AB + 32 * (m & 1) + 4 * t
            p(f"ds_read_b64 {vr(b,2)}, v212 offset:{512*t + 64*m}")
            hA[m, t] = p(f"ds_read_b64 {vr(b+2,2)}, v212 offset:{512*t + 64*m + 8}")
        def rdB(m, be):
            hB[m, be] = p(f"ds_read_b128 {vr(BB + 32*(m&1) + 4*be, 4)}, v213 offset:{512*(7-be) + 64*m}")
        for t in range(8): rdA(0, t)
        p.wait(*hu); self.lds_signal(3, 26)
        self.stamp("udma")
        for be in range(8): rdB(0, be)
        wl = self.wp_loads()
        bg = list(wl[:n1])
        m0 = o.get("w_step", 5)
        for m in range(8):
            main = []
            if m == 0:
                for b in range(8):
                    def g(b=b):
                        p.wait(hB[0, b]); p(f"{M16} {vr(ACC+4*b,4)}, v[208:211], {vr(BB+4*b,4)}, 0")
                    main.append(g)
            for (t, be) in sorted([(t, be) for t in range(8) for be in range(8 - t)], key=lambda x: (max(x), x[0] + x[1])):
                def g(t=t, be=be):
                    p.wait(hA[m, t], hB[m, be])
                    d = vr(ACC + 4 * (t + be), 4)
                    p(f"{M16} {d}, {vr(AB+32*(m&1)+4*t,4)}, {vr(BB+32*(m&1)+4*be,4)}, {d}")
                main.append(g)
            fill = []
            if m < 7:
                for t in range(8):
                    fill.append((8, lambda t=t: rdB(m + 1, t))); fill.append((8, lambda t=t: rdA(m + 1, t)))
            if m >= m0 and n1:
                if m == m0: self.lds_wait(2, 1, 26)
                k = min(-(-len(bg) // (8 - m)), len(bg))
                extra, bg = bg[:k], bg[k:]
                for i, g in enumerate(extra):
                    j = 2 + i * 34 // k
                    main[j] = (lambda a=main[j], b=g: (a(), b()))
            mix(p, main, fill, 8)
            if m == 0: p.wait(hp); self.lds_signal(8, 26)
            if m in (1, 3, 5): self.stamp(f"m{m}")
        p(f"s_lshl_b32 {sT1}, {sCH}, 7\ns_add_u32 {sT1}, {sT1}, {O_Y}")
        for bp in range(4):
            for d in range(4): p(f"v_cvt_pk_bf16_f32 v{64+4*bp+d}, v{ACC+8*bp+2*d}, v{ACC+8*bp+2*d+1}")
        for bp in range(4):
            O = 64 + 4 * bp
            p(f"v_permlane16_swap_b32 v{O}, v{O+2}\nv_permlane16_swap_b32 v{O+1}, v{O+3}")
            hy = p(f"buffer_store_dwordx4 {vr(O,4)}, v214, {WS}, {sT1} offen sc1")
            p(f"s_add_u32 {sT1}, {sT1}, {8*73728}")
        self.stamp("convE")
        if not n1: self.lds_wait(2, 1, 26)
        self.small_loads()
        for g in wl[n1:NP]: g()
        p(f"s_branch {LJ}")
        p(f"{LE}:")
        L = self.onwave(3)
        self.upoll()
        p(f"""s_lshl_b32 {sT0}, {sHG}, 7
        s_add_u32 {sT0}, {sT0}, {O_FW}
        s_cmp_lt_u32 {sJ}, 8
        s_cselect_b32 {sNC}, 3, 2
        v_and_b32 v30, 31, v1
        v_lshlrev_b32 v30, 2, v30""")
        p(f"v_mul_u32_u24 v26, 144, v1\nv_mov_b32 v28, 0\nv_mov_b32 v29, 0")
        hq = [p(f"ds_read_b128 {vr(32+4*i,4)}, v26 offset:{L_Q + 16*i}") for i in range(9)]
        for d in range(36):
            p.wait(hq[d // 4]); p(f"v_dot2c_f32_bf16 v28, {sONE2}, v{32+d}\nv_dot2c_f32_bf16 v29, v{32+d}, v{32+d}")
        self.lds_wait(3, sNC, 26)
        p(f"""s_lshl_b32 {sT1}, {sRB}, 3
        s_add_u32 {sT1}, {sT1}, {sHG}
        s_lshl_b32 {sT1}, {sT1}, 9
        s_add_u32 {sT1}, {sT1}, {O_ST[0]}
        v_lshlrev_b32 v26, 3, v1""")
        if not o.get("pollfirst", 1): p(f"buffer_store_dwordx2 v[28:29], v26, {WS}, {sT1} offen sc1")
        self.poll(30, sT0, 27); self.lds_signal(2, 76); self.stamp("wseen")
        if o.get("pollfirst", 1): p(f"buffer_store_dwordx2 v[28:29], v26, {WS}, {sT1} offen sc1")
        p(f"""v_mov_b32 v72, -1
        v_mov_b32 v73, -1
        v_mov_b32 v74, -1
        v_mov_b32 v75, -1
        s_lshl_b32 {sT3}, {sHG}, 2
        s_add_u32 {sT3}, {sT3}, {sI4}
        s_lshl_b32 {sT3}, {sT3}, 3
        s_add_u32 {sT3}, {sT3}, {sX}
        s_lshl_b32 {sT3}, {sT3}, 11
        s_add_u32 {sT3}, {sT3}, {O_P2[0]}
        s_add_u32 {sT2}, {sT3}, {O_P2[1] - O_P2[0]}""")
        for so in (sT3, sT2):
            for i in range(2): hp = p(f"buffer_store_dwordx4 v[72:75], v{160 if 'P' in o.get('abl', '') else v16L}, {WS}, {so} offen offset:{1024*i} sc1")
        win = o.get("w_win", 24); k0 = 10
        for g in wl[:k0]: g()
        p.wait(hp)
        p(f"s_lshl_b32 {sT1}, {sRB}, 7\ns_add_u32 {sT1}, {sT1}, {O_FX0}\ns_lshl_b32 {sT2}, {sHG}, 2\ns_add_u32 {sT2}, {sT2}, {sT1}")
        self.setflag(sT2, 26)
        self.lds_wait(8, sNC, 26)
        p(f"s_lshl_b32 {sT4}, {sX}, 7\ns_add_u32 {sT4}, {sT4}, {O_FID}\ns_lshl_b32 {sT2}, {sJ}, 2\ns_add_u32 {sT2}, {sT4}, {sT2}")
        self.setflag(sT2, 26)
        for i, g in enumerate(wl[k0:NP]):
            g()
            if i >= win: p(f"s_waitcnt vmcnt({win})")
        Lr, Le = p.lab("pw"), p.lab("pwe")
        p(f"""v_add_u32 v26, {sT4}, v30
        v_add_u32 v27, {sT0}, v30
        v_add_u32 v27, {O_FID - O_FW}, v27
        v_cmp_gt_u32 vcc, 32, v1
        v_cndmask_b32 v26, v27, v26, vcc
        v_and_b32 v27, 7, v1
        v_lshl_add_u32 v27, v27, 2, {sT1}
        s_mov_b32 {sPC}, 0
        {Lr}:
        buffer_load_dword v28, v26, {WS}, 0 offen sc1
        buffer_load_dword v29, v27, {WS}, 0 offen sc1
        s_add_u32 {sPC}, {sPC}, 1
        s_waitcnt vmcnt(0)
        v_xor_b32 v28, {sN}, v28
        v_xor_b32 v29, {sN}, v29
        v_or_b32 v28, v28, v29
        v_cmp_ne_u32 vcc, 0, v28
        s_cmp_gt_u32 {sPC}, {SPIN}
        s_cbranch_scc1 {Le}
        s_cbranch_vccnz {Lr}
        {Le}:""")
        self.lds_signal(7, 26)
        L2 = p.lab("w2"); p(f"s_branch {L2}\n{L}:")
        self.lds_wait(2, 1, 26)
        for i, g in enumerate(wl[:NP]):
            g()
            if i >= win: p(f"s_waitcnt vmcnt({win})")
        p(f"{L2}:")
        npf = o.get("npf", 0)
        if npf:
            p(f"s_mul_i32 {sT0}, {sI4}, {npf*1024}\ns_add_u32 {sT0}, {sT0}, {sWP}\ns_sub_u32 {sT0}, {sT0}, {2*73728}")
            for i in range(npf):
                p(f"buffer_load_dwordx4 {vr(76+4*i,4)}, v{v16L}, {WS}, {sT0} offen offset:{(i%4)*1024} sc1")
                if i % 4 == 3: p(f"s_add_u32 {sT0}, {sT0}, 4096")
        self.small_loads()
        p(f"{LJ}:")
        X, Tt, Y, R = 76, 96, 116, 136
        if o.get("dbgw"): self.stamp("wl0"); p.waitall(); self.stamp("wl1")
        self.lds_wait(7, 1, 26)
        self.stamp("w7")
        hm = self.tile_stats_load(0, 64, 26)()
        self.lds_wait(1, 1, 26)
        p(f"""s_sub_u32 {sFAST}, {sT5}, 1
        v_and_b32 v26, 15, v1
        s_lshl_b32 {sT0}, {sW}, 4
        v_add_u32 v27, {sT0}, v26
        v_mul_u32_u24 v27, 144, v27
        v_lshrrev_b32 v28, 4, v1
        v_lshl_add_u32 v27, v28, 3, v27""")
        for t in range(5): hq = p(f"ds_read_b64 {vr(RES+2*t,2)}, v27 offset:{L_Q + 32*t}")
        p(f"""v_and_b32 v27, 1, v26
        v_lshlrev_b32 v27, 7, v27
        v_lshrrev_b32 v28, 3, v26
        v_lshl_add_u32 v27, v28, 6, v27
        v_bfe_u32 v28, v26, 1, 2
        v_lshl_add_u32 v26, v28, 4, v27
        s_lshl_b32 {sT0}, {sW}, 8
        s_add_u32 {sT0}, {sT0}, {LM_CS}
        v_add_u32 v26, {sT0}, v26
        v_lshrrev_b32 v27, 1, v1
        v_lshlrev_b32 v27, 7, v27
        v_and_b32 v28, 1, v1
        v_lshl_add_u32 v27, v28, 4, v27
        v_mov_b32 v28, 0x40000000
        v_cmp_gt_u32 vcc, 16, v1
        v_cndmask_b32 v29, v28, v27, vcc
        s_mul_i32 {sT4}, {sW}, 3072
        v_lshl_add_u32 v30, v1, 3, {sT4}
        s_mul_i32 {sT3}, {sRB}, 73728
        s_mul_i32 {sT1}, {sHG}, 9216
        s_add_u32 {sT3}, {sT3}, {sT1}
        s_lshl_b32 {sT1}, {sW}, 5
        s_add_u32 {sT3}, {sT3}, {sT1}
        s_add_u32 {sT3}, {sT3}, {O_Y}""")
        p.wait(hm)
        self.stamp("wland")
        for i in range(1, 8):
            for h in (0, 2): p(f"v_pk_add_f32 {vr(32+h,2)}, {vr(32+h,2)}, {vr(32+4*i+h,2)}")
        for sw in ("16", "32"):
            for i in range(4): p(f"v_mov_b32 v{36+i}, v{32+i}")
            for i in range(4): p(f"v_permlane{sw}_swap_b32 v{32+i}, v{36+i}")
            for h in (0, 2): p(f"v_pk_add_f32 {vr(32+h,2)}, {vr(32+h,2)}, {vr(36+h,2)}")
        p("s_mov_b64 exec, 0xffff\nds_write_b128 v26, v[32:35]\ns_mov_b64 exec, -1")
        p.wait(hq)
        self.tile_stats_finish(64, R); self.unpack(X, RES, 10); self.norm_tile(Tt, X, R)
        p(f"v_lshrrev_b32 v28, 4, v1\nv_mul_u32_u24 v28, 504, v28\nv_sub_u32 v223, v{vXT}, v28")
        Lr, Le = p.lab("py"), p.lab("pye")
        p.waitall(); p(f"s_mov_b32 {sPC}, 0\n{Lr}:\ns_add_u32 {sT0}, {sT3}, 4096\ns_add_u32 {sT1}, {sT3}, 8192")
        for i in range(3):
            p(f"s_add_u32 m0, {sT4}, {1024*i}")
            hy = p(f"buffer_load_dwordx4 v{27 if i < 2 else 29}, {WS}, {(sT3, sT0, sT1)[i]} offen sc1 lds")
        p(f"s_add_u32 {sPC}, {sPC}, 1"); p.wait(hy)
        hy = [p(f"ds_read_b64_tr_b16 {vr(YT+2*t,2)}, v30 offset:{512*t}") for t in range(5)]
        for t in range(5):
            p.wait(hy[t]); self.unpack(Y + 4 * t, YT + 2 * t, 2)
            if t == 0: p(f"v_max3_u32 v28, v{Y}, v{Y+1}, v{Y+2}\nv_max_u32 v28, v28, v{Y+3}")
            else: p(f"v_max3_u32 v28, v28, v{Y+4*t}, v{Y+4*t+1}\nv_max3_u32 v28, v28, v{Y+4*t+2}, v{Y+4*t+3}")
        p(f"v_cmp_eq_u32 vcc, {sHI}, v28\ns_cmp_gt_u32 {sPC}, {SPIN // 10}\ns_cbranch_scc1 {Le}\ns_cbranch_vccnz {Lr}\n{Le}:")
        self.stamp("yland")
        self.publish_z(0, X, Tt, Y, 140)

    def wo_dma(self):
        p = self.p; out = []
        out.append(lambda: p(f"s_mul_i32 {sNC}, {sHG}, 82944\ns_add_u32 {sNC}, {sNC}, {O_WO}\ns_add_u32 {sNC}, {sNC}, {sW10}"))
        for i in range(21):
            def g(i=i):
                L = None
                if i == 20: L = p.lab("wo"); p(f"s_cmp_ge_u32 {sW}, 1\ns_cbranch_scc1 {L}")
                p(f"s_add_u32 m0, {sW10}, {L_W + 4096*i}\ns_add_u32 {sO}, {sNC}, {4096*i}\nbuffer_load_dwordx4 v{v16L}, {WS}, {sO} offen sc1 lds")
                if L: p(f"{L}:")
            out.append(g)
        return out

    def softmax(self, t, rl, E, tmp, out, pk):
        p = self.p; F = []
        a = lambda c, s: F.append((c, lambda: p(s)))
        mx, mn, c1, c2 = tmp, tmp + 1, tmp + 2, tmp + 3
        a(4, f"v_max3_f32 v{mx}, v{t}, v{t+1}, v{t+2}"); a(4, f"v_max3_f32 v{mn}, -v{t}, -v{t+1}, -v{t+2}")
        for i in (3, 5, 7):
            a(4, f"v_max3_f32 v{mx}, v{mx}, v{t+i}, v{t+i+1}"); a(4, f"v_max3_f32 v{mn}, v{mn}, -v{t+i}, -v{t+i+1}")
        a(12, f"v_permlane32_swap_b32 v{mx}, v{mn}")
        a(4, f"v_max_f32 v{mx}, v{mx}, v{mn}")
        a(4, f"v_mul_f32 v{c1}, -v{mx}, v{rl}"); a(4, f"v_mul_f32 v{c2}, -v{mx}, v{rl}")
        a(12, f"v_permlane32_swap_b32 v{c1}, v{c2}")
        P, N = E, E + 10
        assert rl % 2 == 0 and c1 % 2 == 0
        if pk:
            for i in range(0, 8, 2):
                a(5, f"v_pk_fma_f32 {vr(P+i,2)}, {vr(t+i,2)}, {vr(rl,2)}, {vr(c1,2)} op_sel_hi:[1,0,0]")
                a(5, f"v_pk_fma_f32 {vr(N+i,2)}, {vr(t+i,2)}, {vr(rl,2)}, {vr(c1,2)} op_sel:[0,0,1] op_sel_hi:[1,0,1] neg_lo:[1,0,0] neg_hi:[1,0,0]")
        for i in range(8 if pk else 0, 9):
            a(4, f"v_fma_f32 v{P+i}, v{t+i}, v{rl}, v{c1}"); a(4, f"v_fma_f32 v{N+i}, -v{t+i}, v{rl}, v{c2}")
        for i in range(9):
            a(8, f"v_exp_f32 v{P+i}, v{P+i}"); a(8, f"v_exp_f32 v{N+i}, v{N+i}")
        s1, s2 = tmp, tmp + 2
        if pk:
            a(5, f"v_pk_add_f32 {vr(s1,2)}, {vr(P,2)}, {vr(P+2,2)}"); a(5, f"v_pk_add_f32 {vr(s2,2)}, {vr(N,2)}, {vr(N+2,2)}")
            for i in (4, 6):
                a(5, f"v_pk_add_f32 {vr(s1,2)}, {vr(s1,2)}, {vr(P+i,2)}"); a(5, f"v_pk_add_f32 {vr(s2,2)}, {vr(s2,2)}, {vr(N+i,2)}")
        else:
            for h in range(2):
                a(4, f"v_add_f32 v{s1+h}, v{P+h}, v{P+2+h}"); a(4, f"v_add_f32 v{s2+h}, v{N+h}, v{N+2+h}")
            for i in (4, 6):
                for h in range(2):
                    a(4, f"v_add_f32 v{s1+h}, v{s1+h}, v{P+i+h}"); a(4, f"v_add_f32 v{s2+h}, v{s2+h}, v{N+i+h}")
        a(4, f"v_add_f32 v{s1}, v{s1}, v{s1+1}"); a(4, f"v_add_f32 v{s2}, v{s2}, v{s2+1}")
        a(4, f"v_add_f32 v{s1}, v{s1}, v{P+8}"); a(4, f"v_add_f32 v{s2}, v{s2}, v{N+8}")
        a(12, f"v_permlane32_swap_b32 v{s1}, v{s2}")
        a(4, f"v_add_f32 v{s1}, v{s1}, v{s2}")
        a(8, f"v_rcp_f32 v{s1}, v{s1}"); a(8, f"v_mov_b32 v{s1+1}, v{s1}")
        a(12, f"v_permlane32_swap_b32 v{s1}, v{s1+1}")
        if pk:
            for i in range(0, 8, 2):
                a(5, f"v_pk_mul_f32 {vr(P+i,2)}, {vr(P+i,2)}, {vr(s1,2)} op_sel_hi:[1,0]")
                a(5, f"v_pk_mul_f32 {vr(N+i,2)}, {vr(N+i,2)}, {vr(s1,2)} op_sel:[0,1]")
        for i in range(8 if pk else 0, 9):
            a(4, f"v_mul_f32 v{P+i}, v{P+i}, v{s1}"); a(4, f"v_mul_f32 v{N+i}, v{N+i}, v{s1+1}")
        for i in range(4): a(4, f"v_cvt_pk_bf16_f32 v{out[i]}, v{P+2*i}, v{P+2*i+1}")
        for i in range(4): a(4, f"v_cvt_pk_bf16_f32 v{out[4+i]}, v{N+2*i}, v{N+2*i+1}")
        a(4, f"v_cvt_pk_bf16_f32 v{out[8]}, v{P+8}, v{N+8}")
        return F

    def layer(self, L):
        p = self.p; o = self.opt
        A_, B_ = [32, 48], [64, 80]; FB, CS, PK, E, TMP = 96, 128, [156, 172], 188, 208
        RL = [212, 214]; RS = [216, 217]; vB = 218
        WA = [219, 220, 221, 222]; RA = [26, 27, 28]
        hZ = {}; hst = []
        def zdma(n):
            T, i = divmod(n, 9)
            p(f"s_add_u32 m0, {sW10}, {SUB*T + 4096*i}\ns_add_u32 {sO}, {sT3}, {SUB*T + 4096*i}")
            hZ[n] = p(f"buffer_load_dwordx4 v{v16L}, {WS}, {sO} offen sc1 lds")
        p(f"s_add_u32 {sT3}, {sZ}, {sW10}")
        NU = o.get("NU", 6)
        for n in range(NU): zdma(n)
        p(f"""v_lshrrev_b32 v29, 5, v1
        v_lshlrev_b32 v29, 7, v29
        s_lshl_b32 {sT0}, {sW}, 8
        s_add_u32 {sT0}, {sT0}, {LM_CS}
        v_add_u32 v29, {sT0}, v29
        v_add_u32 v{vB}, {SUB}, v{v16L}
        v_lshlrev_b32 v31, 3, v1
        s_lshl_b32 {sT4}, {sRB}, 12
        s_add_u32 {sT4}, {sT4}, {O_ST[1]}""")
        for i in range(7): hcs = p(f"ds_read_b128 {vr(CS+4*i,4)}, v29 offset:{16*i}")
        bud = o.get("budget", 16)
        stl = [(lambda i=i: hst.append(p(f"buffer_load_dwordx2 {vr(PK[1]+2*i,2)}, v31, {WS}, {sT4} offen offset:{512*i} sc1"))) for i in range(8)]
        zl = [(lambda n=n: zdma(n)) for n in range(NU, 18)]
        mem = {1 + 2 * i: g for i, g in enumerate(zl[:13 - NU] + stl + zl[13 - NU:])}
        def lines(text, c=4): return [(c, (lambda s=s: p(s))) for s in text.strip().split("\n")]
        S = PK[1]
        stats = [(0, lambda: p.wait(*hst))]
        for i in range(1, 8): stats += lines(f"v_add_f32 v{S}, v{S}, v{S+2*i}\nv_add_f32 v{S+1}, v{S+1}, v{S+2*i+1}")
        stats += lines(f"""v_mul_f32 v{RL[0]+1}, {INV576 | 0x80000000}, v{S}
        v_mul_f32 v{S+1}, {INV576}, v{S+1}
        v_fma_f32 v{S+1}, -v{RL[0]+1}, v{RL[0]+1}, v{S+1}
        v_mov_b32 v{RL[1]+1}, v{RL[0]+1}
        v_max_f32 v{S+1}, 0, v{S+1}
        v_add_f32 v{S+1}, {EPS}, v{S+1}
        v_rsq_f32 v{RS[0]}, v{S+1}
        v_permlane32_swap_b32 v{RL[0]+1}, v{RL[1]+1}
        v_mov_b32 v{RS[1]}, v{RS[0]}
        s_nop 1
        v_permlane32_swap_b32 v{RS[0]}, v{RS[1]}
        v_mul_f32 v{RL[0]}, {LOG2E}, v{RS[0]}
        v_mul_f32 v{RL[1]}, {LOG2E}, v{RS[1]}""")
        addr = lines(f"""v_and_b32 v{E}, 31, v1
        v_bfe_u32 v{E+1}, v1, 1, 1
        v_lshlrev_b32 v{E+1}, 2, v{E+1}
        v_and_b32 v{E+2}, 1, v1
        v_lshl_add_u32 v{E+1}, v{E+2}, 1, v{E+1}
        v_bfe_u32 v{E+2}, v1, 2, 1
        v_add_u32 v{E+1}, v{E+1}, v{E+2}
        v_lshlrev_b32 v{E+1}, 4, v{E+1}
        v_lshl_add_u32 v{E}, v{E}, 7, v{E+1}
        s_lshl_b32 {sT0}, {sW}, 13
        v_add_u32 v{E}, {sT0}, v{E}
        v_lshrrev_b32 v{E+1}, 5, v1
        v_lshlrev_b32 v{E+2}, 5, v{E+1}
        v_xor_b32 v{WA[0]}, v{E}, v{E+2}
        v_xor_b32 v{WA[1]}, 16, v{WA[0]}
        v_lshlrev_b32 v{E+2}, 4, v{E+1}
        v_or_b32 v{E+2}, 64, v{E+2}
        v_xor_b32 v{WA[2]}, v{E}, v{E+2}
        v_xor_b32 v{WA[3]}, 32, v{WA[2]}
        v_bfe_u32 v{E}, v1, 2, 2
        v_lshl_add_u32 v{E}, v{E+1}, 2, v{E}
        v_bfe_u32 v{E+2}, v{E}, 1, 1
        v_lshlrev_b32 v{E+2}, 2, v{E+2}
        v_and_b32 v{E+3}, 1, v{E}
        v_lshl_add_u32 v{E+2}, v{E+3}, 1, v{E+2}
        v_add_u32 v{E+2}, v{E+2}, v{E+1}
        v_lshlrev_b32 v{E+2}, 4, v{E+2}
        v_lshl_add_u32 v{E}, v{E}, 7, v{E+2}
        v_add_u32 v{E}, {sT0}, v{E}
        v_and_b32 v{E+1}, 1, v1
        v_bfe_u32 v{E+2}, v1, 1, 1
        v_bfe_u32 v{E+3}, v1, 4, 1
        v_lshlrev_b32 v{RA[0]}, 5, v{E+1}
        v_lshl_add_u32 v{RA[0]}, v{E+3}, 4, v{RA[0]}
        v_xor_b32 v{RA[0]}, v{E}, v{RA[0]}
        v_lshl_add_u32 v{RA[0]}, v{E+2}, 3, v{RA[0]}
        v_lshlrev_b32 v{RA[1]}, 4, v{E+1}
        v_or_b32 v{RA[1]}, 64, v{RA[1]}
        v_xor_b32 v{RA[1]}, v{E}, v{RA[1]}
        v_xor_b32 v{RA[2]}, 32, v{RA[1]}
        v_lshl_add_u32 v{RA[2]}, v{E+2}, 3, v{RA[2]}
        v_add_u32 v{E+4}, 8, v{RA[1]}
        v_cmp_eq_u32 vcc, 1, v{E+3}
        v_lshrrev_b32 v29, 5, v1
        v_cndmask_b32 v{RA[2]}, v{RA[2]}, v{E+4}, vcc
        v_mul_u32_u24 v29, 24, v29
        v_and_b32 v30, 31, v1
        v_add_u32 v30, v29, v30
        v_lshlrev_b32 v29, 4, v30
        v_lshlrev_b32 v30, 5, v30""")
        def kpart(T):
            A, k, nm, r = A_[T], PK[T], RL[T] + 1, RS[T]
            F = [(0, lambda: p.wait(hcs))]
            F += lines("\n".join(f"v_fmac_f32 v{A+i}, v{CS+i}, v{nm}" for i in range(16)))
            F += self.softmax(A, RL[T], E, TMP, [k + i for i in range(9)], False)
            F += lines("\n".join(f"v_mul_f32 v{A+i}, v{A+i}, v{r}" for i in range(9, 16)))
            F += lines("\n".join(f"v_cvt_pk_bf16_f32 v{k+12+i}, v{A+9+2*i}, v{A+10+2*i}" for i in range(3)))
            F += lines(f"v_mov_b32 v{k+9}, 0\nv_mov_b32 v{k+11}, 0")
            return F
        def vtail(T):
            A, B, k, nm, r = A_[T], B_[T], PK[T], RL[T] + 1, RS[T]
            return lines(f"""v_fmac_f32 v{B+9}, v{CS+25}, v{nm}
            v_fmac_f32 v{B+10}, v{CS+26}, v{nm}
            v_mul_f32 v{B+9}, v{B+9}, v{r}
            v_mul_f32 v{B+10}, v{B+10}, v{r}
            v_cvt_pk_bf16_f32 v{k+15}, v{A+15}, v{B+9}
            v_cvt_pk_bf16_f32 v{k+10}, v{B+10}, 1.0""")
        hw = {}
        def wr(T, idx):
            def g():
                for i in idx: hw[T] = p(f"ds_write_b128 v{WA[i]}, {vr(PK[T]+4*i,4)} offset:{4096*T}")
            return [(4 * len(idx), g)]
        hA = {}; FR = [156, 188, 96, 108]
        def rd_part(s):
            def g():
                p.wait(hw[s >> 1])
                for i in range(3):
                    for rd in range(2): hA[s] = p(f"ds_read_b64_tr_b16 {vr(FR[s]+4*i+2*rd,2)}, v{RA[i]} offset:{2048*s + 1024*rd}")
            return [(24, g)]
        seq = [(tile, T, ks) for tile in range(2) for T in range(2) for ks in range(36)]
        PD = o.get("PD", 6); hF = {}
        def rd_frag(n):
            tile, T, ks = seq[n]
            hF[n] = p(f"ds_read_b128 {vr(FB + 4*(n&7), 4)}, v{vB if T else v16L} offset:{1024*ks}")
        need = {4: (1, 0), 8: (3, 3), 16: (5, 10), 24: (8, 18), 36: (12, 30), 52: (17, 49)}
        fa = o.get("free_at", 110); WG = o.get("WG", 2); nxt = [4]
        def step(n):
            def g():
                tile, T, ks = seq[n]; d = vr((A_, B_)[tile][T], 16)
                p.wait(hF[n], self.hW.get(2 * ks + tile))
                p(f"{M32} {d}, {wreg(2*ks+tile)}, {vr(FB + 4*(n&7), 4)}, {d if ks else 0}")
                for _ in range(2):
                    m = nxt[0]
                    if m >= 144 or m > n + PD or (m in need and n < need[m][1]): break
                    if m in need: p.wait(hZ[need[m][0]]); self.barrier()
                    rd_frag(m); nxt[0] += 1
                if n in mem: mem[n]()
                if n == fa: self.barrier()
                if n % WG == WG - 1 and n < 143 and n > 8: p.wait(hF[min(n + WG, 143)])
            return g
        p.wait(hZ[0]); self.barrier()
        self.stamp("z0")
        for n in range(4): rd_frag(n)
        def touch():
            p(f"""s_add_u32 {sT0}, {sG4}, {sW}
            s_lshl_b32 {sT0}, {sT0}, 2
            s_add_u32 {sT0}, {sT0}, {sI4}
            s_mul_i32 {sT0}, {sT0}, 3840
            s_add_u32 {sT0}, {sT0}, {O_P1}
            s_lshl_b32 {sT1}, {sRB}, 3
            s_add_u32 {sT1}, {sT1}, {sHG}
            s_lshl_b32 {sT1}, {sT1}, 9
            s_add_u32 {sT1}, {sT1}, {O_ST[2] - 4096}
            s_lshl_b32 {sT2}, {sG4}, 5
            s_add_u32 {sT2}, {sT2}, {O_FP}
            v_lshlrev_b32 v31, 7, v1
            v_mov_b32 v223, {sT0}
            v_writelane_b32 v223, {sT1}, 32
            v_writelane_b32 v223, {sT1}, 33
            v_writelane_b32 v223, {sT1}, 34
            v_writelane_b32 v223, {sT1}, 35
            v_add_u32 v31, v31, v223
            v_writelane_b32 v31, {sT2}, 30
            s_add_u32 {sT2}, {sFR}, 128
            v_writelane_b32 v31, {sT2}, 31
            s_add_u32 {sT2}, {sFR}, 256
            v_writelane_b32 v31, {sT2}, 36
            s_mov_b32 exec_hi, 31
            buffer_load_dword v31, v31, {WS}, 0 offen
            s_mov_b32 exec_hi, -1""")
        if L == 0:
            mem[40] = touch
            rest = self.wp_loads()[self.NP:]
            assert self.NP % 2 == 0
            n = 41
            for i, g in enumerate(rest): mem[n] = g; n += 2 if len(rest) <= 20 or i % 2 else 1
            ws_ = 3 if n + 3 * 22 < 144 else 2
            for i, g in enumerate(self.wo_dma()): mem[n + ws_ * i] = g
        K0, K1 = kpart(0), kpart(1)
        mix(p, [step(n) for n in range(0, 38)], addr, bud)
        self.stamp("p1")
        left = mix(p, [step(n) for n in range(38, 74)], stats + K0, bud, False)
        self.stamp("p2")
        left = mix(p, [step(n) for n in range(74, fa + 1)], left + K1, bud, False)
        self.stamp("p3")
        mix(p, [step(n) for n in range(fa + 1, 144)], vtail(0) + wr(0, [0, 1]) + wr(0, [2, 3]) + left + wr(1, [0, 1]) + rd_part(0) + rd_part(1), bud)
        self.stamp("gemm")
        KV0, KV1 = A_
        def mm_part(s):
            b = FR[s]; p.wait(hA[s])
            p(f"{M32} {vr(KV0,16)}, {vr(b,4)}, {vr(b+8,4)}, {vr(KV0,16) if s else 0}")
            p(f"{M32} {vr(KV1,16)}, {vr(b+4,4)}, {vr(b+8,4)}, {vr(KV1,16) if s else 0}")
        p(f"""s_add_u32 {sT1}, {sG4}, {sW}
        s_lshl_b32 {sT1}, {sT1}, 2
        s_add_u32 {sT1}, {sT1}, {sI4}
        s_mul_i32 {sT1}, {sT1}, 3840
        s_add_u32 {sT1}, {sT1}, {O_P1}""")
        run(vtail(1)); run(wr(1, [2, 3]))
        mm_part(0); mm_part(1)
        run(rd_part(2)); run(rd_part(3))
        mm_part(2); mm_part(3)
        self.dual(f"s_mov_b64 exec, {M48}\n" + "\n".join(
            f"buffer_store_dwordx4 {vr(KV0+4*jj if jj < 4 else KV1,4)}, v{30 if jj < 4 else 29}, {WS}, {sT1} offen offset:{1536*(jj>>1) + 16*(jj&1)}" for jj in range(5)) + "\ns_mov_b64 exec, -1")
        self.stamp("part")
        def qsoft(T, half):
            A, B, rl = A_[T], B_[T], RL[T]
            F = lines("\n".join(f"v_pk_fma_f32 {vr(B+i,2)}, {vr(CS+16+i,2)}, {vr(rl,2)}, {vr(B+i,2)} op_sel:[0,1,0]" for i in range(0, 8, 2)))
            F += lines(f"v_fmac_f32 v{B+8}, v{CS+24}, v{rl+1}")
            F += self.softmax(B, rl, E, TMP, [A + i for i in range(9)], True)
            F += lines("\n".join(f"v_mov_b32 v{A+9+i}, 0" for i in range(3)))
            n = o.get("qsplit", 45)
            run(F[:n] if half == 0 else F[n:])
        p(f"""s_lshl_b32 {sT0}, {sG4}, 5
        s_add_u32 {sT0}, {sT0}, {O_FP + 64*L}
        s_lshl_b32 {sT1}, {sI4}, 2
        s_lshl_b32 {sT2}, {sW}, 4
        s_add_u32 {sT1}, {sT1}, {sT2}
        s_add_u32 {sT1}, {sT1}, {sT0}
        s_lshl_b32 {sT2}, {sI4}, 4
        s_add_u32 {sT0}, {sT0}, {sT2}""")
        qsoft(0, 0)
        p.waitall(); self.setflag(sT1, 96, True)
        self.stamp("ack1")
        p(f"""v_lshlrev_b32 v116, 3, v0
        v_mov_b32 v118, 0x40000000
        v_cmp_gt_u32 vcc, 240, v0
        v_lshlrev_b32 v117, 4, v0
        v_cndmask_b32 v116, v118, v116, vcc
        v_lshrrev_b32 v30, 1, v29
        s_add_u32 {sT2}, {sG4}, {sI4}
        s_mul_i32 {sT2}, {sT2}, {4*3840}
        s_add_u32 {sT2}, {sT2}, {O_P1}
        s_lshl_b32 {sT3}, {sHG}, 2
        s_add_u32 {sT3}, {sT3}, {sI4}
        s_lshl_b32 {sT3}, {sT3}, 3
        s_add_u32 {sT3}, {sT3}, {sX}
        s_lshl_b32 {sT3}, {sT3}, 11
        s_add_u32 {sT3}, {sT3}, {O_P2[L]}""")
        p("v_and_b32 v96, 3, v1\nv_lshlrev_b32 v96, 2, v96")
        self.poll(96, sT0, 97)
        self.stamp("Fp")
        hr = []
        for pp in range(4):
            hr.append(p(f"buffer_load_dwordx4 {vr(96+4*pp,4)}, v117, {WS}, {sT2} offen sc1"))
            if pp < 3: p(f"s_add_u32 {sT2}, {sT2}, 3840")
        p.wait(hr[1])
        p("v_pk_add_f32 v[96:97], v[96:97], v[100:101]\nv_pk_add_f32 v[98:99], v[98:99], v[102:103]")
        p.wait(hr[3])
        p("""v_pk_add_f32 v[104:105], v[104:105], v[108:109]
        v_pk_add_f32 v[106:107], v[106:107], v[110:111]
        v_pk_add_f32 v[96:97], v[96:97], v[104:105]
        v_pk_add_f32 v[98:99], v[98:99], v[106:107]
        v_cvt_pk_bf16_f32 v96, v96, v97
        v_cvt_pk_bf16_f32 v97, v98, v99
        v_min_u32 v96, -2, v96
        v_min_u32 v97, -2, v97""")
        hs = p(f"buffer_store_dwordx2 v[96:97], v116, {WS}, {sT3} offen sc1")
        self.stamp("lred")
        self.barrier()
        qsoft(0, 1); qsoft(1, 0); qsoft(1, 1)
        p(f"""s_lshl_b32 {sT0}, {sHEAD}, 14
        s_add_u32 {sT0}, {sT0}, {O_P2[L]}
        s_mul_i32 {sT3}, {sHG}, 2304
        s_add_u32 {sT3}, {sT3}, {sZ}
        s_add_u32 {sT3}, {sT3}, {self.OO - self.OZ}
        s_add_u32 {sT4}, {sT3}, 36864
        v_bfe_u32 v26, v1, 4, 1
        v_mul_u32_u24 v26, 18432, v26
        v_and_b32 v27, 15, v1
        v_lshl_add_u32 v26, v27, 4, v26
        v_lshrrev_b32 v27, 5, v1
        s_lshl_b32 {sT2}, {sW}, 1
        v_add_u32 v27, {sT2}, v27
        v_lshl_add_u32 v28, v27, 1, v26
        v_lshl_add_u32 v26, v27, 8, v26
        v_mov_b32 v205, 0
        v_mov_b32 v206, 0
        v_mov_b32 v207, 0""")
        self.stamp("Fk")
        hg_ = []; GB, SU, KF = 96, 176, 196
        p(f"s_add_u32 {sT1}, {sT0}, 4096\ns_add_u32 {sT2}, {sT0}, 8192\ns_add_u32 {sO}, {sT0}, 12288\ns_mov_b32 {sPC}, 0")
        def gl(xx):
            b = GB + 10 * xx; of = (xx & 1) * 2048; so = (sT0, sT1, sT2, sO)[xx >> 1]
            return f"""buffer_load_dwordx4 {vr(b,4)}, v29, {WS}, {so} offen offset:{of} sc1
            buffer_load_dwordx4 {vr(b+4,4)}, v29, {WS}, {so} offen offset:{of+768} sc1
            buffer_load_dword v{b+8}, v30, {WS}, {so} offen offset:{of+1536} sc1"""
        p(f"s_mov_b64 exec, {M48}")
        for xx in range(8): hg_.append(p(gl(xx)))
        for xx in range(8):
            b = GB + 10 * xx; Lr, Lo, Lk = p.lab("gr"), p.lab("go"), p.lab("gk")
            p.raw(f"{Lr}:"); p.wait(hg_[xx])
            if xx == 0: self.stamp("g0")
            p(f"v_max3_u32 v{b+9}, v{b}, v{b+2}, v{b+4}\nv_max3_u32 v{b+9}, v{b+9}, v{b+6}, v{b+8}\nv_cmp_eq_u32 vcc, -1, v{b+9}")
            p.raw(f"s_cbranch_vccnz {Lo}\n{Lk}:")
            self.tail += [f"{Lo}:", f"s_add_u32 {sPC}, {sPC}, 1", f"s_cmp_gt_u32 {sPC}, {SPIN // 10}", f"s_cbranch_scc1 {Lk}", "s_waitcnt vmcnt(0)"]
            self.tail += [l.strip() for x2 in range(xx, 8) for l in gl(x2).split("\n")] + [f"s_branch {Lr}"]
            if xx == 0: self.unpack(SU, b, 9)
            else:
                for d in range(9): p(f"v_dot2c_f32_bf16 v{SU+2*d}, {sONE}, v{b+d}\nv_dot2c_f32_bf16 v{SU+2*d+1}, {sONEH}, v{b+d}")
        p("s_mov_b64 exec, -1")
        for d in range(9): p(f"v_cvt_pk_bf16_f32 v{KF+d}, v{SU+2*d}, v{SU+2*d+1}")
        self.stamp("gath")
        for T in range(2):
            for s in range(3):
                d = vr(B_[T], 16)
                p(f"{M32} {d}, {vr(KF+4*s,4)}, {vr(A_[T]+4*s,4)}, {d if s else 0}")
        p(f"""v_add_u32 v208, {L_W}, v{v16L}
        v_add_u32 v209, {L_W + 9*4608}, v{v16L}
        v_lshrrev_b32 v210, 4, v1
        v_lshlrev_b32 v210, 3, v210
        v_and_b32 v211, 7, v1
        v_add_u32 v210, v210, v211
        v_lshlrev_b32 v210, 4, v210
        v_add_u32 v211, {L_W + 9*4608 + 4096}, v210
        v_add_u32 v210, {L_W + 4096}, v210""")
        for T in range(2):
            B = B_[T]; O = 96 + 4 * T
            p(f"v_add_f32 v{B+10}, {EPS6}, v{B+9}\nv_rcp_f32 v{B+10}, v{B+10}")
            for i in range(0, 8, 2): p(f"v_pk_mul_f32 {vr(B+i,2)}, {vr(B+i,2)}, {vr(B+10,2)} op_sel_hi:[1,0]")
            p(f"v_mul_f32 v{B+8}, v{B+8}, v{B+10}")
            for i in range(4): p(f"v_cvt_pk_bf16_f32 v{O+i}, v{B+2*i}, v{B+2*i+1}")
            p(f"v_cvt_pk_bf16_f32 v{B+8}, v{B+8}, v{B+8}")
            so = sT3 if T == 0 else sT4
            self.dual(f"buffer_store_dwordx4 {vr(O,4)}, v26, {WS}, {so} offen\nbuffer_store_short v{B+8}, v28, {WS}, {so} offen offset:2048")
        self.stamp("ost")
        AC, OF, WF, NS = 32, 52, 124, 4
        hwo = {}
        def rd_wo(s, t):
            a = (208 if t < 4 else 210) + (s >= 9)
            hwo[s, t] = p(f"ds_read_b128 {vr(WF + 20*(s%NS) + 4*t, 4)}, v{a} offset:{4608*(s%9) + 1024*(t&3)}")
        def pre():
            for s in range(NS):
                for t in range(5): rd_wo(s, t)
            p(f"s_mul_i32 {sT0}, {sW}, 18432\ns_add_u32 {sT0}, {sT0}, {sZ}\ns_add_u32 {sT0}, {sT0}, {self.OO - self.OZ}")
        self.rowhop(1 + 3 * L, 212, pre)
        self.stamp("Fo")
        hO = {}; NO = o.get("NO", 6)
        def ld_o(s):
            hO[s] = p(f"buffer_load_dwordx4 {vr(OF+4*s,4)}, v{v16L}, {WS}, {sT0} offen offset:{(s%4)*1024} sc1")
            if s % 4 == 3: p(f"s_add_u32 {sT0}, {sT0}, 4096")
        for s in range(NO): ld_o(s)
        for s in range(18):
            p.wait(hO[s], hwo[s, 4])
            if s == 0: self.stamp("o0")
            for t in range(5):
                d = vr(AC + 4 * t, 4)
                p(f"{M16} {d}, {vr(WF + 20*(s%NS) + 4*t, 4)}, {vr(OF+4*s,4)}, {d if s else 0}")
                if t == 0 and s + NO < 18: ld_o(s + NO)
                if s and s - 1 + NS < 18: rd_wo(s - 1 + NS, t)
        self.stamp("mm")
        X, Tt, Y, R = 56, 76, 96, 116
        self.unpack(X, RES, 10)
        if L == 0:
            for t in range(5):
                for d in (0, 2): p(f"v_pk_add_f32 {vr(X+4*t+d,2)}, {vr(X+4*t+d,2)}, {vr(AC+4*t+d,2)}")
            self.rowstats(X, 124, 2, True)
            ld = {}
            def mid():
                self.unpack(Y, YT, 10); ld[0] = self.tile_stats_load(2, 124, 128)
            self.stamp("s2st")
            p(f"v_lshrrev_b32 v28, 4, v1\nv_mul_u32_u24 v28, 504, v28\nv_sub_u32 v223, v{vXT}, v28")
            self.rowhop(2, 140, mid, True)
            self.stamp("s2seen")
            h = ld[0](); p.wait(h)
            self.tile_stats_finish(124, R); self.norm_tile(Tt, X, R)
            self.publish_z(1, X, Tt, Y, 124)
        else:
            self.srd(SA, "out", TEN)
            p(f"""v_and_b32 v26, 15, v1
            v_mul_u32_u24 v26, 1152, v26
            v_lshrrev_b32 v27, 4, v1
            v_lshl_add_u32 v26, v27, 3, v26
            s_lshl_b32 {sT0}, {sRB}, 2
            s_add_u32 {sT0}, {sT0}, {sW}
            s_mul_i32 {sT0}, {sT0}, 18432
            s_mul_i32 {sT1}, {sHG}, 144
            s_add_u32 {sT0}, {sT0}, {sT1}""")
            for t in range(5):
                for d in (0, 2): p(f"v_pk_add_f32 {vr(X+4*t+d,2)}, {vr(X+4*t+d,2)}, {vr(AC+4*t+d,2)}")
                for d in range(2): p(f"v_cvt_pk_bf16_f32 v{Y+2*t+d}, v{X+4*t+2*d}, v{X+4*t+2*d+1}")
                if t == 4: p("s_mov_b32 exec_hi, 0")
                p(f"buffer_store_dwordx2 {vr(Y+2*t,2)}, v26, {SA}, {sT0} offen offset:{32*t}")
            p("s_mov_b64 exec, -1")

    def build(self):
        p = self.p
        self.prologue(); self.phase0(); self.conv(); self.layer(0); self.layer(1)
        if self.prof: self.stamp("out"); p.waitall(); self.stamp("end")
        if self.opt.get("echo"):
            a, b, f, wg = self.opt["echo"]; Le, Ll = p.lab("ec"), p.lab("el")
            ra, rb_ = self.STAMP_REGS[self.names.index(a)], self.STAMP_REGS[self.names.index(b)]
            p(f"""s_cmp_lg_u32 s2, {wg}
            s_cbranch_scc1 {Le}
            s_cmp_lg_u32 {sW}, 0
            s_cbranch_scc1 {Le}
            s_sub_u32 {sT0}, s{rb_}, s{ra}""")
            if self.opt.get("skew"):
                op = self.opt["skew"]
                p(f"""v_lshlrev_b32 v4, 4, v1
                s_mov_b32 s88, {O_PROF}
                buffer_load_dwordx4 v[8:11], v4, {WS}, s88 offen sc1
                s_waitcnt vmcnt(0)
                v_{op}3_u32 v8, v8, v9, v10
                v_{op}_u32 v8, v8, v11
                v_readlane_b32 {sT0}, v8, 0""")
                for i in range(1, 64): p(f"v_readlane_b32 {sT1}, v8, {i}\ns_{op}_u32 {sT0}, {sT0}, {sT1}")
                p(f"s_sub_u32 {sT0}, s34, {sT0}" if op == "min" else f"s_sub_u32 {sT0}, {sT0}, s34")
            p(f"""
            s_mul_i32 {sT0}, {sT0}, {f}
            s_min_u32 {sT0}, {sT0}, 100000
            {Ll}:
            s_memrealtime s[86:87]
            s_waitcnt lgkmcnt(0)
            s_sub_u32 {sT1}, s86, s{self.STAMP_REGS[self.names.index("end")]}
            s_cmp_lt_u32 {sT1}, {sT0}
            s_cbranch_scc1 {Ll}
            {Le}:""")
        elif self.prof: self.stamp_flush()
        L = p.lab("ep")
        p(f"s_or_b32 {sT0}, s2, {sW}\ns_cmp_lg_u32 {sT0}, 0\ns_cbranch_scc1 {L}")
        p(f"s_mov_b32 {sT0}, {O_EPOCH}"); self.setflag(sT0, 26)
        p(f"{L}:\nL_end:\ns_endpgm")
        p.raw("\n".join(self.tail))
        return p.text()

HEADER = open("interleave_layers__ssm_conv_h3__linear_kernel_hedgehog__prompt.s.ref").read().split("; Override launch")[0]

def full(prof=False, opt=None):
    k = K(prof, opt); body = k.build()
    assert k.p.maxv <= 255 and k.p.maxa <= 255 and k.p.maxs <= 101
    txt = HEADER + f"; @launch grid=(256,1,1) block=(256,1,1) lds={LDS_BYTES}\n"
    txt += f""".amdgcn_target "amdgcn-amd-amdhsa--gfx950"
.text
.globl {NAME}
.p2align 8
.type {NAME},@function
{NAME}:
{body}.section .rodata,"a"
.p2align 6
.amdhsa_kernel {NAME}
  .amdhsa_next_free_vgpr 512
  .amdhsa_next_free_sgpr 102
  .amdhsa_accum_offset 256
  .amdhsa_group_segment_fixed_size 0
  .amdhsa_kernarg_size 104
  .amdhsa_user_sgpr_count 2
  .amdhsa_user_sgpr_kernarg_segment_ptr 1
  .amdhsa_system_sgpr_workgroup_id_x 1
.end_amdhsa_kernel
"""
    return txt, k
```

```python
import sys, json, importlib
sys.path.insert(0,"exp"); sys.path.insert(0,"gen")
from asmlib import build
import kern13 as kern
FRONT=["crit","landed","bar1","ust","uflag","p0end","useen","udma","convE","wseen","wland","yland","zst","zseen","z0","gemm","s2st","s2seen","mm","out","end"]
BACK=["z0","gemm","part","Fp","lred","ack1","Fk","g0","gath","ost","Fo","o0","mm","out","end"]
def make(name, prof=False, opt=None):
    path=f"gen/{name}.s"
    txt,k = kern.full(prof=prof, opt=opt); open(path,"w").write(txt)
    build(path, kern.NAME, 13, lists=True)
    open(path[:-2]+".nst","w").write(",".join(k.names)); print(name, "lines", len(k.p.out), "nops", k.p.nops, "stamps", k.nstamp)
if __name__=="__main__":
    name=sys.argv[1]; o=json.loads(sys.argv[2]) if len(sys.argv)>2 else {}; kinds=sys.argv[3] if len(sys.argv)>3 else "kfB"
    if "k" in kinds: make(name, opt=o)
    if "f" in kinds: make(name+"_prof_f", True, dict(o, only=FRONT))
    if "F" in kinds: make(name+"_prof_cyc_f", True, dict(o, only=FRONT, cyc=1))
    if "w" in kinds: make(name+"_prof_w", True, dict(o, dbgw=1, only=["p0end","useen","udma","convE","wseen","wl0","wl1","w7","wland","yland","zst","zseen","z0","gemm","end"]))
    if "G" in kinds: make(name+"_prof_cyc_g", True, dict(o, only=["zst","zseen","z0","p1","p2","p3","gemm","lred","Fk","gath","Fo","o0","mm","end"], cyc=1))
    if "N" in kinds: make(name+"_prof_cyc_n", True, dict(o, notes=1, only=["gemm","part","lred","Fk","g0","gath","ost","Fo","mm","end"], cyc=1))
    if "B" in kinds: make(name+"_prof_cyc_b", True, dict(o, only=BACK, cyc=1))
```

```python
import sys
from emit import Prog, mix

NAME = "interleave_layers__ssm_conv_h3__linear_kernel_hedgehog__prompt_kernel"
O_EPOCH = 0
O_FU, O_FW, O_FID, O_FX0, O_FY = 0x1000, 0x1400, 0x1800, 0x2000, 0x3000
O_FR = 0x10000
O_FP = 0x8000
O_FK = [0xC000, 0xE000]
O_CS = 0x1C0000
O_ST = [0x40000, 0x60000, 0x80000]
O_P2 = [0xA0000, 0x120000]
O_PROF = 0x1A0000
O_WO = 0x200000
O_P1 = 0x2C0000
O_U = 0x680000
O_Y = O_U + 0x240000
O_WP = O_Y + 0x240000
O_Z, O_O = O_U, O_Y
WS_USED = O_WP + 3 * 0x240000
TEN = 2048 * 576 * 2
SUB = 36864
L_W = 2 * SUB
L_M = L_W + 82944
L_K, L_V, L_Q, L_PHI, L_WOT, L_WR = 0, 10240, 20480, 32768, 36864, 40960
CONV_STRIDE = 21248; CP = 4160; L_CU = 16640
LM_CS = L_M
LM_SY = L_M + 1024
LDS_BYTES = 163840
WS = "s[4:7]"
SA, SB, SC, SD, SE = "s[36:39]", "s[40:43]", "s[44:47]", "s[48:51]", "s[52:55]"
sX, sJ, sRB, sHG, sI4, sW, sN, sHI = "s56", "s57", "s58", "s59", "s60", "s61", "s62", "s63"
sT0, sT1, sT2, sT3, sT4, sT5 = "s66", "s67", "s68", "s69", "s70", "s71"
sCH, sLC, sHEAD, sPC = "s72", "s73", "s74", "s75"
M8 = "s[76:77]"
M48 = "s[78:79]"
MU1 = "s[80:81]"
sONE, sONEH, sONE2, sCONV = "s82", "s83", "s84", "s85"
sKB, sFH, sFOLD, sO, sWP, sZ, sW10, sNC, sFAST, sFR, sG4 = "s89", "s90", "s91", "s92", "s93", "s94", "s95", "s96", "s97", "s98", "s99"
PTR = dict(q=8, k=10, v=12, shift=14, ssm=16, D=18, wqkv=22, wphi=24, wo=26, out=28, dbg=30)
LOG2E = 0x3fb8aa3b; INV576 = 0x3ae38e39; EPS = 0x3727c5ac; EPS6 = 0x358637bd
SPIN = 200000
RES, vXT, vSTA, v16L, YT = 2, 12, 13, 14, 16
M32 = "v_mfma_f32_32x32x16_bf16"; M16 = "v_mfma_f32_16x16x32_bf16"

def vr(a, n): return f"v[{a}:{a+n-1}]" if n > 1 else f"v{a}"
def wreg(f): return f"a[{4*f}:{4*f+3}]" if f < 64 else vr(224 + 4 * (f - 64), 4)
def run(F):
    for c, f in F: f()

class K:
    STAMP_REGS = [34, 35, 64, 65, 100, 101, 20, 21, 3] + list(range(10, 20)) + [22, 23, 24, 25, 30, 31, 32, 33, 88, 8, 9]
    def __init__(self, prof=False, opt=None):
        self.p = Prog(); self.prof = prof; self.nstamp = 0; self.names = []; self.opt = opt or {}; self.tail = []
        self.OZ, self.OO = (O_WP + 0x240000, O_WP + 2 * 0x240000) if self.opt.get("noalias") else (O_Z, O_O)
    def srd(self, dst, name, nbytes):
        b = int(dst[2:].split(":")[0]); s = PTR[name]
        self.p(f"s_mov_b32 s{b}, s{s}\ns_mov_b32 s{b+1}, s{s+1}\ns_mov_b32 s{b+2}, {nbytes}\ns_mov_b32 s{b+3}, 0x20000")
    def stamp(self, name=""):
        if not self.prof: return
        if self.opt.get("only") and self.nstamp and name not in self.opt["only"]: return
        p = self.p; i = self.nstamp; self.nstamp += 1; self.names.append(name)
        p(("s_memtime" if self.opt.get("cyc") else "s_memrealtime") + f" s[86:87]\ns_waitcnt lgkmcnt(0)\ns_mov_b32 s{self.STAMP_REGS[i]}, s86")
    def stamp_flush(self):
        if not self.prof: return
        p = self.p
        for i in range(self.nstamp): p(f"v_writelane_b32 v2, s{self.STAMP_REGS[i]}, {i}")
        p(f"v_writelane_b32 v2, {sFAST}, 31")
        p(f"s_lshl_b32 s88, s2, 9\ns_lshl_b32 s86, {sW}, 7\ns_add_u32 s88, s88, s86\ns_add_u32 s88, s88, {O_PROF}\nv_lshlrev_b32 v3, 2, v1\ns_mov_b32 exec_hi, 0\nbuffer_store_dword v2, v3, {WS}, s88 offen\ns_mov_b64 exec, -1")
    def onwave(self, w):
        L = self.p.lab("w"); self.p(f"s_cmp_lg_u32 {sW}, {w}\ns_cbranch_scc1 {L}"); return L
    def barrier(self): self.p("s_barrier")
    def dual(self, text):
        p = self.p; S, E = p.lab("slow"), p.lab("back")
        p(f"s_cmp_eq_u32 {sFAST}, 0"); p.raw(f"s_cbranch_scc1 {S}")
        n = len(p.out); h = p(text); body = p.out[n:]; p.raw(f"{E}:")
        self.tail += [f"{S}:"] + [l + " sc1" if l.startswith("buffer_store") else l for l in body] + [f"s_branch {E}"]
        return h
    def setflag(self, soff, tmp, local=False, off=0):
        t = f"s_mov_b64 exec, 1\nv_mov_b32 v{tmp}, {sN}\nbuffer_store_dword v{tmp}, off, {WS}, {soff} offset:{off}"
        if local: self.dual(t + "\ns_mov_b64 exec, -1")
        else: self.p(t + " sc1\ns_mov_b64 exec, -1")
    def poll(self, vaddr, soff, tmp, wide=False, off=0):
        p = self.p; L = p.lab("poll"); E = p.lab("polle")
        p.waitall(lg=False)
        p(f"s_mov_b32 {sPC}, 0\n{L}:")
        if wide: p(f"buffer_load_dwordx4 {vr(tmp,4)}, v{vaddr}, {WS}, {soff} offen offset:{off} sc1")
        else: p(f"buffer_load_dword v{tmp}, v{vaddr}, {WS}, {soff} offen offset:{off} sc1")
        p(f"s_add_u32 {sPC}, {sPC}, 1\ns_waitcnt vmcnt(0)")
        if wide:
            for i in range(4): p(f"v_xor_b32 v{tmp+i}, {sN}, v{tmp+i}")
            p(f"v_or3_b32 v{tmp}, v{tmp}, v{tmp+1}, v{tmp+2}\nv_or_b32 v{tmp}, v{tmp}, v{tmp+3}\nv_cmp_ne_u32 vcc, 0, v{tmp}")
        else: p(f"v_cmp_ne_u32 vcc, {sN}, v{tmp}")
        p(f"s_cmp_gt_u32 {sPC}, {SPIN}\ns_cbranch_scc1 {E}\ns_cbranch_vccnz {L}\n{E}:")
    def rowhop(self, kind, tmp, between=None, own=False):
        p = self.p; mode = self.opt.get("hop", "bar")
        if mode == "bar":
            p(f"s_lshl_b32 {sT5}, {sHG}, 2\ns_add_u32 {sT5}, {sT5}, {sFR}\nv_and_b32 v{tmp+2}, 7, v1\nv_lshlrev_b32 v{tmp+2}, 2, v{tmp+2}")
            p.waitall(); self.barrier()
            L = self.onwave(0); self.setflag(sT5, tmp, True, 128 * kind); p(f"{L}:")
        else:
            p(f"s_lshl_b32 {sT5}, {sHG}, 4\ns_lshl_b32 {sPC}, {sW}, 2\ns_add_u32 {sT5}, {sT5}, {sPC}\ns_add_u32 {sT5}, {sT5}, {sFR}")
            if own and mode == "wave": p(f"v_and_b32 v{tmp+2}, 7, v1\nv_lshl_add_u32 v{tmp+2}, v{tmp+2}, 4, {sPC}")
            else: p(f"v_and_b32 v{tmp+2}, 31, v1\nv_lshlrev_b32 v{tmp+2}, 2, v{tmp+2}")
            p.waitall(); self.setflag(sT5, tmp, True, 128 * kind)
        if between: between()
        if mode == "wave": self.poll(tmp + 2, sFR, tmp + 1, off=128 * kind); return
        L = self.onwave(0); self.poll(tmp + 2, sFR, tmp + 1, off=128 * kind); p(f"{L}:")
        self.barrier()
    def last_of(self, word, count, t):
        p = self.p; L = p.lab("nl")
        p(f"s_mov_b64 exec, 1\nv_mov_b32 v{t}, {LM_SY + 4*word}\nv_mov_b32 v{t+1}, 1")
        h = p(f"ds_add_rtn_u32 v{t+1}, v{t}, v{t+1}")
        p("s_mov_b64 exec, -1"); p.wait(h)
        p(f"v_readfirstlane_b32 {sT5}, v{t+1}\ns_cmp_lg_u32 {sT5}, {count - 1}\ns_cbranch_scc1 {L}")
        return L
    def clean_l2(self, tag):
        if tag not in self.opt.get("wb", ""): return
        p = self.p; L = p.lab("wb")
        p(f"s_lshl_b32 {sT5}, {sJ}, 2\ns_add_u32 {sT5}, {sT5}, {sW}\ns_cmp_lg_u32 {sT5}, 3\ns_cbranch_scc1 {L}\nbuffer_wbl2 sc1\n{L}:")
    def lds_signal(self, word, t, val=1):
        self.p(f"s_mov_b64 exec, 1\nv_mov_b32 v{t}, {LM_SY + 4*word}\nv_mov_b32 v{t+1}, {val}\nds_add_u32 v{t}, v{t+1}\ns_mov_b64 exec, -1")
    def lds_wait(self, word, val, t):
        p = self.p; L = p.lab("lw"); E = p.lab("lwe")
        p.waitall(vm=False)
        p(f"v_mov_b32 v{t}, {LM_SY + 4*word}\ns_mov_b32 {sPC}, 0\n{L}:\nds_read_b32 v{t+1}, v{t}\ns_add_u32 {sPC}, {sPC}, 1\ns_waitcnt lgkmcnt(0)")
        p(f"v_readfirstlane_b32 {sT5}, v{t+1}\ns_cmp_gt_u32 {sPC}, {SPIN*20}\ns_cbranch_scc1 {E}\ns_cmp_lt_u32 {sT5}, {val}\ns_cbranch_scc1 {L}\n{E}:")
    def onehot(self, dst, idx, val_lo, val_hi, t):
        p = self.p
        p(f"v_and_b32 v{t}, 1, v{idx}\nv_cmp_eq_u32 vcc, 1, v{t}\nv_mov_b32 v{t}, {val_lo}\nv_mov_b32 v{t+1}, {val_hi}\nv_cndmask_b32 v{t}, v{t}, v{t+1}, vcc\nv_ashrrev_i32 v{t+1}, 1, v{idx}")
        for jj in range(4): p(f"v_cmp_eq_u32 vcc, {jj}, v{t+1}\nv_cndmask_b32 v{dst+jj}, 0, v{t}, vcc")
    def unpack(self, dst, src, n):
        for d in range(n): self.p(f"v_lshlrev_b32 v{dst+2*d}, 16, v{src+d}\nv_and_b32 v{dst+2*d+1}, {sHI}, v{src+d}")
    def rowstats(self, X, T, which, local):
        p = self.p; S, Q = T, T + 2
        p("s_mov_b32 exec_lo, 0")
        for r in range(4): p(f"v_mov_b32 v{X+16+r}, 0")
        p("s_mov_b32 exec_lo, -1")
        p(f"v_pk_add_f32 {vr(S,2)}, {vr(X,2)}, {vr(X+2,2)}\nv_pk_mul_f32 {vr(Q,2)}, {vr(X,2)}, {vr(X,2)}")
        for i in range(2, 20, 2):
            if i > 2: p(f"v_pk_add_f32 {vr(S,2)}, {vr(S,2)}, {vr(X+i,2)}")
            p(f"v_pk_fma_f32 {vr(Q,2)}, {vr(X+i,2)}, {vr(X+i,2)}, {vr(Q,2)}")
        p(f"""v_add_f32 v{S}, v{S}, v{S+1}
        v_add_f32 v{Q}, v{Q}, v{Q+1}
        s_lshl_b32 {sT1}, {sRB}, 3
        s_add_u32 {sT1}, {sT1}, {sHG}
        v_permlane16_swap_b32 v{S}, v{Q}
        v_add_f32 v{S}, v{S}, v{Q}
        v_mov_b32 v{Q}, v{S}
        s_lshl_b32 {sT1}, {sT1}, 9
        s_add_u32 {sT1}, {sT1}, {O_ST[which]}
        v_permlane32_swap_b32 v{S}, v{Q}
        v_add_f32 v{S}, v{S}, v{Q}""")
        t = f"s_mov_b32 exec_hi, 0\nbuffer_store_dword v{S}, v{vSTA}, {WS}, {sT1} offen{'' if local else ' sc1'}\ns_mov_b32 exec_hi, -1"
        self.dual(t) if local else p(t)
    def tile_stats_load(self, which, d, t):
        p = self.p
        p(f"""v_and_b32 v{t}, 15, v1
        v_lshlrev_b32 v{t}, 3, v{t}
        v_lshrrev_b32 v{t+1}, 4, v1
        v_lshl_add_u32 v{t}, v{t+1}, 10, v{t}
        s_lshl_b32 {sT1}, {sRB}, 12
        s_lshl_b32 {sT2}, {sW}, 7
        s_add_u32 {sT1}, {sT1}, {sT2}
        s_add_u32 {sT1}, {sT1}, {O_ST[which]}""")
        return lambda: p(f"buffer_load_dwordx2 {vr(d,2)}, v{t}, {WS}, {sT1} offen sc1\nbuffer_load_dwordx2 {vr(d+2,2)}, v{t}, {WS}, {sT1} offen offset:512 sc1")
    def tile_stats_finish(self, d, R):
        self.p(f"""v_pk_add_f32 {vr(d,2)}, {vr(d,2)}, {vr(d+2,2)}
        s_mov_b32 {sT2}, {INV576}
        v_permlane16_swap_b32 v{d}, v{d+1}
        v_add_f32 v{d}, v{d}, v{d+1}
        v_mov_b32 v{d+1}, v{d}
        v_permlane32_swap_b32 v{d}, v{d+1}
        v_add_f32 v{d}, v{d}, v{d+1}
        v_mul_f32 v{d}, {INV576}, v{d}
        v_mov_b32 v{d+1}, v{d}
        v_permlane16_swap_b32 v{d}, v{d+1}
        v_fma_f32 v{d+1}, -v{d}, v{d}, v{d+1}
        v_max_f32 v{d+1}, 0, v{d+1}
        v_add_f32 v{d+1}, {EPS}, v{d+1}
        v_rsq_f32 v{R}, v{d+1}
        v_mul_f32 v{R+1}, -v{d}, v{R}""")
    def norm_tile(self, Tt, X, R):
        for i in range(0, 20, 2): self.p(f"v_pk_fma_f32 {vr(Tt+i,2)}, {vr(X+i,2)}, {vr(R,2)}, {vr(R,2)} op_sel:[0,0,1] op_sel_hi:[1,0,1]")
    def publish_z(self, L, X, Tt, Y, tmp):
        p = self.p
        p(f"s_mul_i32 {sT0}, {sHG}, 4608\ns_add_u32 {sT0}, {sT0}, {sZ}\ns_add_u32 {sT2}, {sT0}, 4096")
        for i in range(0, 20, 2): p(f"v_pk_fma_f32 {vr(X+i,2)}, {vr(Tt+i,2)}, {vr(Y+i,2)}, {vr(X+i,2)}")
        for d in range(10): p(f"v_cvt_pk_bf16_f32 v{RES+d}, v{X+2*d}, v{X+2*d+1}")
        self.dual(f"""buffer_store_dwordx4 {vr(RES,4)}, v{vXT}, {WS}, {sT0} offen
        buffer_store_dwordx4 {vr(RES+4,4)}, v{vXT}, {WS}, {sT0} offen offset:2048
        s_mov_b32 exec_hi, 0
        buffer_store_dwordx2 {vr(RES+8,2)}, v223, {WS}, {sT2} offen
        s_mov_b32 exec_hi, -1""")
        self.rowstats(X, tmp, 1, True)
        self.stamp("zst")
        self.rowhop(3 * L, tmp)
        self.stamp("zseen")

    def prologue(self):
        p = self.p
        if self.opt.get("first"): self.stamp("first")
        p(f"""s_cmp_ge_u32 s2, 256
        s_cbranch_scc1 L_end
        s_load_dwordx16 s[8:23], s[0:1], 0
        s_load_dwordx8 s[24:31], s[0:1], 64
        s_load_dwordx2 s[32:33], s[0:1], 96
        v_and_b32 v1, 63, v0
        v_lshrrev_b32 v2, 6, v0
        s_and_b32 {sX}, s2, 7
        v_readfirstlane_b32 {sW}, v2
        s_lshr_b32 {sJ}, s2, 3
        s_and_b32 {sHG}, {sJ}, 7
        s_lshr_b32 {sI4}, {sJ}, 3
        s_lshl_b32 {sRB}, {sX}, 2
        s_add_u32 {sRB}, {sRB}, {sI4}""")
        for i in range(3):
            p(f"""v_add_u32 v5, {256*i}, v0
            v_mul_u32_u24 v6, 7282, v5
            v_lshrrev_b32 v6, 16, v6
            v_mul_u32_u24 v7, 9, v6
            v_sub_u32 v7, v5, v7
            v_mul_u32_u24 v6, 1152, v6
            v_lshl_add_u32 v{2+i}, v7, 4, v6""")
        p(f"""s_mul_i32 {sT0}, {sJ}, {64*1152}
        s_mul_i32 {sT1}, {sX}, 144
        s_add_u32 {sT0}, {sT0}, {sT1}
        s_sub_u32 {sT2}, {sT0}, {4*1152}
        v_add_u32 v6, {sT2}, v2
        v_add_u32 v7, {sT2}, v3
        v_add_u32 v8, {sT2}, v4
        s_lshl_b32 {sW10}, {sW}, 10
        s_waitcnt lgkmcnt(0)
        s_mov_b32 s4, s32
        s_mov_b32 s5, s33
        s_mov_b32 s6, {WS_USED}
        s_mov_b32 s7, 0x20000""")
        self.srd(SA, "k", TEN); self.srd(SB, "v", TEN)

    def phase0(self):
        p = self.p; o = self.opt
        self.stamp("start")
        if self.opt.get("skew"):
            p(f"s_lshl_b32 s88, s2, 2\ns_add_u32 s88, s88, {O_PROF}\nv_mov_b32 v9, s34\nbuffer_store_dword v9, off, {WS}, s88 sc1")
        for i in range(2):
            p(f"s_add_u32 m0, {sW10}, {L_K + 4096*i}\nbuffer_load_dwordx4 v{6+i}, {SA}, 0 offen lds")
            p(f"s_add_u32 m0, {sW10}, {L_V + 4096*i}\nbuffer_load_dwordx4 v{2+i}, {SB}, {sT0} offen lds")
        L1 = p.lab("t3")
        p(f"s_cmp_ge_u32 {sW}, 2\ns_cbranch_scc1 {L1}")
        p(f"s_add_u32 m0, {sW10}, {L_K + 8192}\nbuffer_load_dwordx4 v8, {SA}, 0 offen lds")
        p(f"s_cmp_ge_u32 {sW}, 1\ns_cbranch_scc1 {L1}")
        p(f"s_mov_b32 m0, {L_V + 8192}\nbuffer_load_dwordx4 v4, {SB}, {sT0} offen lds")
        p(f"{L1}:")
        self.srd(SD, "shift", 4608)
        p(f"""s_mov_b32 {sHI}, 0xffff0000
        s_mov_b32 s78, 0x00ffffff
        s_mov_b32 s79, 0x00ffffff
        s_mov_b32 {sONE}, 0x3f80
        s_mov_b32 {sONEH}, 0x3f800000
        s_mov_b32 {sONE2}, 0x3f803f80
        s_cmp_eq_u32 {sW}, 2
        s_cselect_b64 s[80:81], -1, 0
        v_and_b32 v40, 15, v1
        v_lshrrev_b32 v41, 4, v1
        v_and_b32 v42, 3, v1
        v_bfe_u32 v43, v1, 2, 2
        v_lshl_add_u32 v43, v41, 3, v43
        s_mul_i32 {sT3}, {sX}, 72
        s_lshl_b32 {sT4}, {sJ}, 6""")
        for s in range(3):
            p(f"""s_cmp_eq_u32 {sW}, 2
            s_cselect_b32 {sT1}, {32*s}, {sW10}
            s_cselect_b32 {sT2}, 48, {16*s}""")
            p(f"s_cbranch_scc0 Lu{s}\ns_lshl_b32 {sT1}, {sT1}, 5\nLu{s}:\ns_lshr_b32 {sT1}, {sT1}, 5")
            if s < 2:
                p(f"""v_add_u32 v44, {sT1}, v43
                v_lshl_add_u32 v45, v42, 2, {sT2}
                v_lshl_add_u32 v46, v41, 3, {sT1}
                v_add_u32 v47, {sT2}, v40""")
            else:
                p(f"""v_lshrrev_b32 v5, 1, v42
                v_lshlrev_b32 v5, 5, v5
                v_mov_b32 v6, {sT1}
                v_cndmask_b32 v5, v6, v5, s[80:81]
                v_add_u32 v44, v5, v43
                v_and_b32 v5, 1, v42
                v_lshl_add_u32 v5, v5, 2, 64
                v_lshl_add_u32 v45, v42, 2, 32
                v_cndmask_b32 v45, v45, v5, s[80:81]
                v_lshrrev_b32 v5, 3, v40
                v_lshlrev_b32 v5, 5, v5
                v_cndmask_b32 v5, v6, v5, s[80:81]
                v_lshl_add_u32 v46, v41, 3, v5
                v_and_b32 v5, 7, v40
                v_add_u32 v5, 64, v5
                v_add_u32 v47, 32, v40
                v_cndmask_b32 v47, v47, v5, s[80:81]""")
            p(f"""v_add_u32 v47, {sT3}, v47
            v_lshlrev_b32 v5, 3, v47""")
            hcrit = p(f"buffer_load_dwordx2 {vr(26+2*s,2)}, v5, {SD}, 0 offen")
            p(f"""v_mul_u32_u24 v44, 144, v44
            v_lshl_add_u32 v{32+s}, v45, 1, v44
            v_add_u32 v46, {sT4}, v46
            v_sub_u32 v46, 2040, v46
            v_lshlrev_b32 v46, 1, v46
            v_lshl_add_u32 v{36+s}, v47, 12, v46""")
        hcrit = p(f"buffer_load_dword v9, off, {WS}, 0 sc1")
        p(f"v_lshlrev_b32 v6, 2, v1\nv_add_u32 v6, {LM_SY}, v6\nv_mov_b32 v7, 0\nds_write_b32 v6, v7")
        p.waitall(vm=False)
        self.barrier()
        self.stamp("crit")
        self.srd(SA, "ssm", TEN); self.srd(SB, "D", 1152)
        p(f"""s_lshl_b32 {sT1}, {sW}, 5
        s_add_u32 {sT1}, {sT1}, {sJ}
        s_add_u32 {sCH}, {sT3}, {sT1}
        s_mul_i32 {sLC}, {sW}, {CONV_STRIDE}
        s_add_u32 {sLC}, {sLC}, {L_W}
        v_lshlrev_b32 v{v16L}, 4, v1
        s_cmp_ge_u32 {sT1}, 72
        s_cselect_b32 {sCONV}, 0, 1""")
        LW3, LNC, LJ = p.lab("w3"), p.lab("nc"), p.lab("j")
        p(f"s_cbranch_scc1 {LNC}")
        p(f"s_lshl_b32 {sT1}, {sCH}, 12\ns_lshl_b32 {sT2}, {sCH}, 1\ns_add_u32 m0, {sLC}, 32")
        for i in range(4): p(f"buffer_load_dwordx4 v{v16L}, {SA}, {sT1} offen offset:{1024*i} lds")
        self.hh = p(f"buffer_load_ushort v45, off, {SB}, {sT2}")
        self.fold_prep(); self.conv_addr()
        p.wait(hcrit); p(f"s_branch {LJ}\n{LNC}:\ns_cmp_eq_u32 {sW}, 3\ns_cbranch_scc1 {LW3}")
        self.fold_prep()
        p.wait(hcrit); p(f"s_branch {LJ}\n{LW3}:")
        self.srd(SC, "wqkv", 576 * 3456); self.srd(SD, "wphi", 32 * 648); self.srd(SE, "wo", 576 * 1152)
        p(f"s_mul_i32 {sT1}, {sHG}, 2592\ns_mov_b32 m0, {L_PHI}")
        for i in range(3): p(f"buffer_load_dwordx4 v{v16L}, {SD}, {sT1} offen offset:{1024*i} lds")
        p(f"s_mul_i32 {sT1}, {sHG}, 144\ns_add_u32 {sT2}, {sT1}, 1152\ns_add_u32 {sT3}, {sT1}, 2304\nv_mov_b32 v47, 0x40000000")
        for i in range(4):
            p(f"""v_add_u32 v5, {64*i}, v1
            v_mul_u32_u24 v6, 7282, v5
            v_lshrrev_b32 v6, 16, v6
            v_mul_u32_u24 v7, 9, v6
            v_sub_u32 v5, v5, v7
            v_and_b32 v7, 7, v6
            v_lshrrev_b32 v6, 3, v6
            v_lshl_add_u32 v6, v6, 5, {sRB}
            v_cmp_gt_u32 vcc, 72, v6
            v_mul_u32_u24 v8, 57, v6
            s_mov_b64 s[86:87], vcc
            v_lshrrev_b32 v8, 9, v8
            v_mul_u32_u24 v8, 9, v8
            v_sub_u32 v6, v6, v8
            v_cmp_eq_u32 vcc, 8, v6
            v_lshlrev_b32 v8, 3, v8
            v_lshrrev_b32 v40, 2, v6
            v_and_b32 v41, 3, v6
            v_lshlrev_b32 v41, 2, v41
            v_lshl_add_u32 v40, v40, 5, v41
            v_lshrrev_b32 v41, 2, v7
            v_lshl_add_u32 v40, v41, 4, v40
            v_and_b32 v41, 3, v7
            v_add_u32 v40, v40, v41
            v_add_u32 v41, 64, v7
            v_cndmask_b32 v40, v40, v41, vcc
            v_add_u32 v40, v40, v8
            v_mul_u32_u24 v40, 3456, v40
            v_lshl_add_u32 v40, v5, 4, v40
            v_cndmask_b32 v40, v47, v40, s[86:87]
            s_mov_b32 m0, {L_WR + 1024*i}
            buffer_load_dwordx4 v40, {SC}, {sT1} offen lds
            s_mov_b32 m0, {L_WR + 4096 + 1024*i}
            buffer_load_dwordx4 v40, {SC}, {sT2} offen lds
            s_mov_b32 m0, {L_WR + 8192 + 1024*i}
            buffer_load_dwordx4 v40, {SC}, {sT3} offen lds
            v_mad_u32_u24 v41, v6, 9, v7
            v_mad_u32_u24 v42, v7, 9, 8
            v_cndmask_b32 v41, v41, v42, vcc
            v_add_u32 v41, v41, v8
            v_mul_u32_u24 v41, 1152, v41
            v_lshl_add_u32 v41, v5, 4, v41
            v_cndmask_b32 v41, v47, v41, s[86:87]
            s_mov_b32 m0, {L_WOT + 1024*i}""")
            hf = p(f"buffer_load_dwordx4 v41, {SE}, {sT1} offen lds")
        self.fold_prep()
        p.wait(hcrit); p(f"{LJ}:")
        p("v_add_u32 v9, 1, v9"); self.stamp("landed"); self.barrier()
        p(f"v_readfirstlane_b32 {sN}, v9\ns_getreg_b32 {sT4}, hwreg(HW_REG_XCC_ID, 0, 4)\ns_lshl_b32 {sT1}, {sN}, 4\ns_or_b32 {sT4}, {sT4}, {sT1}")
        self.stamp("bar1")
        LU3, LUE = p.lab("u3"), p.lab("ue")
        p(f"s_cmp_eq_u32 {sW}, 3\ns_cbranch_scc1 {LU3}")
        hs = []
        for s in range(3):
            b = 48 + 10 * s
            h = [p(f"ds_read_b64_tr_b16 {vr(b+2*i,2)}, v{32+s} offset:{L_K + 576*i}") for i in range(3)]
            h += [p(f"ds_read_b64_tr_b16 {vr(b+6+2*i,2)}, v{32+s} offset:{L_V + 576*i}") for i in range(2)]
            hs.append(h)
        lo = lambda d, s: p(f"v_lshlrev_b32 v{d}, 16, v{s}")
        hi = lambda d, s: p(f"v_and_b32 v{d}, {sHI}, v{s}")
        p(f"s_mov_b32 {sT0}, {O_U}")
        for s in range(3):
            b = 48 + 10 * s; P, W, A, V, O = 80, 94, 98, 106, 114 + 4 * s
            lo(W, 26+2*s); hi(W+1, 26+2*s); lo(W+2, 27+2*s); hi(W+3, 27+2*s)
            p.wait(*hs[s])
            hi(P+0, b); hi(P+1, b+2); lo(P+2, b+1); lo(P+3, b+3); hi(P+4, b+1); hi(P+5, b+3)
            lo(P+6, b+2); lo(P+7, b+4); hi(P+8, b+2); hi(P+9, b+4); lo(P+10, b+3); lo(P+11, b+5); hi(P+12, b+3); hi(P+13, b+5)
            Pp = lambda x: vr(P + 2 * (x + 3), 2)
            for q in range(4): p(f"v_pk_mul_f32 {vr(A+2*q,2)}, {Pp(q)}, {vr(W,2)} op_sel_hi:[1,0]")
            for q in range(4): p(f"v_pk_fma_f32 {vr(A+2*q,2)}, {Pp(q-1)}, {vr(W,2)}, {vr(A+2*q,2)} op_sel:[0,1,0]")
            lo(V+0, b+6); lo(V+1, b+8); hi(V+2, b+6); hi(V+3, b+8); lo(V+4, b+7); lo(V+5, b+9); hi(V+6, b+7); hi(V+7, b+9)
            for q in range(4): p(f"v_pk_fma_f32 {vr(A+2*q,2)}, {Pp(q-2)}, {vr(W+2,2)}, {vr(A+2*q,2)} op_sel_hi:[1,0,1]")
            for q in range(4): p(f"v_pk_fma_f32 {vr(A+2*q,2)}, {Pp(q-3)}, {vr(W+2,2)}, {vr(A+2*q,2)} op_sel:[0,1,0]")
            for q in range(4): p(f"v_pk_mul_f32 {vr(A+2*q,2)}, {vr(A+2*q,2)}, {vr(V+2*q,2)}")
            p(f"""v_cvt_pk_bf16_f32 v{O}, v{A+7}, v{A+5}
            v_cvt_pk_bf16_f32 v{O+1}, v{A+3}, v{A+1}
            v_cvt_pk_bf16_f32 v{O+2}, v{A+6}, v{A+4}
            v_cvt_pk_bf16_f32 v{O+3}, v{A+2}, v{A}
            buffer_store_dwordx4 {vr(O,4)}, v{36+s}, {WS}, {sT0} offen sc1""")
        self.stamp("ust")
        self.tables()
        p.waitall()
        L5 = self.last_of(5, 3, 5)
        p(f"""s_lshl_b32 {sT0}, {sX}, 7
        s_lshl_b32 {sT1}, {sJ}, 2
        s_add_u32 {sT0}, {sT0}, {sT1}
        s_add_u32 {sT0}, {sT0}, {O_FU}
        s_mov_b64 exec, 1
        v_mov_b32 v5, {sT4}
        buffer_store_dword v5, off, {WS}, {sT0} sc1
        s_mov_b64 exec, -1
        {L5}:""")
        self.stamp("uflag")
        self.lds_wait(6, 1, 26)
        p(f"s_branch {LUE}\n{LU3}:")
        p.wait(hf); self.lds_signal(6, 26); p(f"{LUE}:")
        self.fold()
        self.stamp("p0end")

    def fold_prep(self):
        p = self.p
        p(f"""v_and_b32 v5, 15, v1
        s_lshl_b32 {sT1}, {sW}, 4
        v_add_u32 v7, {sT1}, v5
        v_lshrrev_b32 v5, 4, v1
        v_lshlrev_b32 v{vSTA}, 3, v7
        v_lshl_add_u32 v{vSTA}, v5, 2, v{vSTA}
        v_and_b32 v7, 31, v7
        v_lshlrev_b32 v7, 4, v7
        s_lshr_b32 {sT1}, {sW}, 1
        s_mul_i32 {sT1}, {sT1}, {SUB}
        v_add_u32 v7, {sT1}, v7
        v_lshl_add_u32 v{vXT}, v5, 9, v7
        s_lshl_b32 {sHEAD}, {sHG}, 2
        s_add_u32 {sHEAD}, {sHEAD}, {sW}
        s_mul_i32 {sWP}, {sHEAD}, 73728
        s_add_u32 {sWP}, {sWP}, {O_WP}
        s_mul_i32 {sZ}, {sRB}, 73728
        s_add_u32 {sZ}, {sZ}, {self.OZ}
        s_lshl_b32 {sFR}, {sRB}, 10
        s_add_u32 {sFR}, {sFR}, {O_FR}
        s_lshl_b32 {sG4}, {sX}, 3
        s_add_u32 {sG4}, {sG4}, {sHG}
        s_lshl_b32 {sG4}, {sG4}, 2
        v_mov_b32 v160, 0x40000000
        v_mov_b32 v214, v160
        v_mov_b32 v212, 0
        v_mov_b32 v213, 0
        v_cndmask_b32 v15, v160, v{v16L}, {M48}
        v_bfe_u32 v5, v1, 3, 2
        v_and_b32 v6, 3, v1
        v_lshl_add_u32 v190, v5, 2, v6
        v_bfe_u32 v191, v1, 2, 1
        v_mul_u32_u24 v5, 9, v191
        v_add_u32 v5, v5, v190
        s_mul_i32 {sT0}, {sW}, 648
        s_add_u32 {sT0}, {sT0}, {L_PHI}
        v_lshl_add_u32 v161, v5, 1, {sT0}
        v_lshrrev_b32 v7, 5, v1
        v_mul_u32_u24 v8, 288, v7
        v_add_u32 v162, v161, v8
        v_bfe_u32 v8, v1, 4, 1
        v_lshl_add_u32 v8, v8, 1, v191
        v_lshl_add_u32 v6, v8, 3, v6
        v_bfe_u32 v8, v1, 3, 1
        v_lshl_add_u32 v6, v8, 2, v6
        v_mul_u32_u24 v6, 144, v6
        s_mul_i32 {sT0}, {sW}, 36
        s_add_u32 {sT0}, {sT0}, {L_WR}
        v_add_u32 v163, {sT0}, v6
        v_lshl_add_u32 v164, v7, 4, v163
        v_lshl_add_u32 v8, v7, 5, {sRB}
        v_and_b32 v6, 31, v1
        v_lshlrev_b32 v6, 4, v6
        v_lshrrev_b32 v167, 1, v8
        v_lshl_add_u32 v6, v167, 10, v6
        v_and_b32 v8, 1, v8
        v_lshl_add_u32 v167, v8, 9, v6
        v_lshlrev_b32 v7, 3, v7
        v_sub_u32 v5, v5, v7
        v_mov_b32 v7, -64
        v_add_u32 v8, -9, v5
        v_cmp_gt_u32 vcc, 9, v190
        v_cndmask_b32 v8, v8, v7, vcc""")
        self.onehot(174, 8, sONE, sONEH, 168)
        p(f"""v_add_u32 v8, -2, v5
        v_add_u32 v6, -9, v190
        v_cmp_lt_u32 vcc, 1, v6
        v_cndmask_b32 v8, v8, v7, vcc""")
        self.onehot(178, 8, sONE, sONEH, 168)
        p(f"""v_add_u32 v8, -16, v8
        v_cmp_gt_u32 vcc, 32, v1
        v_cndmask_b32 v8, v7, v8, vcc""")
        self.onehot(182, 8, sONE, sONEH, 168)
        p("v_mov_b32 v188, v182\nv_mov_b32 v182, 0\nv_mov_b32 v187, 0\nv_mov_b32 v189, 0\nv_mov_b32 v207, 0\nv_add_u32 v165, 4096, v164\nv_add_u32 v166, 8192, v164")

    def fold(self):
        p = self.p
        hph = [p(f"ds_read_u16 v{32+e}, v162 offset:{36*e}") for e in range(8)] + [p(f"ds_read_u16 v{40+e}, v161 offset:{576+36*e}") for e in range(2)]
        for m in range(3):
            p(f"ds_read2_b32 {vr(192+4*m,2)}, v{164+m} offset0:0 offset1:1\nds_read2_b32 {vr(194+4*m,2)}, v{164+m} offset0:2 offset1:3")
        for m in range(3): hW = p(f"ds_read_b32 v{204+m}, v163 offset:{4096*m + 32}")
        p(f"""v_bfe_u32 v30, v1, 2, 2
        v_mul_u32_u24 v30, 144, v30
        s_mul_i32 {sT0}, {sW}, 1152
        s_add_u32 {sT0}, {sT0}, {L_WOT}
        v_add_u32 v30, {sT0}, v30
        v_and_b32 v31, 1, v1
        v_lshl_add_u32 v66, v31, 3, v30
        v_and_b32 v31, 3, v1
        v_lshl_add_u32 v30, v31, 3, v30
        v_lshrrev_b32 v31, 4, v1
        v_lshl_add_u32 v30, v31, 5, v30""")
        p.wait(*hph)
        p("""ds_read_b64_tr_b16 v[68:69], v30
        ds_read_b64_tr_b16 v[70:71], v30 offset:576
        ds_read_b64_tr_b16 v[72:73], v66 offset:128""")
        hwt = p("ds_read_b64_tr_b16 v[74:75], v66 offset:704")
        p("v_cmp_gt_u32 vcc, 9, v190")
        for jj in range(4): p(f"v_lshl_or_b32 v{170+jj}, v{33+2*jj}, 16, v{32+2*jj}")
        p("v_lshl_or_b32 v183, v41, 16, v40")
        for jj in range(4): p(f"v_cndmask_b32 v{170+jj}, 0, v{170+jj}, vcc")
        p("v_cndmask_b32 v183, 0, v183, vcc\ns_mov_b32 exec_lo, 0\nv_mov_b32 v183, 0\ns_mov_b32 exec_lo, -1\nv_mov_b32 v186, v183")
        p.wait(hW)
        p(f"""{M32} v[128:143], v[196:199], v[170:173], 0
        {M32} v[144:159], v[192:195], v[170:173], 0
        {M32} v[128:143], v[200:203], v[174:177], v[128:143]
        {M32} v[144:159], v[200:203], v[178:181], v[144:159]
        {M32} v[128:143], v[204:207], v[182:185], v[128:143]
        {M32} v[144:159], v[204:207], v[186:189], v[144:159]""")
        Lw = p.lab("nwo")
        p(f"""s_lshl_b32 {sT2}, {sW}, 5
        s_add_u32 {sT2}, {sT2}, {sRB}
        s_cmp_ge_u32 {sT2}, 72
        s_cbranch_scc1 {Lw}
        v_and_b32 v66, 15, v1
        v_lshlrev_b32 v66, 4, v66
        v_lshl_add_u32 v66, v31, 10, v66
        s_lshr_b32 {sT0}, {sT2}, 2
        s_mul_i32 {sT0}, {sT0}, 4608
        s_mul_i32 {sT1}, {sHG}, 82944
        s_add_u32 {sT0}, {sT0}, {sT1}
        s_add_u32 {sT0}, {sT0}, {O_WO}
        s_and_b32 {sT1}, {sT2}, 3
        s_lshl_b32 {sT1}, {sT1}, 7
        s_add_u32 {sT2}, {sT0}, {sT1}
        s_add_u32 {sT2}, {sT2}, 4096
        s_lshl_b32 {sT1}, {sT1}, 1
        s_add_u32 {sT0}, {sT0}, {sT1}""")
        p.wait(hwt)
        p(f"""buffer_store_dwordx4 v[68:71], v66, {WS}, {sT0} offen sc1
        s_mov_b64 exec, 0xff
        buffer_store_dwordx4 v[72:75], v66, {WS}, {sT2} offen sc1
        s_mov_b64 exec, -1
        {Lw}:""")
        p.waitall(vm=False)
        p(f"""s_lshl_b32 {sT1}, {sHEAD}, 5
        s_add_u32 {sT1}, {sT1}, {sRB}
        s_lshl_b32 {sT1}, {sT1}, 8
        s_add_u32 {sT1}, {sT1}, {O_CS}
        s_add_u32 {sT2}, {sWP}, 32768
        s_add_u32 {sT0}, {sWP}, 36864
        s_add_u32 {sT3}, {sWP}, {36864 + 32768}
        v_mov_b32 v64, 0
        v_mov_b32 v65, 0
        v_lshlrev_b32 v26, 2, v1""")
        for d in range(8): p(f"v_cvt_pk_bf16_f32 v{48+d}, v{128+2*d}, v{129+2*d}")
        for d in range(8): p(f"v_cvt_pk_bf16_f32 v{56+d}, v{144+2*d}, v{145+2*d}")
        Lw = p.lab("n3")
        p(f"""buffer_store_dwordx4 v[48:51], v167, {WS}, {sWP} offen sc1
        buffer_store_dwordx4 v[56:59], v167, {WS}, {sT0} offen sc1
        s_cmp_ge_u32 {sRB}, 8
        s_cbranch_scc1 {Lw}
        s_mov_b32 exec_hi, 0
        buffer_store_dwordx4 v[52:55], v167, {WS}, {sT2} offen sc1
        buffer_store_dwordx4 v[60:63], v167, {WS}, {sT3} offen sc1
        s_mov_b32 exec_hi, -1
        {Lw}:""")
        for d in range(8):
            if d == 4: p("s_mov_b32 exec_hi, 0")
            p(f"v_dot2c_f32_bf16 v64, {sONE2}, v{48+d}\nv_dot2c_f32_bf16 v65, {sONE2}, v{56+d}")
        p("s_mov_b32 exec_hi, -1")
        p(f"v_permlane32_swap_b32 v64, v65\nv_add_f32 v64, v64, v65\nbuffer_store_dword v64, v26, {WS}, {sT1} offen sc1")

    def upoll(self):
        p = self.p; o = self.opt
        Lr, Le = p.lab("pu"), p.lab("pue")
        p(f"""v_and_b32 v27, 31, v1
        v_lshlrev_b32 v27, 2, v27
        s_lshl_b32 {sT0}, {sX}, 7
        s_add_u32 {sT0}, {sT0}, {O_FU}
        s_mov_b32 {sPC}, 0
        {Lr}:
        buffer_load_dword v28, v27, {WS}, {sT0} offen sc1
        s_add_u32 {sPC}, {sPC}, 1
        s_waitcnt vmcnt(0)
        v_xor_b32 v28, {sT4}, v28
        v_cmp_lt_u32 vcc, 15, v28
        s_cmp_gt_u32 {sPC}, {SPIN}
        s_cbranch_scc1 {Le}
        s_cbranch_vccnz {Lr}
        {Le}:
        v_cmp_ne_u32 vcc, 0, v28
        s_nop 4
        s_cmp_eq_u64 vcc, 0
        s_cselect_b32 {sT0}, {1 if o.get('slow') else 2}, 1""")
        self.lds_signal(1, 27, sT0)

    def conv_addr(self):
        p = self.p
        p("v_and_b32 v216, 15, v1\nv_lshrrev_b32 v217, 4, v1")
        p(f"""v_add_u32 v218, 1, v216
        v_and_b32 v219, 3, v218
        v_mul_u32_u24 v219, {CP}, v219
        v_lshrrev_b32 v218, 2, v218
        v_lshl_add_u32 v219, v218, 3, v219
        v_lshl_add_u32 v219, v217, 4, v219
        v_add_u32 v212, {sLC}, v219
        v_lshlrev_b32 v218, 5, v216
        v_lshlrev_b32 v219, 4, v217
        v_sub_u32 v219, v219, v218
        s_add_u32 {sT5}, {sLC}, {L_CU + 4064 - 3584}
        v_add_u32 v213, {sT5}, v219
        v_and_b32 v218, 1, v217
        v_lshlrev_b32 v218, 2, v218
        v_lshrrev_b32 v219, 2, v216
        v_add_u32 v218, v218, v219
        v_mul_u32_u24 v218, 73728, v218
        v_and_b32 v219, 3, v216
        v_lshl_add_u32 v218, v219, 5, v218
        v_lshrrev_b32 v219, 1, v217
        v_lshl_add_u32 v214, v219, 4, v218""")

    def tables(self):
        p = self.p
        L7 = p.lab("noconv2")
        p(f"s_cmp_eq_u32 {sCONV}, 0\ns_cbranch_scc1 {L7}\nv_add_u32 v27, {sLC}, v{v16L}")
        p.raw("s_waitcnt vmcnt(3)"); p.assume_done(self.hh)
        h = []
        for i in range(4):
            p(f"ds_read_b128 {vr(224+6*i,4)}, v27 offset:{32 + 1024*i}")
            h.append(p(f"ds_read_b64 {vr(228+6*i,2)}, v27 offset:{48 + 1024*i}"))
        p(f"""v_mov_b32 v32, 0
        v_mov_b32 v33, 0
        v_mov_b32 v34, 0
        v_mov_b32 v35, 0
        v_lshlrev_b32 v26, 3, v1
        v_add_u32 v26, {sLC}, v26
        ds_write_b64 v26, v[32:33] offset:{L_CU + 4096}""")
        for i in range(4):
            D = 224 + 6 * i; F = 64 + 12 * (i & 1)
            p.wait(h[i])
            if i == 0: p("v_readfirstlane_b32 s86, v224\nv_readfirstlane_b32 s87, v225")
            for q in range(4): p(f"v_alignbit_b32 v{F+q}, v{D+q+1}, v{D+q}, 16")
            p(f"ds_write_b128 v27, {vr(F,4)} offset:{CP + 32 + 1024*i}")
            for q in range(4): p(f"v_mov_b32 v{F+4+q}, v{D+q+1}")
            p(f"ds_write_b128 v27, {vr(F+4,4)} offset:{2*CP + 32 + 1024*i}")
            for q in range(3): p(f"v_mov_b32 v{F+8+q}, v{F+q+1}")
            p(f"v_alignbit_b32 v{F+11}, v{D+5}, v{D+4}, 16")
            p(f"ds_write_b128 v27, {vr(F+8,4)} offset:{3*CP + 32 + 1024*i}")
        p(f"""v_lshlrev_b32 v28, 4, v1
        v_sub_u32 v28, 48, v28
        v_lshlrev_b64 v[36:37], v28, s[86:87]
        v_lshlrev_b64 v[36:37], 16, v[36:37]
        v_mul_u32_u24 v26, {CP}, v1
        v_add_u32 v26, {sLC}, v26
        s_mov_b64 exec, 15
        ds_write_b128 v26, v[32:35]
        ds_write_b128 v26, v[34:37] offset:16
        s_mov_b64 exec, -1
        v_and_b32 v26, 15, v1
        v_lshrrev_b32 v27, 4, v1
        v_lshlrev_b32 v28, 3, v27
        v_add_u32 v28, v28, v26
        v_sub_u32 v29, 15, v28
        v_lshlrev_b32 v44, 16, v45""")
        self.onehot(208, 29, "v45", "v44", 30)
        p(f"{L7}:")

    def wp_loads(self):
        p = self.p; out = []
        for tile in range(2):
            for ks in range(36):
                def g(f=2 * ks + tile, ks=ks, tile=tile):
                    if ks % 2 == 0: p(f"s_add_u32 {sKB}, {sWP}, {tile*36864 + ks*1024}")
                    self.hW[f] = p(f"buffer_load_dwordx4 {wreg(f)}, v{15 if tile else v16L}, {WS}, {sKB} offen offset:{(ks%2)*1024} sc1")
                out.append(g)
        return out
    def small_loads(self):
        p = self.p
        p(f"s_lshl_b32 {sT0}, {sHEAD}, 13\ns_add_u32 {sT0}, {sT0}, {O_CS}\ns_add_u32 {sT1}, {sT0}, 4096")
        for i in range(8): p(f"buffer_load_dwordx4 {vr(32+4*i,4)}, v{v16L}, {WS}, {sT0 if i < 4 else sT1} offen offset:{(i%4)*1024} sc1")

    def conv(self):
        p = self.p; o = self.opt
        self.hW = {}
        NP = self.NP = o.get("w_pre", 54)
        n1 = o.get("w_in_conv", 0)
        LE, LJ = p.lab("noconv3"), p.lab("convend")
        La, Lb = p.lab("q3"), p.lab("q3e")
        p(f"s_cmp_eq_u32 {sW}, 3\ns_cbranch_scc1 {La}")
        p.waitall(); p(f"s_branch {Lb}\n{La}:")
        self.lds_wait(5, 3, 26); q0 = p.nvm()
        self.srd(SA, "q", TEN)
        p(f"s_mul_i32 {sT1}, {sRB}, {64*1152}\ns_mul_i32 {sT2}, {sHG}, 144\ns_add_u32 {sT1}, {sT1}, {sT2}")
        for i in range(9):
            p(f"""v_add_u32 v26, {64*i}, v1
            v_mul_u32_u24 v27, 7282, v26
            v_lshrrev_b32 v27, 16, v27
            v_mul_u32_u24 v27, {1152 - 144}, v27
            v_lshl_add_u32 v26, v26, 4, v27
            s_mov_b32 m0, {L_Q + 1024*i}
            buffer_load_dwordx4 v26, {SA}, {sT1} offen lds""")
        if o.get("touch0", 1):
            p(f"""v_lshlrev_b32 v26, 7, v1
            s_mul_i32 {sT3}, {sG4}, {4*3840}
            s_mul_i32 {sT2}, {sI4}, 3840
            s_add_u32 {sT3}, {sT3}, {sT2}
            s_add_u32 {sT3}, {sT3}, {O_P1}
            v_lshrrev_b32 v27, 5, v1
            v_mul_u32_u24 v27, {4*3840 - 4096}, v27
            v_add_u32 v27, v26, v27
            buffer_load_dword v220, v27, {WS}, {sT3} offen
            s_add_u32 {sT3}, {sT3}, {8*3840}
            buffer_load_dword v221, v27, {WS}, {sT3} offen
            s_lshl_b32 {sT3}, {sRB}, 3
            s_add_u32 {sT3}, {sT3}, {sHG}
            s_lshl_b32 {sT3}, {sT3}, 9
            s_add_u32 {sT3}, {sT3}, {O_ST[1]}
            v_and_b32 v27, 0x180, v26
            v_bfe_u32 v28, v1, 2, 1
            v_mul_u32_u24 v28, {O_ST[2] - O_ST[1]}, v28
            v_add3_u32 v27, v27, v28, {sT3}
            v_and_b32 v28, 0x380, v26
            v_add_u32 v28, {sFR}, v28
            v_cmp_gt_u32 vcc, 8, v1
            v_cndmask_b32 v27, v28, v27, vcc
            s_lshl_b32 {sT2}, {sG4}, 5
            s_add_u32 {sT2}, {sT2}, {O_FP}
            v_mov_b32 v28, {sT2}
            v_cmp_gt_u32 vcc, 13, v1
            v_cndmask_b32 v27, v28, v27, vcc
            s_mov_b64 exec, 0x3fff
            buffer_load_dword v222, v27, {WS}, 0 offen
            s_mov_b64 exec, -1""")
        p(f"s_waitcnt vmcnt({p.nvm() - q0})\n{Lb}:")
        p(f"""s_lshl_b32 {sT0}, {sHG}, 7
        s_add_u32 {sT0}, {sT0}, {O_FW}
        s_lshl_b32 {sT1}, {sRB}, 2
        s_add_u32 {sT1}, {sT1}, {sT0}""")
        L = self.last_of(0, 4, 26)
        self.setflag(sT1, 26); p(f"{L}:")
        p(f"s_cmp_eq_u32 {sCONV}, 0\ns_cbranch_scc1 {LE}")
        self.lds_wait(1, 1, 26)
        self.stamp("useen")
        p(f"s_lshl_b32 {sT1}, {sCH}, 12\ns_add_u32 {sT1}, {sT1}, {O_U}\ns_add_u32 m0, {sLC}, {L_CU}")
        hu = [p(f"buffer_load_dwordx4 v{v16L}, {WS}, {sT1} offen offset:{1024*i} sc1 lds") for i in range(4)]
        p(f"v_mov_b32 v216, -1\nv_mov_b32 v217, -1\nv_mov_b32 v218, -1\nv_mov_b32 v219, -1\ns_lshl_b32 {sT1}, {sCH}, 7\ns_add_u32 {sT1}, {sT1}, {O_Y}")
        for bp in range(1 if "Y" in o.get("abl", "") else 4):
            hp = p(f"buffer_store_dwordx4 v[216:219], v{160 if 'Y' in o.get('abl', '') else 214}, {WS}, {sT1} offen sc1"); p(f"s_add_u32 {sT1}, {sT1}, {8*73728}")
        ACC, AB, BB = 32, 64, 128
        hA = {}; hB = {}
        def rdA(m, t):
            b = AB + 32 * (m & 1) + 4 * t
            p(f"ds_read_b64 {vr(b,2)}, v212 offset:{512*t + 64*m}")
            hA[m, t] = p(f"ds_read_b64 {vr(b+2,2)}, v212 offset:{512*t + 64*m + 8}")
        def rdB(m, be):
            hB[m, be] = p(f"ds_read_b128 {vr(BB + 32*(m&1) + 4*be, 4)}, v213 offset:{512*(7-be) + 64*m}")
        for t in range(8): rdA(0, t)
        p.wait(*hu); self.lds_signal(3, 26)
        self.stamp("udma")
        for be in range(8): rdB(0, be)
        wl = self.wp_loads()
        bg = list(wl[:n1])
        m0 = o.get("w_step", 5)
        for m in range(8):
            main = []
            if m == 0:
                for b in range(8):
                    def g(b=b):
                        p.wait(hB[0, b]); p(f"{M16} {vr(ACC+4*b,4)}, v[208:211], {vr(BB+4*b,4)}, 0")
                    main.append(g)
            for (t, be) in sorted([(t, be) for t in range(8) for be in range(8 - t)], key=lambda x: (max(x), x[0] + x[1])):
                def g(t=t, be=be):
                    p.wait(hA[m, t], hB[m, be])
                    d = vr(ACC + 4 * (t + be), 4)
                    p(f"{M16} {d}, {vr(AB+32*(m&1)+4*t,4)}, {vr(BB+32*(m&1)+4*be,4)}, {d}")
                main.append(g)
            fill = []
            if m < 7:
                for t in range(8):
                    fill.append((8, lambda t=t: rdB(m + 1, t))); fill.append((8, lambda t=t: rdA(m + 1, t)))
            if m >= m0 and n1:
                if m == m0: self.lds_wait(2, 1, 26)
                k = min(-(-len(bg) // (8 - m)), len(bg))
                extra, bg = bg[:k], bg[k:]
                for i, g in enumerate(extra):
                    j = 2 + i * 34 // k
                    main[j] = (lambda a=main[j], b=g: (a(), b()))
            mix(p, main, fill, 8)
            if m == 0: p.wait(hp); self.lds_signal(8, 26)
            if m in (1, 3, 5): self.stamp(f"m{m}")
        p(f"s_lshl_b32 {sT1}, {sCH}, 7\ns_add_u32 {sT1}, {sT1}, {O_Y}")
        for bp in range(4):
            for d in range(4): p(f"v_cvt_pk_bf16_f32 v{64+4*bp+d}, v{ACC+8*bp+2*d}, v{ACC+8*bp+2*d+1}")
        for bp in range(4):
            O = 64 + 4 * bp
            p(f"v_permlane16_swap_b32 v{O}, v{O+2}\nv_permlane16_swap_b32 v{O+1}, v{O+3}")
            hy = p(f"buffer_store_dwordx4 {vr(O,4)}, v214, {WS}, {sT1} offen sc1")
            p(f"s_add_u32 {sT1}, {sT1}, {8*73728}")
        self.stamp("convE")
        if not n1: self.lds_wait(2, 1, 26)
        self.small_loads()
        for g in wl[n1:NP]: g()
        p(f"s_branch {LJ}")
        p(f"{LE}:")
        L = self.onwave(3)
        self.upoll()
        p(f"""s_lshl_b32 {sT0}, {sHG}, 7
        s_add_u32 {sT0}, {sT0}, {O_FW}
        s_cmp_lt_u32 {sJ}, 8
        s_cselect_b32 {sNC}, 3, 2
        v_and_b32 v30, 31, v1
        v_lshlrev_b32 v30, 2, v30""")
        p(f"v_mul_u32_u24 v26, 144, v1\nv_mov_b32 v28, 0\nv_mov_b32 v29, 0")
        hq = [p(f"ds_read_b128 {vr(32+4*i,4)}, v26 offset:{L_Q + 16*i}") for i in range(9)]
        for d in range(36):
            p.wait(hq[d // 4]); p(f"v_dot2c_f32_bf16 v28, {sONE2}, v{32+d}\nv_dot2c_f32_bf16 v29, v{32+d}, v{32+d}")
        self.lds_wait(3, sNC, 26)
        p(f"""s_lshl_b32 {sT1}, {sRB}, 3
        s_add_u32 {sT1}, {sT1}, {sHG}
        s_lshl_b32 {sT1}, {sT1}, 9
        s_add_u32 {sT1}, {sT1}, {O_ST[0]}
        v_lshlrev_b32 v26, 3, v1""")
        if not o.get("pollfirst", 1): p(f"buffer_store_dwordx2 v[28:29], v26, {WS}, {sT1} offen sc1")
        self.poll(30, sT0, 27); self.lds_signal(2, 76); self.stamp("wseen")
        if o.get("pollfirst", 1): p(f"buffer_store_dwordx2 v[28:29], v26, {WS}, {sT1} offen sc1")
        p(f"""v_mov_b32 v72, -1
        v_mov_b32 v73, -1
        v_mov_b32 v74, -1
        v_mov_b32 v75, -1
        s_lshl_b32 {sT3}, {sHG}, 2
        s_add_u32 {sT3}, {sT3}, {sI4}
        s_lshl_b32 {sT3}, {sT3}, 3
        s_add_u32 {sT3}, {sT3}, {sX}
        s_lshl_b32 {sT3}, {sT3}, 11
        s_add_u32 {sT3}, {sT3}, {O_P2[0]}
        s_add_u32 {sT2}, {sT3}, {O_P2[1] - O_P2[0]}""")
        for so in (sT3, sT2):
            for i in range(2): hp = p(f"buffer_store_dwordx4 v[72:75], v{160 if 'P' in o.get('abl', '') else v16L}, {WS}, {so} offen offset:{1024*i} sc1")
        win = o.get("w_win", 24); k0 = 10
        for g in wl[:k0]: g()
        p.wait(hp)
        p(f"s_lshl_b32 {sT1}, {sRB}, 7\ns_add_u32 {sT1}, {sT1}, {O_FX0}\ns_lshl_b32 {sT2}, {sHG}, 2\ns_add_u32 {sT2}, {sT2}, {sT1}")
        self.setflag(sT2, 26)
        self.lds_wait(8, sNC, 26)
        p(f"s_lshl_b32 {sT4}, {sX}, 7\ns_add_u32 {sT4}, {sT4}, {O_FID}\ns_lshl_b32 {sT2}, {sJ}, 2\ns_add_u32 {sT2}, {sT4}, {sT2}")
        self.setflag(sT2, 26)
        for i, g in enumerate(wl[k0:NP]):
            g()
            if i >= win: p(f"s_waitcnt vmcnt({win})")
        Lr, Le = p.lab("pw"), p.lab("pwe")
        p(f"""v_add_u32 v26, {sT4}, v30
        v_add_u32 v27, {sT0}, v30
        v_add_u32 v27, {O_FID - O_FW}, v27
        v_cmp_gt_u32 vcc, 32, v1
        v_cndmask_b32 v26, v27, v26, vcc
        v_and_b32 v27, 7, v1
        v_lshl_add_u32 v27, v27, 2, {sT1}
        s_mov_b32 {sPC}, 0
        {Lr}:
        buffer_load_dword v28, v26, {WS}, 0 offen sc1
        buffer_load_dword v29, v27, {WS}, 0 offen sc1
        s_add_u32 {sPC}, {sPC}, 1
        s_waitcnt vmcnt(0)
        v_xor_b32 v28, {sN}, v28
        v_xor_b32 v29, {sN}, v29
        v_or_b32 v28, v28, v29
        v_cmp_ne_u32 vcc, 0, v28
        s_cmp_gt_u32 {sPC}, {SPIN}
        s_cbranch_scc1 {Le}
        s_cbranch_vccnz {Lr}
        {Le}:""")
        self.lds_signal(7, 26)
        L2 = p.lab("w2"); p(f"s_branch {L2}\n{L}:")
        self.lds_wait(2, 1, 26)
        for i, g in enumerate(wl[:NP]):
            g()
            if i >= win: p(f"s_waitcnt vmcnt({win})")
        p(f"{L2}:")
        npf = o.get("npf", 0)
        if npf:
            p(f"s_mul_i32 {sT0}, {sI4}, {npf*1024}\ns_add_u32 {sT0}, {sT0}, {sWP}\ns_sub_u32 {sT0}, {sT0}, {2*73728}")
            for i in range(npf):
                p(f"buffer_load_dwordx4 {vr(76+4*i,4)}, v{v16L}, {WS}, {sT0} offen offset:{(i%4)*1024} sc1")
                if i % 4 == 3: p(f"s_add_u32 {sT0}, {sT0}, 4096")
        self.small_loads()
        p(f"{LJ}:")
        X, Tt, Y, R = 76, 96, 116, 136
        if o.get("dbgw"): self.stamp("wl0"); p.waitall(); self.stamp("wl1")
        self.lds_wait(7, 1, 26)
        self.stamp("w7")
        hm = self.tile_stats_load(0, 64, 26)()
        self.lds_wait(1, 1, 26)
        p(f"""s_sub_u32 {sFAST}, {sT5}, 1
        v_and_b32 v26, 15, v1
        s_lshl_b32 {sT0}, {sW}, 4
        v_add_u32 v27, {sT0}, v26
        v_mul_u32_u24 v27, 144, v27
        v_lshrrev_b32 v28, 4, v1
        v_lshl_add_u32 v27, v28, 3, v27""")
        for t in range(5): hq = p(f"ds_read_b64 {vr(RES+2*t,2)}, v27 offset:{L_Q + 32*t}")
        p(f"""v_and_b32 v27, 1, v26
        v_lshlrev_b32 v27, 7, v27
        v_lshrrev_b32 v28, 3, v26
        v_lshl_add_u32 v27, v28, 6, v27
        v_bfe_u32 v28, v26, 1, 2
        v_lshl_add_u32 v26, v28, 4, v27
        s_lshl_b32 {sT0}, {sW}, 8
        s_add_u32 {sT0}, {sT0}, {LM_CS}
        v_add_u32 v26, {sT0}, v26
        v_lshrrev_b32 v27, 1, v1
        v_lshlrev_b32 v27, 7, v27
        v_and_b32 v28, 1, v1
        v_lshl_add_u32 v27, v28, 4, v27
        v_mov_b32 v28, 0x40000000
        v_cmp_gt_u32 vcc, 16, v1
        v_cndmask_b32 v29, v28, v27, vcc
        s_mul_i32 {sT4}, {sW}, 3072
        v_lshl_add_u32 v30, v1, 3, {sT4}
        s_mul_i32 {sT3}, {sRB}, 73728
        s_mul_i32 {sT1}, {sHG}, 9216
        s_add_u32 {sT3}, {sT3}, {sT1}
        s_lshl_b32 {sT1}, {sW}, 5
        s_add_u32 {sT3}, {sT3}, {sT1}
        s_add_u32 {sT3}, {sT3}, {O_Y}""")
        p.wait(hm)
        self.stamp("wland")
        for i in range(1, 8):
            for h in (0, 2): p(f"v_pk_add_f32 {vr(32+h,2)}, {vr(32+h,2)}, {vr(32+4*i+h,2)}")
        for sw in ("16", "32"):
            for i in range(4): p(f"v_mov_b32 v{36+i}, v{32+i}")
            for i in range(4): p(f"v_permlane{sw}_swap_b32 v{32+i}, v{36+i}")
            for h in (0, 2): p(f"v_pk_add_f32 {vr(32+h,2)}, {vr(32+h,2)}, {vr(36+h,2)}")
        p("s_mov_b64 exec, 0xffff\nds_write_b128 v26, v[32:35]\ns_mov_b64 exec, -1")
        p.wait(hq)
        self.tile_stats_finish(64, R); self.unpack(X, RES, 10); self.norm_tile(Tt, X, R)
        p(f"v_lshrrev_b32 v28, 4, v1\nv_mul_u32_u24 v28, 504, v28\nv_sub_u32 v223, v{vXT}, v28")
        Lr, Le = p.lab("py"), p.lab("pye")
        p.waitall(); p(f"s_mov_b32 {sPC}, 0\n{Lr}:\ns_add_u32 {sT0}, {sT3}, 4096\ns_add_u32 {sT1}, {sT3}, 8192")
        for i in range(3):
            p(f"s_add_u32 m0, {sT4}, {1024*i}")
            hy = p(f"buffer_load_dwordx4 v{27 if i < 2 else 29}, {WS}, {(sT3, sT0, sT1)[i]} offen sc1 lds")
        p(f"s_add_u32 {sPC}, {sPC}, 1"); p.wait(hy)
        hy = [p(f"ds_read_b64_tr_b16 {vr(YT+2*t,2)}, v30 offset:{512*t}") for t in range(5)]
        for t in range(5):
            p.wait(hy[t]); self.unpack(Y + 4 * t, YT + 2 * t, 2)
            if t == 0: p(f"v_max3_u32 v28, v{Y}, v{Y+1}, v{Y+2}\nv_max_u32 v28, v28, v{Y+3}")
            else: p(f"v_max3_u32 v28, v28, v{Y+4*t}, v{Y+4*t+1}\nv_max3_u32 v28, v28, v{Y+4*t+2}, v{Y+4*t+3}")
        p(f"v_cmp_eq_u32 vcc, {sHI}, v28\ns_cmp_gt_u32 {sPC}, {SPIN // 10}\ns_cbranch_scc1 {Le}\ns_cbranch_vccnz {Lr}\n{Le}:")
        self.stamp("yland")
        self.publish_z(0, X, Tt, Y, 140)

    def wo_dma(self):
        p = self.p; out = []
        out.append(lambda: p(f"s_mul_i32 {sNC}, {sHG}, 82944\ns_add_u32 {sNC}, {sNC}, {O_WO}\ns_add_u32 {sNC}, {sNC}, {sW10}"))
        for i in range(21):
            def g(i=i):
                L = None
                if i == 20: L = p.lab("wo"); p(f"s_cmp_ge_u32 {sW}, 1\ns_cbranch_scc1 {L}")
                p(f"s_add_u32 m0, {sW10}, {L_W + 4096*i}\ns_add_u32 {sO}, {sNC}, {4096*i}\nbuffer_load_dwordx4 v{v16L}, {WS}, {sO} offen sc1 lds")
                if L: p(f"{L}:")
            out.append(g)
        return out

    def softmax(self, t, rl, E, tmp, out, pk):
        p = self.p; F = []
        a = lambda c, s: F.append((c, lambda: p(s)))
        mx, mn, c1, c2 = tmp, tmp + 1, tmp + 2, tmp + 3
        a(4, f"v_max3_f32 v{mx}, v{t}, v{t+1}, v{t+2}"); a(4, f"v_max3_f32 v{mn}, -v{t}, -v{t+1}, -v{t+2}")
        for i in (3, 5, 7):
            a(4, f"v_max3_f32 v{mx}, v{mx}, v{t+i}, v{t+i+1}"); a(4, f"v_max3_f32 v{mn}, v{mn}, -v{t+i}, -v{t+i+1}")
        a(12, f"v_permlane32_swap_b32 v{mx}, v{mn}")
        a(4, f"v_max_f32 v{mx}, v{mx}, v{mn}")
        a(4, f"v_mul_f32 v{c1}, -v{mx}, v{rl}"); a(4, f"v_mul_f32 v{c2}, -v{mx}, v{rl}")
        a(12, f"v_permlane32_swap_b32 v{c1}, v{c2}")
        P, N = E, E + 10
        assert rl % 2 == 0 and c1 % 2 == 0
        if pk:
            for i in range(0, 8, 2):
                a(5, f"v_pk_fma_f32 {vr(P+i,2)}, {vr(t+i,2)}, {vr(rl,2)}, {vr(c1,2)} op_sel_hi:[1,0,0]")
                a(5, f"v_pk_fma_f32 {vr(N+i,2)}, {vr(t+i,2)}, {vr(rl,2)}, {vr(c1,2)} op_sel:[0,0,1] op_sel_hi:[1,0,1] neg_lo:[1,0,0] neg_hi:[1,0,0]")
        for i in range(8 if pk else 0, 9):
            a(4, f"v_fma_f32 v{P+i}, v{t+i}, v{rl}, v{c1}"); a(4, f"v_fma_f32 v{N+i}, -v{t+i}, v{rl}, v{c2}")
        for i in range(9):
            a(8, f"v_exp_f32 v{P+i}, v{P+i}"); a(8, f"v_exp_f32 v{N+i}, v{N+i}")
        s1, s2 = tmp, tmp + 2
        if pk:
            a(5, f"v_pk_add_f32 {vr(s1,2)}, {vr(P,2)}, {vr(P+2,2)}"); a(5, f"v_pk_add_f32 {vr(s2,2)}, {vr(N,2)}, {vr(N+2,2)}")
            for i in (4, 6):
                a(5, f"v_pk_add_f32 {vr(s1,2)}, {vr(s1,2)}, {vr(P+i,2)}"); a(5, f"v_pk_add_f32 {vr(s2,2)}, {vr(s2,2)}, {vr(N+i,2)}")
        else:
            for h in range(2):
                a(4, f"v_add_f32 v{s1+h}, v{P+h}, v{P+2+h}"); a(4, f"v_add_f32 v{s2+h}, v{N+h}, v{N+2+h}")
            for i in (4, 6):
                for h in range(2):
                    a(4, f"v_add_f32 v{s1+h}, v{s1+h}, v{P+i+h}"); a(4, f"v_add_f32 v{s2+h}, v{s2+h}, v{N+i+h}")
        a(4, f"v_add_f32 v{s1}, v{s1}, v{s1+1}"); a(4, f"v_add_f32 v{s2}, v{s2}, v{s2+1}")
        a(4, f"v_add_f32 v{s1}, v{s1}, v{P+8}"); a(4, f"v_add_f32 v{s2}, v{s2}, v{N+8}")
        a(12, f"v_permlane32_swap_b32 v{s1}, v{s2}")
        a(4, f"v_add_f32 v{s1}, v{s1}, v{s2}")
        a(8, f"v_rcp_f32 v{s1}, v{s1}"); a(8, f"v_mov_b32 v{s1+1}, v{s1}")
        a(12, f"v_permlane32_swap_b32 v{s1}, v{s1+1}")
        if pk:
            for i in range(0, 8, 2):
                a(5, f"v_pk_mul_f32 {vr(P+i,2)}, {vr(P+i,2)}, {vr(s1,2)} op_sel_hi:[1,0]")
                a(5, f"v_pk_mul_f32 {vr(N+i,2)}, {vr(N+i,2)}, {vr(s1,2)} op_sel:[0,1]")
        for i in range(8 if pk else 0, 9):
            a(4, f"v_mul_f32 v{P+i}, v{P+i}, v{s1}"); a(4, f"v_mul_f32 v{N+i}, v{N+i}, v{s1+1}")
        for i in range(4): a(4, f"v_cvt_pk_bf16_f32 v{out[i]}, v{P+2*i}, v{P+2*i+1}")
        for i in range(4): a(4, f"v_cvt_pk_bf16_f32 v{out[4+i]}, v{N+2*i}, v{N+2*i+1}")
        a(4, f"v_cvt_pk_bf16_f32 v{out[8]}, v{P+8}, v{N+8}")
        return F

    def layer(self, L):
        p = self.p; o = self.opt
        A_, B_ = [32, 48], [64, 80]; FB, CS, PK, E, TMP = 96, 128, [156, 172], 188, 208
        RL = [212, 214]; RS = [216, 217]; vB = 218
        WA = [219, 220, 221, 222]; RA = [26, 27, 28]
        hZ = {}; hst = []
        def zdma(n):
            T, i = divmod(n, 9)
            p(f"s_add_u32 m0, {sW10}, {SUB*T + 4096*i}\ns_add_u32 {sO}, {sT3}, {SUB*T + 4096*i}")
            hZ[n] = p(f"buffer_load_dwordx4 v{v16L}, {WS}, {sO} offen sc1 lds")
        p(f"s_add_u32 {sT3}, {sZ}, {sW10}")
        NU = o.get("NU", 6)
        for n in range(NU): zdma(n)
        p(f"""v_lshrrev_b32 v29, 5, v1
        v_lshlrev_b32 v29, 7, v29
        s_lshl_b32 {sT0}, {sW}, 8
        s_add_u32 {sT0}, {sT0}, {LM_CS}
        v_add_u32 v29, {sT0}, v29
        v_add_u32 v{vB}, {SUB}, v{v16L}
        v_lshlrev_b32 v31, 3, v1
        s_lshl_b32 {sT4}, {sRB}, 12
        s_add_u32 {sT4}, {sT4}, {O_ST[1]}""")
        for i in range(7): hcs = p(f"ds_read_b128 {vr(CS+4*i,4)}, v29 offset:{16*i}")
        bud = o.get("budget", 16)
        stl = [(lambda i=i: hst.append(p(f"buffer_load_dwordx2 {vr(PK[1]+2*i,2)}, v31, {WS}, {sT4} offen offset:{512*i} sc1"))) for i in range(8)]
        zl = [(lambda n=n: zdma(n)) for n in range(NU, 18)]
        mem = {1 + 2 * i: g for i, g in enumerate(zl[:13 - NU] + stl + zl[13 - NU:])}
        def lines(text, c=4): return [(c, (lambda s=s: p(s))) for s in text.strip().split("\n")]
        S = PK[1]
        stats = [(0, lambda: p.wait(*hst))]
        for i in range(1, 8): stats += lines(f"v_add_f32 v{S}, v{S}, v{S+2*i}\nv_add_f32 v{S+1}, v{S+1}, v{S+2*i+1}")
        stats += lines(f"""v_mul_f32 v{RL[0]+1}, {INV576 | 0x80000000}, v{S}
        v_mul_f32 v{S+1}, {INV576}, v{S+1}
        v_fma_f32 v{S+1}, -v{RL[0]+1}, v{RL[0]+1}, v{S+1}
        v_mov_b32 v{RL[1]+1}, v{RL[0]+1}
        v_max_f32 v{S+1}, 0, v{S+1}
        v_add_f32 v{S+1}, {EPS}, v{S+1}
        v_rsq_f32 v{RS[0]}, v{S+1}
        v_permlane32_swap_b32 v{RL[0]+1}, v{RL[1]+1}
        v_mov_b32 v{RS[1]}, v{RS[0]}
        s_nop 1
        v_permlane32_swap_b32 v{RS[0]}, v{RS[1]}
        v_mul_f32 v{RL[0]}, {LOG2E}, v{RS[0]}
        v_mul_f32 v{RL[1]}, {LOG2E}, v{RS[1]}""")
        addr = lines(f"""v_and_b32 v{E}, 31, v1
        v_bfe_u32 v{E+1}, v1, 1, 1
        v_lshlrev_b32 v{E+1}, 2, v{E+1}
        v_and_b32 v{E+2}, 1, v1
        v_lshl_add_u32 v{E+1}, v{E+2}, 1, v{E+1}
        v_bfe_u32 v{E+2}, v1, 2, 1
        v_add_u32 v{E+1}, v{E+1}, v{E+2}
        v_lshlrev_b32 v{E+1}, 4, v{E+1}
        v_lshl_add_u32 v{E}, v{E}, 7, v{E+1}
        s_lshl_b32 {sT0}, {sW}, 13
        v_add_u32 v{E}, {sT0}, v{E}
        v_lshrrev_b32 v{E+1}, 5, v1
        v_lshlrev_b32 v{E+2}, 5, v{E+1}
        v_xor_b32 v{WA[0]}, v{E}, v{E+2}
        v_xor_b32 v{WA[1]}, 16, v{WA[0]}
        v_lshlrev_b32 v{E+2}, 4, v{E+1}
        v_or_b32 v{E+2}, 64, v{E+2}
        v_xor_b32 v{WA[2]}, v{E}, v{E+2}
        v_xor_b32 v{WA[3]}, 32, v{WA[2]}
        v_bfe_u32 v{E}, v1, 2, 2
        v_lshl_add_u32 v{E}, v{E+1}, 2, v{E}
        v_bfe_u32 v{E+2}, v{E}, 1, 1
        v_lshlrev_b32 v{E+2}, 2, v{E+2}
        v_and_b32 v{E+3}, 1, v{E}
        v_lshl_add_u32 v{E+2}, v{E+3}, 1, v{E+2}
        v_add_u32 v{E+2}, v{E+2}, v{E+1}
        v_lshlrev_b32 v{E+2}, 4, v{E+2}
        v_lshl_add_u32 v{E}, v{E}, 7, v{E+2}
        v_add_u32 v{E}, {sT0}, v{E}
        v_and_b32 v{E+1}, 1, v1
        v_bfe_u32 v{E+2}, v1, 1, 1
        v_bfe_u32 v{E+3}, v1, 4, 1
        v_lshlrev_b32 v{RA[0]}, 5, v{E+1}
        v_lshl_add_u32 v{RA[0]}, v{E+3}, 4, v{RA[0]}
        v_xor_b32 v{RA[0]}, v{E}, v{RA[0]}
        v_lshl_add_u32 v{RA[0]}, v{E+2}, 3, v{RA[0]}
        v_lshlrev_b32 v{RA[1]}, 4, v{E+1}
        v_or_b32 v{RA[1]}, 64, v{RA[1]}
        v_xor_b32 v{RA[1]}, v{E}, v{RA[1]}
        v_xor_b32 v{RA[2]}, 32, v{RA[1]}
        v_lshl_add_u32 v{RA[2]}, v{E+2}, 3, v{RA[2]}
        v_add_u32 v{E+4}, 8, v{RA[1]}
        v_cmp_eq_u32 vcc, 1, v{E+3}
        v_lshrrev_b32 v29, 5, v1
        v_cndmask_b32 v{RA[2]}, v{RA[2]}, v{E+4}, vcc
        v_mul_u32_u24 v29, 24, v29
        v_and_b32 v30, 31, v1
        v_add_u32 v30, v29, v30
        v_lshlrev_b32 v29, 4, v30
        v_lshlrev_b32 v30, 5, v30""")
        def kpart(T):
            A, k, nm, r = A_[T], PK[T], RL[T] + 1, RS[T]
            F = [(0, lambda: p.wait(hcs))]
            F += lines("\n".join(f"v_fmac_f32 v{A+i}, v{CS+i}, v{nm}" for i in range(16)))
            F += self.softmax(A, RL[T], E, TMP, [k + i for i in range(9)], False)
            F += lines("\n".join(f"v_mul_f32 v{A+i}, v{A+i}, v{r}" for i in range(9, 16)))
            F += lines("\n".join(f"v_cvt_pk_bf16_f32 v{k+12+i}, v{A+9+2*i}, v{A+10+2*i}" for i in range(3)))
            F += lines(f"v_mov_b32 v{k+9}, 0\nv_mov_b32 v{k+11}, 0")
            return F
        def vtail(T):
            A, B, k, nm, r = A_[T], B_[T], PK[T], RL[T] + 1, RS[T]
            return lines(f"""v_fmac_f32 v{B+9}, v{CS+25}, v{nm}
            v_fmac_f32 v{B+10}, v{CS+26}, v{nm}
            v_mul_f32 v{B+9}, v{B+9}, v{r}
            v_mul_f32 v{B+10}, v{B+10}, v{r}
            v_cvt_pk_bf16_f32 v{k+15}, v{A+15}, v{B+9}
            v_cvt_pk_bf16_f32 v{k+10}, v{B+10}, 1.0""")
        hw = {}
        def wr(T, idx):
            def g():
                for i in idx: hw[T] = p(f"ds_write_b128 v{WA[i]}, {vr(PK[T]+4*i,4)} offset:{4096*T}")
            return [(4 * len(idx), g)]
        hA = {}; FR = [156, 188, 96, 108]
        def rd_part(s):
            def g():
                p.wait(hw[s >> 1])
                for i in range(3):
                    for rd in range(2): hA[s] = p(f"ds_read_b64_tr_b16 {vr(FR[s]+4*i+2*rd,2)}, v{RA[i]} offset:{2048*s + 1024*rd}")
            return [(24, g)]
        seq = [(tile, T, ks) for tile in range(2) for T in range(2) for ks in range(36)]
        PD = o.get("PD", 6); hF = {}
        def rd_frag(n):
            tile, T, ks = seq[n]
            hF[n] = p(f"ds_read_b128 {vr(FB + 4*(n&7), 4)}, v{vB if T else v16L} offset:{1024*ks}")
        need = {4: (1, 0), 8: (3, 3), 16: (5, 10), 24: (8, 18), 36: (12, 30), 52: (17, 49)}
        fa = o.get("free_at", 110); WG = o.get("WG", 2); nxt = [4]
        def step(n):
            def g():
                tile, T, ks = seq[n]; d = vr((A_, B_)[tile][T], 16)
                p.wait(hF[n], self.hW.get(2 * ks + tile))
                p(f"{M32} {d}, {wreg(2*ks+tile)}, {vr(FB + 4*(n&7), 4)}, {d if ks else 0}")
                for _ in range(2):
                    m = nxt[0]
                    if m >= 144 or m > n + PD or (m in need and n < need[m][1]): break
                    if m in need: p.wait(hZ[need[m][0]]); self.barrier()
                    rd_frag(m); nxt[0] += 1
                if n in mem: mem[n]()
                if n == fa: self.barrier()
                if n % WG == WG - 1 and n < 143 and n > 8: p.wait(hF[min(n + WG, 143)])
            return g
        p.wait(hZ[0]); self.barrier()
        self.stamp("z0")
        for n in range(4): rd_frag(n)
        if L == 1: mem[60] = lambda: self.clean_l2("g")
        def touch():
            p(f"""s_add_u32 {sT0}, {sG4}, {sW}
            s_lshl_b32 {sT0}, {sT0}, 2
            s_add_u32 {sT0}, {sT0}, {sI4}
            s_mul_i32 {sT0}, {sT0}, 3840
            s_add_u32 {sT0}, {sT0}, {O_P1}
            s_lshl_b32 {sT1}, {sRB}, 3
            s_add_u32 {sT1}, {sT1}, {sHG}
            s_lshl_b32 {sT1}, {sT1}, 9
            s_add_u32 {sT1}, {sT1}, {O_ST[2] - 4096}
            s_lshl_b32 {sT2}, {sG4}, 5
            s_add_u32 {sT2}, {sT2}, {O_FP}
            v_lshlrev_b32 v31, 7, v1
            v_mov_b32 v223, {sT0}
            v_writelane_b32 v223, {sT1}, 32
            v_writelane_b32 v223, {sT1}, 33
            v_writelane_b32 v223, {sT1}, 34
            v_writelane_b32 v223, {sT1}, 35
            v_add_u32 v31, v31, v223
            v_writelane_b32 v31, {sT2}, 30
            s_add_u32 {sT2}, {sFR}, 128
            v_writelane_b32 v31, {sT2}, 31
            s_add_u32 {sT2}, {sFR}, 256
            v_writelane_b32 v31, {sT2}, 36
            s_mov_b32 exec_hi, 31
            buffer_load_dword v31, v31, {WS}, 0 offen
            s_mov_b32 exec_hi, -1""")
        if L == 0:
            mem[40] = touch
            rest = self.wp_loads()[self.NP:]
            assert self.NP % 2 == 0
            n = 41
            for i, g in enumerate(rest): mem[n] = g; n += 2 if len(rest) <= 20 or i % 2 else 1
            ws_ = 3 if n + 3 * 22 < 144 else 2
            for i, g in enumerate(self.wo_dma()): mem[n + ws_ * i] = g
        K0, K1 = kpart(0), kpart(1)
        mix(p, [step(n) for n in range(0, 38)], addr, bud)
        self.stamp("p1")
        left = mix(p, [step(n) for n in range(38, 74)], stats + K0, bud, False)
        self.stamp("p2")
        left = mix(p, [step(n) for n in range(74, fa + 1)], left + K1, bud, False)
        self.stamp("p3")
        mix(p, [step(n) for n in range(fa + 1, 144)], vtail(0) + wr(0, [0, 1]) + wr(0, [2, 3]) + left + wr(1, [0, 1]) + rd_part(0) + rd_part(1), bud)
        self.stamp("gemm")
        KV0, KV1 = A_
        def mm_part(s):
            b = FR[s]; p.wait(hA[s])
            p(f"{M32} {vr(KV0,16)}, {vr(b,4)}, {vr(b+8,4)}, {vr(KV0,16) if s else 0}")
            p(f"{M32} {vr(KV1,16)}, {vr(b+4,4)}, {vr(b+8,4)}, {vr(KV1,16) if s else 0}")
        p(f"""s_add_u32 {sT1}, {sG4}, {sW}
        s_lshl_b32 {sT1}, {sT1}, 2
        s_add_u32 {sT1}, {sT1}, {sI4}
        s_mul_i32 {sT1}, {sT1}, 3840
        s_add_u32 {sT1}, {sT1}, {O_P1}""")
        run(vtail(1)); run(wr(1, [2, 3]))
        mm_part(0); mm_part(1)
        run(rd_part(2)); run(rd_part(3))
        mm_part(2); mm_part(3)
        self.dual(f"s_mov_b64 exec, {M48}\n" + "\n".join(
            f"buffer_store_dwordx4 {vr(KV0+4*jj if jj < 4 else KV1,4)}, v{30 if jj < 4 else 29}, {WS}, {sT1} offen offset:{1536*(jj>>1) + 16*(jj&1)}" for jj in range(5)) + "\ns_mov_b64 exec, -1")
        self.stamp("part")
        def qsoft(T, half):
            A, B, rl = A_[T], B_[T], RL[T]
            F = lines("\n".join(f"v_pk_fma_f32 {vr(B+i,2)}, {vr(CS+16+i,2)}, {vr(rl,2)}, {vr(B+i,2)} op_sel:[0,1,0]" for i in range(0, 8, 2)))
            F += lines(f"v_fmac_f32 v{B+8}, v{CS+24}, v{rl+1}")
            F += self.softmax(B, rl, E, TMP, [A + i for i in range(9)], True)
            F += lines("\n".join(f"v_mov_b32 v{A+9+i}, 0" for i in range(3)))
            n = o.get("qsplit", 45)
            run(F[:n] if half == 0 else F[n:])
        p(f"""s_lshl_b32 {sT0}, {sG4}, 5
        s_add_u32 {sT0}, {sT0}, {O_FP + 64*L}
        s_lshl_b32 {sT1}, {sI4}, 2
        s_lshl_b32 {sT2}, {sW}, 4
        s_add_u32 {sT1}, {sT1}, {sT2}
        s_add_u32 {sT1}, {sT1}, {sT0}
        s_lshl_b32 {sT2}, {sI4}, 4
        s_add_u32 {sT0}, {sT0}, {sT2}""")
        qsoft(0, 0)
        p.waitall(); self.setflag(sT1, 96, True)
        self.stamp("ack1")
        p(f"""v_lshlrev_b32 v116, 3, v0
        v_mov_b32 v118, 0x40000000
        v_cmp_gt_u32 vcc, 240, v0
        v_lshlrev_b32 v117, 4, v0
        v_cndmask_b32 v116, v118, v116, vcc
        v_lshrrev_b32 v30, 1, v29
        s_add_u32 {sT2}, {sG4}, {sI4}
        s_mul_i32 {sT2}, {sT2}, {4*3840}
        s_add_u32 {sT2}, {sT2}, {O_P1}
        s_lshl_b32 {sT3}, {sHG}, 2
        s_add_u32 {sT3}, {sT3}, {sI4}
        s_lshl_b32 {sT3}, {sT3}, 3
        s_add_u32 {sT3}, {sT3}, {sX}
        s_lshl_b32 {sT3}, {sT3}, 11
        s_add_u32 {sT3}, {sT3}, {O_P2[L]}""")
        p("v_and_b32 v96, 3, v1\nv_lshlrev_b32 v96, 2, v96")
        self.poll(96, sT0, 97)
        self.stamp("Fp")
        hr = []
        for pp in range(4):
            hr.append(p(f"buffer_load_dwordx4 {vr(96+4*pp,4)}, v117, {WS}, {sT2} offen sc1"))
            if pp < 3: p(f"s_add_u32 {sT2}, {sT2}, 3840")
        p.wait(hr[1])
        p("v_pk_add_f32 v[96:97], v[96:97], v[100:101]\nv_pk_add_f32 v[98:99], v[98:99], v[102:103]")
        p.wait(hr[3])
        p("""v_pk_add_f32 v[104:105], v[104:105], v[108:109]
        v_pk_add_f32 v[106:107], v[106:107], v[110:111]
        v_pk_add_f32 v[96:97], v[96:97], v[104:105]
        v_pk_add_f32 v[98:99], v[98:99], v[106:107]
        v_cvt_pk_bf16_f32 v96, v96, v97
        v_cvt_pk_bf16_f32 v97, v98, v99
        v_min_u32 v96, -2, v96
        v_min_u32 v97, -2, v97""")
        hs = p(f"buffer_store_dwordx2 v[96:97], v116, {WS}, {sT3} offen sc1")
        self.stamp("lred")
        if L == 1: self.clean_l2("p")
        self.barrier()
        qsoft(0, 1); qsoft(1, 0); qsoft(1, 1)
        p(f"""s_lshl_b32 {sT0}, {sHEAD}, 14
        s_add_u32 {sT0}, {sT0}, {O_P2[L]}
        s_mul_i32 {sT3}, {sHG}, 2304
        s_add_u32 {sT3}, {sT3}, {sZ}
        s_add_u32 {sT3}, {sT3}, {self.OO - self.OZ}
        s_add_u32 {sT4}, {sT3}, 36864
        v_bfe_u32 v26, v1, 4, 1
        v_mul_u32_u24 v26, 18432, v26
        v_and_b32 v27, 15, v1
        v_lshl_add_u32 v26, v27, 4, v26
        v_lshrrev_b32 v27, 5, v1
        s_lshl_b32 {sT2}, {sW}, 1
        v_add_u32 v27, {sT2}, v27
        v_lshl_add_u32 v28, v27, 1, v26
        v_lshl_add_u32 v26, v27, 8, v26
        v_mov_b32 v205, 0
        v_mov_b32 v206, 0
        v_mov_b32 v207, 0""")
        self.stamp("Fk")
        hg_ = []; GB, SU, KF = 96, 176, 196
        p(f"s_add_u32 {sT1}, {sT0}, 4096\ns_add_u32 {sT2}, {sT0}, 8192\ns_add_u32 {sO}, {sT0}, 12288\ns_mov_b32 {sPC}, 0")
        def gl(xx):
            b = GB + 10 * xx; of = (xx & 1) * 2048; so = (sT0, sT1, sT2, sO)[xx >> 1]
            return f"""buffer_load_dwordx4 {vr(b,4)}, v29, {WS}, {so} offen offset:{of} sc1
            buffer_load_dwordx4 {vr(b+4,4)}, v29, {WS}, {so} offen offset:{of+768} sc1
            buffer_load_dword v{b+8}, v30, {WS}, {so} offen offset:{of+1536} sc1"""
        p(f"s_mov_b64 exec, {M48}")
        for xx in range(8): hg_.append(p(gl(xx)))
        for xx in range(8):
            b = GB + 10 * xx; Lr, Lo, Lk = p.lab("gr"), p.lab("go"), p.lab("gk")
            p.raw(f"{Lr}:"); p.wait(hg_[xx])
            if xx == 0: self.stamp("g0")
            p(f"v_max3_u32 v{b+9}, v{b}, v{b+2}, v{b+4}\nv_max3_u32 v{b+9}, v{b+9}, v{b+6}, v{b+8}\nv_cmp_eq_u32 vcc, -1, v{b+9}")
            p.raw(f"s_cbranch_vccnz {Lo}\n{Lk}:")
            self.tail += [f"{Lo}:", f"s_add_u32 {sPC}, {sPC}, 1", f"s_cmp_gt_u32 {sPC}, {SPIN // 10}", f"s_cbranch_scc1 {Lk}", "s_waitcnt vmcnt(0)"]
            self.tail += [l.strip() for x2 in range(xx, 8) for l in gl(x2).split("\n")] + [f"s_branch {Lr}"]
            if xx == 0: self.unpack(SU, b, 9)
            else:
                for d in range(9): p(f"v_dot2c_f32_bf16 v{SU+2*d}, {sONE}, v{b+d}\nv_dot2c_f32_bf16 v{SU+2*d+1}, {sONEH}, v{b+d}")
        p("s_mov_b64 exec, -1")
        for d in range(9): p(f"v_cvt_pk_bf16_f32 v{KF+d}, v{SU+2*d}, v{SU+2*d+1}")
        self.stamp("gath")
        for T in range(2):
            for s in range(3):
                d = vr(B_[T], 16)
                p(f"{M32} {d}, {vr(KF+4*s,4)}, {vr(A_[T]+4*s,4)}, {d if s else 0}")
        p(f"""v_add_u32 v208, {L_W}, v{v16L}
        v_add_u32 v209, {L_W + 9*4608}, v{v16L}
        v_lshrrev_b32 v210, 4, v1
        v_lshlrev_b32 v210, 3, v210
        v_and_b32 v211, 7, v1
        v_add_u32 v210, v210, v211
        v_lshlrev_b32 v210, 4, v210
        v_add_u32 v211, {L_W + 9*4608 + 4096}, v210
        v_add_u32 v210, {L_W + 4096}, v210""")
        for T in range(2):
            B = B_[T]; O = 96 + 4 * T
            p(f"v_add_f32 v{B+10}, {EPS6}, v{B+9}\nv_rcp_f32 v{B+10}, v{B+10}")
            for i in range(0, 8, 2): p(f"v_pk_mul_f32 {vr(B+i,2)}, {vr(B+i,2)}, {vr(B+10,2)} op_sel_hi:[1,0]")
            p(f"v_mul_f32 v{B+8}, v{B+8}, v{B+10}")
            for i in range(4): p(f"v_cvt_pk_bf16_f32 v{O+i}, v{B+2*i}, v{B+2*i+1}")
            p(f"v_cvt_pk_bf16_f32 v{B+8}, v{B+8}, v{B+8}")
            so = sT3 if T == 0 else sT4
            self.dual(f"buffer_store_dwordx4 {vr(O,4)}, v26, {WS}, {so} offen\nbuffer_store_short v{B+8}, v28, {WS}, {so} offen offset:2048")
        self.stamp("ost")
        AC, OF, WF, NS = 32, 52, 124, 4
        hwo = {}
        def rd_wo(s, t):
            a = (208 if t < 4 else 210) + (s >= 9)
            hwo[s, t] = p(f"ds_read_b128 {vr(WF + 20*(s%NS) + 4*t, 4)}, v{a} offset:{4608*(s%9) + 1024*(t&3)}")
        def pre():
            for s in range(NS):
                for t in range(5): rd_wo(s, t)
            p(f"s_mul_i32 {sT0}, {sW}, 18432\ns_add_u32 {sT0}, {sT0}, {sZ}\ns_add_u32 {sT0}, {sT0}, {self.OO - self.OZ}")
        self.rowhop(1 + 3 * L, 212, pre)
        self.stamp("Fo")
        hO = {}; NO = o.get("NO", 6)
        def ld_o(s):
            hO[s] = p(f"buffer_load_dwordx4 {vr(OF+4*s,4)}, v{v16L}, {WS}, {sT0} offen offset:{(s%4)*1024} sc1")
            if s % 4 == 3: p(f"s_add_u32 {sT0}, {sT0}, 4096")
        for s in range(NO): ld_o(s)
        if L == 1: self.clean_l2("o")
        for s in range(18):
            p.wait(hO[s], hwo[s, 4])
            if s == 0: self.stamp("o0")
            for t in range(5):
                d = vr(AC + 4 * t, 4)
                p(f"{M16} {d}, {vr(WF + 20*(s%NS) + 4*t, 4)}, {vr(OF+4*s,4)}, {d if s else 0}")
                if t == 0 and s + NO < 18: ld_o(s + NO)
                if s and s - 1 + NS < 18: rd_wo(s - 1 + NS, t)
        self.stamp("mm")
        X, Tt, Y, R = 56, 76, 96, 116
        self.unpack(X, RES, 10)
        if L == 0:
            for t in range(5):
                for d in (0, 2): p(f"v_pk_add_f32 {vr(X+4*t+d,2)}, {vr(X+4*t+d,2)}, {vr(AC+4*t+d,2)}")
            self.rowstats(X, 124, 2, True)
            ld = {}
            def mid():
                self.unpack(Y, YT, 10); ld[0] = self.tile_stats_load(2, 124, 128)
            self.stamp("s2st")
            p(f"v_lshrrev_b32 v28, 4, v1\nv_mul_u32_u24 v28, 504, v28\nv_sub_u32 v223, v{vXT}, v28")
            self.rowhop(2, 140, mid, True)
            self.stamp("s2seen")
            h = ld[0](); p.wait(h)
            self.tile_stats_finish(124, R); self.norm_tile(Tt, X, R)
            self.publish_z(1, X, Tt, Y, 124)
        else:
            self.srd(SA, "out", TEN)
            p(f"""v_and_b32 v26, 15, v1
            v_mul_u32_u24 v26, 1152, v26
            v_lshrrev_b32 v27, 4, v1
            v_lshl_add_u32 v26, v27, 3, v26
            s_lshl_b32 {sT0}, {sRB}, 2
            s_add_u32 {sT0}, {sT0}, {sW}
            s_mul_i32 {sT0}, {sT0}, 18432
            s_mul_i32 {sT1}, {sHG}, 144
            s_add_u32 {sT0}, {sT0}, {sT1}""")
            for t in range(5):
                for d in (0, 2): p(f"v_pk_add_f32 {vr(X+4*t+d,2)}, {vr(X+4*t+d,2)}, {vr(AC+4*t+d,2)}")
                for d in range(2): p(f"v_cvt_pk_bf16_f32 v{Y+2*t+d}, v{X+4*t+2*d}, v{X+4*t+2*d+1}")
                if t == 4: p("s_mov_b32 exec_hi, 0")
                p(f"buffer_store_dwordx2 {vr(Y+2*t,2)}, v26, {SA}, {sT0} offen offset:{32*t} {o.get('outpol', '')}")
            p("s_mov_b64 exec, -1")

    def build(self):
        p = self.p
        self.prologue(); self.phase0(); self.conv(); self.layer(0); self.layer(1)
        if self.prof: self.stamp("out"); p.waitall(); self.stamp("end")
        if self.opt.get("echo"):
            a, b, f, wg = self.opt["echo"]; Le, Ll = p.lab("ec"), p.lab("el")
            idx = lambda n: [i for i, x in enumerate(self.names) if x == n.split("#")[0]][int((n + "#0").split("#")[1])]
            ra, rb_ = self.STAMP_REGS[idx(a)], self.STAMP_REGS[idx(b)]
            p(f"""s_cmp_lg_u32 s2, {wg}
            s_cbranch_scc1 {Le}
            s_cmp_lg_u32 {sW}, 0
            s_cbranch_scc1 {Le}
            s_sub_u32 {sT0}, s{rb_}, s{ra}""")
            if self.opt.get("skew"):
                op = self.opt["skew"]
                p(f"""v_lshlrev_b32 v4, 4, v1
                s_mov_b32 s88, {O_PROF}
                buffer_load_dwordx4 v[8:11], v4, {WS}, s88 offen sc1
                s_waitcnt vmcnt(0)
                v_{op}3_u32 v8, v8, v9, v10
                v_{op}_u32 v8, v8, v11
                v_readlane_b32 {sT0}, v8, 0""")
                for i in range(1, 64): p(f"v_readlane_b32 {sT1}, v8, {i}\ns_{op}_u32 {sT0}, {sT0}, {sT1}")
                p(f"s_sub_u32 {sT0}, s34, {sT0}" if op == "min" else f"s_sub_u32 {sT0}, {sT0}, s34")
            p(f"""
            s_mul_i32 {sT0}, {sT0}, {f}
            s_min_u32 {sT0}, {sT0}, 100000
            {Ll}:
            s_memrealtime s[86:87]
            s_waitcnt lgkmcnt(0)
            s_sub_u32 {sT1}, s86, s{self.STAMP_REGS[self.names.index("end")]}
            s_cmp_lt_u32 {sT1}, {sT0}
            s_cbranch_scc1 {Ll}
            {Le}:""")
        elif self.prof: self.stamp_flush()
        L = p.lab("ep")
        p(f"s_or_b32 {sT0}, s2, {sW}\ns_cmp_lg_u32 {sT0}, 0\ns_cbranch_scc1 {L}")
        p(f"s_mov_b32 {sT0}, {O_EPOCH}"); self.setflag(sT0, 26)
        p(f"{L}:\nL_end:\ns_endpgm")
        p.raw("\n".join(self.tail))
        return p.text()

HEADER = open("interleave_layers__ssm_conv_h3__linear_kernel_hedgehog__prompt.s.ref").read().split("; Override launch")[0]

def full(prof=False, opt=None):
    k = K(prof, opt); body = k.build()
    assert k.p.maxv <= 255 and k.p.maxa <= 255 and k.p.maxs <= 101
    txt = HEADER + f"; @launch grid=(256,1,1) block=(256,1,1) lds={LDS_BYTES}\n"
    txt += f""".amdgcn_target "amdgcn-amd-amdhsa--gfx950"
.text
.globl {NAME}
.p2align 8
.type {NAME},@function
{NAME}:
{body}.section .rodata,"a"
.p2align 6
.amdhsa_kernel {NAME}
  .amdhsa_next_free_vgpr 512
  .amdhsa_next_free_sgpr 102
  .amdhsa_accum_offset 256
  .amdhsa_group_segment_fixed_size 0
  .amdhsa_kernarg_size 104
  .amdhsa_user_sgpr_count 2
  .amdhsa_user_sgpr_kernarg_segment_ptr 1
  .amdhsa_system_sgpr_workgroup_id_x 1
.end_amdhsa_kernel
"""
    return txt, k
```

```python
import sys
from emit import Prog, mix, parse_reg

NAME = "interleave_layers__ssm_conv_h3__linear_kernel_hedgehog__prompt_kernel"
O_EPOCH = 0
O_FU, O_FW, O_FWB, O_F2X, O_FX0, O_F2C = 0x1000, 0x1400, 0x1800, 0x1C00, 0x2000, 0x3000
O_FUA = 0x3400
O_FR = 0x10000
O_FP = 0x8000
O_FK = [0xC000, 0xE000]
O_CS = 0x1C0000
O_ST = [0x40000, 0x60000, 0x80000]
O_P2 = [0xA0000, 0x120000]
O_PROF = 0x1A0000
O_WO = 0x200000
O_P1 = 0x2C0000
O_U = 0x680000
O_Y = O_U + 0x240000
O_WP = O_Y + 0x240000
O_Z, O_O = O_U, O_Y
WS_USED = O_WP + 3 * 0x240000
TEN = 2048 * 576 * 2
SUB = 36864
L_W = 2 * SUB
L_M = L_W + 82944
L_K, L_V, L_Q, L_PHI, L_WOT, L_WR = 0, 10240, 20480, 32768, 36864, 40960
CONV_STRIDE = 21248; CP = 4160; L_CU = 16640
LM_CS = L_M
LM_SY = L_M + 1024
LDS_BYTES = 163840
WS = "s[4:7]"
SA, SB, SC, SD, SE = "s[36:39]", "s[40:43]", "s[44:47]", "s[48:51]", "s[52:55]"
sX, sJ, sRB, sHG, sI4, sW, sN, sHI = "s56", "s57", "s58", "s59", "s60", "s61", "s62", "s63"
sT0, sT1, sT2, sT3, sT4, sT5 = "s66", "s67", "s68", "s69", "s70", "s71"
sCH, sLC, sHEAD, sPC = "s72", "s73", "s74", "s75"
M8 = "s[76:77]"
M48 = "s[78:79]"
MU1 = "s[80:81]"
sONE, sONEH, sONE2, sCONV = "s82", "s83", "s84", "s85"
sKB, sFH, sFOLD, sO, sWP, sZ, sW10, sNC, sFAST, sFR, sG4 = "s89", "s90", "s91", "s92", "s93", "s94", "s95", "s96", "s97", "s98", "s99"
PTR = dict(q=8, k=10, v=12, shift=14, ssm=16, D=18, wqkv=22, wphi=24, wo=26, out=28, dbg=30)
LOG2E = 0x3fb8aa3b; INV576 = 0x3ae38e39; EPS = 0x3727c5ac; EPS6 = 0x358637bd
SPIN = 200000
RES, vXT, vSTA, v16L, YT = 2, 12, 13, 14, 16
M32 = "v_mfma_f32_32x32x16_bf16"; M16 = "v_mfma_f32_16x16x32_bf16"

def vr(a, n): return f"v[{a}:{a+n-1}]" if n > 1 else f"v{a}"
def wreg(f): return f"a[{4*f}:{4*f+3}]" if f < 64 else vr(224 + 4 * (f - 64), 4)
def run(F):
    for c, f in F: f()

class K:
    STAMP_REGS = [34, 35, 64, 65, 100, 101, 20, 21, 3] + list(range(10, 20)) + [22, 23, 24, 25, 30, 31, 32, 33, 88, 8, 9]
    def __init__(self, prof=False, opt=None):
        self.p = Prog(); self.prof = prof; self.nstamp = 0; self.names = []; self.opt = opt or {}; self.tail = []
        self.OZ, self.OO = (O_WP + 0x240000, O_WP + 2 * 0x240000) if self.opt.get("noalias") else (O_Z, O_O)
    def srd(self, dst, name, nbytes):
        b = int(dst[2:].split(":")[0]); s = PTR[name]
        self.p(f"s_mov_b32 s{b}, s{s}\ns_mov_b32 s{b+1}, s{s+1}\ns_mov_b32 s{b+2}, {nbytes}\ns_mov_b32 s{b+3}, 0x20000")
    def stamp(self, name=""):
        if not self.prof: return
        if self.opt.get("only") and self.nstamp and name not in self.opt["only"]: return
        p = self.p; i = self.nstamp; self.nstamp += 1; self.names.append(name)
        p(("s_memtime" if self.opt.get("cyc") else "s_memrealtime") + f" s[86:87]\ns_waitcnt lgkmcnt(0)\ns_mov_b32 s{self.STAMP_REGS[i]}, s86")
    def stamp_flush(self):
        if not self.prof: return
        p = self.p
        for i in range(self.nstamp): p(f"v_writelane_b32 v2, s{self.STAMP_REGS[i]}, {i}")
        p(f"v_writelane_b32 v2, {sFAST}, 31")
        p(f"s_lshl_b32 s88, s2, 9\ns_lshl_b32 s86, {sW}, 7\ns_add_u32 s88, s88, s86\ns_add_u32 s88, s88, {O_PROF}\nv_lshlrev_b32 v3, 2, v1\ns_mov_b32 exec_hi, 0\nbuffer_store_dword v2, v3, {WS}, s88 offen\ns_mov_b64 exec, -1")
    def onwave(self, w):
        L = self.p.lab("w"); self.p(f"s_cmp_lg_u32 {sW}, {w}\ns_cbranch_scc1 {L}"); return L
    def barrier(self): self.p("s_barrier")
    def dual(self, text):
        p = self.p; S, E = p.lab("slow"), p.lab("back")
        p(f"s_cmp_eq_u32 {sFAST}, 0"); p.raw(f"s_cbranch_scc1 {S}")
        n = len(p.out); h = p(text); body = p.out[n:]; p.raw(f"{E}:")
        self.tail += [f"{S}:"] + [l + " sc1" if l.startswith("buffer_store") else l for l in body] + [f"s_branch {E}"]
        return h
    def setflag(self, soff, tmp, local=False, off=0):
        t = f"s_mov_b64 exec, 1\nv_mov_b32 v{tmp}, {sN}\nbuffer_store_dword v{tmp}, off, {WS}, {soff} offset:{off}"
        if local: self.dual(t + "\ns_mov_b64 exec, -1")
        else: self.p(t + " sc1\ns_mov_b64 exec, -1")
    def poll(self, vaddr, soff, tmp, wide=False, off=0, sleep=0):
        p = self.p; L = p.lab("poll"); E = p.lab("polle")
        p.waitall(lg=False)
        p(f"s_mov_b32 {sPC}, 0\n{L}:")
        if wide: p(f"buffer_load_dwordx4 {vr(tmp,4)}, v{vaddr}, {WS}, {soff} offen offset:{off} sc1")
        else: p(f"buffer_load_dword v{tmp}, v{vaddr}, {WS}, {soff} offen offset:{off} sc1")
        p(f"s_add_u32 {sPC}, {sPC}, 1\ns_waitcnt vmcnt(0)")
        if wide:
            for i in range(4): p(f"v_xor_b32 v{tmp+i}, {sN}, v{tmp+i}")
            p(f"v_or3_b32 v{tmp}, v{tmp}, v{tmp+1}, v{tmp+2}\nv_or_b32 v{tmp}, v{tmp}, v{tmp+3}\nv_cmp_ne_u32 vcc, 0, v{tmp}")
        else: p(f"v_cmp_ne_u32 vcc, {sN}, v{tmp}")
        if sleep:
            p(f"s_cmp_gt_u32 {sPC}, {SPIN}\ns_cbranch_scc1 {E}\ns_cbranch_vccz {E}\ns_sleep {sleep}"); p.raw(f"s_branch {L}"); p(f"{E}:")
        else: p(f"s_cmp_gt_u32 {sPC}, {SPIN}\ns_cbranch_scc1 {E}\ns_cbranch_vccnz {L}\n{E}:")
    def rowhop(self, kind, tmp, between=None, own=False, h=None):
        p = self.p; mode = self.opt.get("hop", "bar")
        if mode == "bar":
            p(f"s_lshl_b32 {sT5}, {sHG}, 2\ns_add_u32 {sT5}, {sT5}, {sFR}\nv_and_b32 v{tmp+2}, 7, v1\nv_lshlrev_b32 v{tmp+2}, 2, v{tmp+2}")
            p.wait(h) if h else p.waitall()
            p.waitall(vm=False); self.barrier()
            L = self.onwave(0); self.setflag(sT5, tmp, True, 128 * kind); p(f"{L}:")
        else:
            p(f"s_lshl_b32 {sT5}, {sHG}, 4\ns_lshl_b32 {sPC}, {sW}, 2\ns_add_u32 {sT5}, {sT5}, {sPC}\ns_add_u32 {sT5}, {sT5}, {sFR}")
            if own and mode == "wave": p(f"v_and_b32 v{tmp+2}, 7, v1\nv_lshl_add_u32 v{tmp+2}, v{tmp+2}, 4, {sPC}")
            else: p(f"v_and_b32 v{tmp+2}, 31, v1\nv_lshlrev_b32 v{tmp+2}, 2, v{tmp+2}")
            p.waitall(); self.setflag(sT5, tmp, True, 128 * kind)
        if between: between()
        if mode == "wave": self.poll(tmp + 2, sFR, tmp + 1, off=128 * kind); return
        L = self.onwave(0); self.poll(tmp + 2, sFR, tmp + 1, off=128 * kind); p(f"{L}:")
        self.barrier()
    def last_of(self, word, count, t):
        p = self.p; L = p.lab("nl")
        p(f"s_mov_b64 exec, 1\nv_mov_b32 v{t}, {LM_SY + 4*word}\nv_mov_b32 v{t+1}, 1")
        h = p(f"ds_add_rtn_u32 v{t+1}, v{t}, v{t+1}")
        p("s_mov_b64 exec, -1"); p.wait(h)
        p(f"v_readfirstlane_b32 {sT5}, v{t+1}\ns_cmp_lg_u32 {sT5}, {count - 1}\ns_cbranch_scc1 {L}")
        return L
    def clean_l2(self, tag):
        if tag not in self.opt.get("wb", ""): return
        p = self.p; L = p.lab("wb")
        p(f"s_lshl_b32 {sT5}, {sJ}, 2\ns_add_u32 {sT5}, {sT5}, {sW}\ns_cmp_lg_u32 {sT5}, 3\ns_cbranch_scc1 {L}\nbuffer_wbl2 sc1\n{L}:")
    def lds_signal(self, word, t, val=1):
        self.p(f"s_mov_b64 exec, 1\nv_mov_b32 v{t}, {LM_SY + 4*word}\nv_mov_b32 v{t+1}, {val}\nds_add_u32 v{t}, v{t+1}\ns_mov_b64 exec, -1")
    def lds_wait(self, word, val, t):
        p = self.p; L = p.lab("lw"); E = p.lab("lwe")
        p.waitall(vm=False)
        p(f"v_mov_b32 v{t}, {LM_SY + 4*word}\ns_mov_b32 {sPC}, 0\n{L}:\nds_read_b32 v{t+1}, v{t}\ns_add_u32 {sPC}, {sPC}, 1\ns_waitcnt lgkmcnt(0)")
        p(f"v_readfirstlane_b32 {sT5}, v{t+1}\ns_cmp_gt_u32 {sPC}, {SPIN*20}\ns_cbranch_scc1 {E}\ns_cmp_lt_u32 {sT5}, {val}\ns_cbranch_scc1 {L}\n{E}:")
    def onehot(self, dst, idx, val_lo, val_hi, t):
        p = self.p
        p(f"v_and_b32 v{t}, 1, v{idx}\nv_cmp_eq_u32 vcc, 1, v{t}\nv_mov_b32 v{t}, {val_lo}\nv_mov_b32 v{t+1}, {val_hi}\nv_cndmask_b32 v{t}, v{t}, v{t+1}, vcc\nv_ashrrev_i32 v{t+1}, 1, v{idx}")
        for jj in range(4): p(f"v_cmp_eq_u32 vcc, {jj}, v{t+1}\nv_cndmask_b32 v{dst+jj}, 0, v{t}, vcc")
    def unpack(self, dst, src, n):
        for d in range(n): self.p(f"v_lshlrev_b32 v{dst+2*d}, 16, v{src+d}\nv_and_b32 v{dst+2*d+1}, {sHI}, v{src+d}")
    def rowstats(self, X, T, which, local):
        p = self.p; S, Q = T, T + 2
        p("s_mov_b32 exec_lo, 0")
        for r in range(4): p(f"v_mov_b32 v{X+16+r}, 0")
        p("s_mov_b32 exec_lo, -1")
        p(f"v_pk_add_f32 {vr(S,2)}, {vr(X,2)}, {vr(X+2,2)}\nv_pk_mul_f32 {vr(Q,2)}, {vr(X,2)}, {vr(X,2)}")
        for i in range(2, 20, 2):
            if i > 2: p(f"v_pk_add_f32 {vr(S,2)}, {vr(S,2)}, {vr(X+i,2)}")
            p(f"v_pk_fma_f32 {vr(Q,2)}, {vr(X+i,2)}, {vr(X+i,2)}, {vr(Q,2)}")
        p(f"""v_add_f32 v{S}, v{S}, v{S+1}
        v_add_f32 v{Q}, v{Q}, v{Q+1}
        s_lshl_b32 {sT1}, {sRB}, 3
        s_add_u32 {sT1}, {sT1}, {sHG}
        v_permlane16_swap_b32 v{S}, v{Q}
        v_add_f32 v{S}, v{S}, v{Q}
        v_mov_b32 v{Q}, v{S}
        s_lshl_b32 {sT1}, {sT1}, 9
        s_add_u32 {sT1}, {sT1}, {O_ST[which]}
        v_permlane32_swap_b32 v{S}, v{Q}
        v_add_f32 v{S}, v{S}, v{Q}""")
        p("s_mov_b32 exec_hi, 0")
        h = self.dual(f"buffer_store_dword v{S}, v{vSTA}, {WS}, {sT1} offen")
        p("s_mov_b32 exec_hi, -1")
        return h
    def tile_stats_load(self, which, d, t):
        p = self.p
        p(f"""v_and_b32 v{t}, 15, v1
        v_lshlrev_b32 v{t}, 3, v{t}
        v_lshrrev_b32 v{t+1}, 4, v1
        v_lshl_add_u32 v{t}, v{t+1}, 10, v{t}
        s_lshl_b32 {sT1}, {sRB}, 12
        s_lshl_b32 {sT2}, {sW}, 7
        s_add_u32 {sT1}, {sT1}, {sT2}
        s_add_u32 {sT1}, {sT1}, {O_ST[which]}""")
        return lambda: p(f"buffer_load_dwordx2 {vr(d,2)}, v{t}, {WS}, {sT1} offen sc1\nbuffer_load_dwordx2 {vr(d+2,2)}, v{t}, {WS}, {sT1} offen offset:512 sc1")
    def tile_stats_finish(self, d, R):
        self.p(f"""v_pk_add_f32 {vr(d,2)}, {vr(d,2)}, {vr(d+2,2)}
        s_mov_b32 {sT2}, {INV576}
        v_permlane16_swap_b32 v{d}, v{d+1}
        v_add_f32 v{d}, v{d}, v{d+1}
        v_mov_b32 v{d+1}, v{d}
        v_permlane32_swap_b32 v{d}, v{d+1}
        v_add_f32 v{d}, v{d}, v{d+1}
        v_mul_f32 v{d}, {INV576}, v{d}
        v_mov_b32 v{d+1}, v{d}
        v_permlane16_swap_b32 v{d}, v{d+1}
        v_fma_f32 v{d+1}, -v{d}, v{d}, v{d+1}
        v_max_f32 v{d+1}, 0, v{d+1}
        v_add_f32 v{d+1}, {EPS}, v{d+1}
        v_rsq_f32 v{R}, v{d+1}
        v_mul_f32 v{R+1}, -v{d}, v{R}""")
    def norm_tile(self, Tt, X, R):
        for i in range(0, 20, 2): self.p(f"v_pk_fma_f32 {vr(Tt+i,2)}, {vr(X+i,2)}, {vr(R,2)}, {vr(R,2)} op_sel:[0,0,1] op_sel_hi:[1,0,1]")
    def publish_z(self, L, X, Tt, Y, tmp, between=None, more=None):
        p = self.p
        p(f"s_mul_i32 {sT0}, {sHG}, 4608\ns_add_u32 {sT0}, {sT0}, {sZ}\ns_add_u32 {sT2}, {sT0}, 4096")
        for i in range(0, 20, 2): p(f"v_pk_fma_f32 {vr(X+i,2)}, {vr(Tt+i,2)}, {vr(Y+i,2)}, {vr(X+i,2)}")
        for d in range(10): p(f"v_cvt_pk_bf16_f32 v{RES+d}, v{X+2*d}, v{X+2*d+1}")
        self.dual(f"""buffer_store_dwordx4 {vr(RES,4)}, v{vXT}, {WS}, {sT0} offen
        buffer_store_dwordx4 {vr(RES+4,4)}, v{vXT}, {WS}, {sT0} offen offset:2048
        s_mov_b32 exec_hi, 0
        buffer_store_dwordx2 {vr(RES+8,2)}, v223, {WS}, {sT2} offen
        s_mov_b32 exec_hi, -1""")
        h = self.rowstats(X, tmp, 1, True)
        self.stamp("zst")
        if more: more()
        self.rowhop(3 * L, tmp, between, h=h)
        self.stamp("zseen")

    def prologue(self):
        p = self.p
        if self.opt.get("first"): self.stamp("first")
        p(f"""s_cmp_ge_u32 s2, 256
        s_cbranch_scc1 L_end
        s_load_dwordx16 s[8:23], s[0:1], 0
        s_load_dwordx8 s[24:31], s[0:1], 64
        s_load_dwordx2 s[32:33], s[0:1], 96
        v_and_b32 v1, 63, v0
        v_lshrrev_b32 v2, 6, v0
        s_and_b32 {sX}, s2, 7
        v_readfirstlane_b32 {sW}, v2
        s_lshr_b32 {sJ}, s2, 3
        s_and_b32 {sHG}, {sJ}, 7
        s_lshr_b32 {sI4}, {sJ}, 3
        s_lshl_b32 {sRB}, {sX}, 2
        s_add_u32 {sRB}, {sRB}, {sI4}""")
        for i in range(3):
            p(f"""v_add_u32 v5, {256*i}, v0
            v_mul_u32_u24 v6, 7282, v5
            v_lshrrev_b32 v6, 16, v6
            v_mul_u32_u24 v7, 9, v6
            v_sub_u32 v7, v5, v7
            v_mul_u32_u24 v6, 1152, v6
            v_lshl_add_u32 v{2+i}, v7, 4, v6""")
        p(f"""s_mul_i32 {sT0}, {sJ}, {64*1152}
        s_mul_i32 {sT1}, {sX}, 144
        s_add_u32 {sT0}, {sT0}, {sT1}
        s_sub_u32 {sT2}, {sT0}, {4*1152}
        v_add_u32 v6, {sT2}, v2
        v_add_u32 v7, {sT2}, v3
        v_add_u32 v8, {sT2}, v4
        s_lshl_b32 {sW10}, {sW}, 10
        s_waitcnt lgkmcnt(0)
        s_mov_b32 s4, s32
        s_mov_b32 s5, s33
        s_mov_b32 s6, {WS_USED}
        s_mov_b32 s7, 0x20000""")
        self.srd(SA, "k", TEN); self.srd(SB, "v", TEN)

    def phase0(self):
        p = self.p; o = self.opt
        self.stamp("start")
        if self.opt.get("skew"):
            p(f"s_lshl_b32 s88, s2, 2\ns_add_u32 s88, s88, {O_PROF}\nv_mov_b32 v9, s34\nbuffer_store_dword v9, off, {WS}, s88 sc1")
        for i in range(2):
            p(f"s_add_u32 m0, {sW10}, {L_K + 4096*i}\nbuffer_load_dwordx4 v{6+i}, {SA}, 0 offen lds")
            p(f"s_add_u32 m0, {sW10}, {L_V + 4096*i}\nbuffer_load_dwordx4 v{2+i}, {SB}, {sT0} offen lds")
        L1 = p.lab("t3")
        p(f"s_cmp_ge_u32 {sW}, 2\ns_cbranch_scc1 {L1}")
        p(f"s_add_u32 m0, {sW10}, {L_K + 8192}\nbuffer_load_dwordx4 v8, {SA}, 0 offen lds")
        p(f"s_cmp_ge_u32 {sW}, 1\ns_cbranch_scc1 {L1}")
        p(f"s_mov_b32 m0, {L_V + 8192}\nbuffer_load_dwordx4 v4, {SB}, {sT0} offen lds")
        p(f"{L1}:")
        self.srd(SD, "shift", 4608)
        p(f"""s_mov_b32 {sHI}, 0xffff0000
        s_mov_b32 s78, 0x00ffffff
        s_mov_b32 s79, 0x00ffffff
        s_mov_b32 {sONE}, 0x3f80
        s_mov_b32 {sONEH}, 0x3f800000
        s_mov_b32 {sONE2}, 0x3f803f80
        s_cmp_eq_u32 {sW}, 2
        s_cselect_b64 s[80:81], -1, 0
        v_and_b32 v40, 15, v1
        v_lshrrev_b32 v41, 4, v1
        v_and_b32 v42, 3, v1
        v_bfe_u32 v43, v1, 2, 2
        v_lshl_add_u32 v43, v41, 3, v43
        s_mul_i32 {sT3}, {sX}, 72
        s_lshl_b32 {sT4}, {sJ}, 6""")
        for s in range(3):
            p(f"""s_cmp_eq_u32 {sW}, 2
            s_cselect_b32 {sT1}, {32*s}, {sW10}
            s_cselect_b32 {sT2}, 48, {16*s}""")
            p(f"s_cbranch_scc0 Lu{s}\ns_lshl_b32 {sT1}, {sT1}, 5\nLu{s}:\ns_lshr_b32 {sT1}, {sT1}, 5")
            if s < 2:
                p(f"""v_add_u32 v44, {sT1}, v43
                v_lshl_add_u32 v45, v42, 2, {sT2}
                v_lshl_add_u32 v46, v41, 3, {sT1}
                v_add_u32 v47, {sT2}, v40""")
            else:
                p(f"""v_lshrrev_b32 v5, 1, v42
                v_lshlrev_b32 v5, 5, v5
                v_mov_b32 v6, {sT1}
                v_cndmask_b32 v5, v6, v5, s[80:81]
                v_add_u32 v44, v5, v43
                v_and_b32 v5, 1, v42
                v_lshl_add_u32 v5, v5, 2, 64
                v_lshl_add_u32 v45, v42, 2, 32
                v_cndmask_b32 v45, v45, v5, s[80:81]
                v_lshrrev_b32 v5, 3, v40
                v_lshlrev_b32 v5, 5, v5
                v_cndmask_b32 v5, v6, v5, s[80:81]
                v_lshl_add_u32 v46, v41, 3, v5
                v_and_b32 v5, 7, v40
                v_add_u32 v5, 64, v5
                v_add_u32 v47, 32, v40
                v_cndmask_b32 v47, v47, v5, s[80:81]""")
            p(f"""v_add_u32 v47, {sT3}, v47
            v_lshlrev_b32 v5, 3, v47""")
            hcrit = p(f"buffer_load_dwordx2 {vr(26+2*s,2)}, v5, {SD}, 0 offen")
            p(f"""v_mul_u32_u24 v44, 144, v44
            v_lshl_add_u32 v{32+s}, v45, 1, v44
            v_add_u32 v46, {sT4}, v46
            v_sub_u32 v46, 2040, v46
            v_lshlrev_b32 v46, 1, v46
            v_lshl_add_u32 v{36+s}, v47, 12, v46""")
        hcrit = p(f"buffer_load_dword v9, off, {WS}, 0 sc1")
        p(f"v_lshlrev_b32 v6, 2, v1\nv_add_u32 v6, {LM_SY}, v6\nv_mov_b32 v7, 0\nds_write_b32 v6, v7")
        p.waitall(vm=False)
        self.barrier()
        self.stamp("crit")
        self.srd(SA, "ssm", TEN); self.srd(SB, "D", 1152)
        p(f"""s_lshl_b32 {sT1}, {sW}, 5
        s_add_u32 {sT1}, {sT1}, {sJ}
        s_add_u32 {sCH}, {sT3}, {sT1}
        s_mul_i32 {sLC}, {sW}, {CONV_STRIDE}
        s_add_u32 {sLC}, {sLC}, {L_W}
        v_lshlrev_b32 v{v16L}, 4, v1
        s_cmp_ge_u32 {sT1}, 72
        s_cselect_b32 {sCONV}, 0, 1""")
        for i in range(4): p(f"v_mov_b32 v{216+i}, 0x40000000")
        p(f"s_cmp_eq_u32 {sCONV}, 0")
        LW3, LNC, LJ = p.lab("w3"), p.lab("nc"), p.lab("j")
        p(f"s_cbranch_scc1 {LNC}")
        self.fold_prep(); self.conv_addr()
        p.wait(hcrit); p(f"s_branch {LJ}\n{LNC}:\ns_cmp_eq_u32 {sW}, 3\ns_cbranch_scc1 {LW3}")
        self.fold_prep()
        p.wait(hcrit); p(f"s_branch {LJ}\n{LW3}:")
        self.srd(SC, "wqkv", 576 * 3456); self.srd(SD, "wphi", 32 * 648)
        p(f"s_lshl_b32 {sT1}, {sX}, 7\ns_add_u32 {sT1}, {sT1}, {O_FUA}\nbuffer_load_dword v221, off, {WS}, {sT1}")
        p(f"s_mul_i32 {sT1}, {sHG}, 2592\ns_mov_b32 m0, {L_PHI}")
        for i in range(3): p(f"buffer_load_dwordx4 v{v16L}, {SD}, {sT1} offen offset:{1024*i} lds")
        p(f"s_mul_i32 {sT1}, {sHG}, 144\ns_add_u32 {sT2}, {sT1}, 1152\ns_add_u32 {sT3}, {sT1}, 2304\nv_mov_b32 v47, 0x40000000")
        for i in range(4):
            p(f"""v_add_u32 v5, {64*i}, v1
            v_mul_u32_u24 v6, 7282, v5
            v_lshrrev_b32 v6, 16, v6
            v_mul_u32_u24 v7, 9, v6
            v_sub_u32 v5, v5, v7
            v_and_b32 v7, 7, v6
            v_lshrrev_b32 v6, 3, v6
            v_lshl_add_u32 v6, v6, 5, {sRB}
            v_cmp_gt_u32 vcc, 72, v6
            v_mul_u32_u24 v8, 57, v6
            s_mov_b64 s[86:87], vcc
            v_lshrrev_b32 v8, 9, v8
            v_mul_u32_u24 v8, 9, v8
            v_sub_u32 v6, v6, v8
            v_cmp_eq_u32 vcc, 8, v6
            v_lshlrev_b32 v8, 3, v8
            v_lshrrev_b32 v40, 2, v6
            v_and_b32 v41, 3, v6
            v_lshlrev_b32 v41, 2, v41
            v_lshl_add_u32 v40, v40, 5, v41
            v_lshrrev_b32 v41, 2, v7
            v_lshl_add_u32 v40, v41, 4, v40
            v_and_b32 v41, 3, v7
            v_add_u32 v40, v40, v41
            v_add_u32 v41, 64, v7
            v_cndmask_b32 v40, v40, v41, vcc
            v_add_u32 v40, v40, v8
            v_mul_u32_u24 v40, 3456, v40
            v_lshl_add_u32 v40, v5, 4, v40
            v_cndmask_b32 v40, v47, v40, s[86:87]
            s_mov_b32 m0, {L_WR + 1024*i}
            buffer_load_dwordx4 v40, {SC}, {sT1} offen lds
            s_mov_b32 m0, {L_WR + 4096 + 1024*i}
            buffer_load_dwordx4 v40, {SC}, {sT2} offen lds
            s_mov_b32 m0, {L_WR + 8192 + 1024*i}
            v_mad_u32_u24 v41, v6, 9, v7
            v_mad_u32_u24 v42, v7, 9, 8
            v_cndmask_b32 v41, v41, v42, vcc
            v_add_u32 v41, v41, v8
            v_mul_u32_u24 v41, 1152, v41
            v_lshl_add_u32 v41, v5, 4, v41
            v_cndmask_b32 v{216+i}, v47, v41, s[86:87]""")
            hf = p(f"buffer_load_dwordx4 v40, {SC}, {sT3} offen lds")
        self.fold_prep()
        p.wait(hcrit); p(f"{LJ}:")
        p("v_add_u32 v9, 1, v9"); self.stamp("landed"); self.barrier()
        p(f"v_readfirstlane_b32 {sN}, v9\ns_getreg_b32 {sT4}, hwreg(HW_REG_XCC_ID, 0, 4)\ns_lshl_b32 {sT1}, {sN}, 4\ns_or_b32 {sT4}, {sT4}, {sT1}")
        self.stamp("bar1")
        LU3, LUE = p.lab("u3"), p.lab("ue")
        p(f"s_cmp_eq_u32 {sW}, 3\ns_cbranch_scc1 {LU3}")
        hs = []
        for s in range(3):
            b = 48 + 10 * s
            h = [p(f"ds_read_b64_tr_b16 {vr(b+2*i,2)}, v{32+s} offset:{L_K + 576*i}") for i in range(3)]
            h += [p(f"ds_read_b64_tr_b16 {vr(b+6+2*i,2)}, v{32+s} offset:{L_V + 576*i}") for i in range(2)]
            hs.append(h)
        lo = lambda d, s: p(f"v_lshlrev_b32 v{d}, 16, v{s}")
        hi = lambda d, s: p(f"v_and_b32 v{d}, {sHI}, v{s}")
        p(f"s_mov_b32 {sT0}, {O_U}")
        for s in range(3):
            b = 48 + 10 * s; P, W, A, V, O = 80, 94, 98, 106, 114 + 4 * s
            lo(W, 26+2*s); hi(W+1, 26+2*s); lo(W+2, 27+2*s); hi(W+3, 27+2*s)
            p.wait(*hs[s])
            hi(P+0, b); hi(P+1, b+2); lo(P+2, b+1); lo(P+3, b+3); hi(P+4, b+1); hi(P+5, b+3)
            lo(P+6, b+2); lo(P+7, b+4); hi(P+8, b+2); hi(P+9, b+4); lo(P+10, b+3); lo(P+11, b+5); hi(P+12, b+3); hi(P+13, b+5)
            Pp = lambda x: vr(P + 2 * (x + 3), 2)
            for q in range(4): p(f"v_pk_mul_f32 {vr(A+2*q,2)}, {Pp(q)}, {vr(W,2)} op_sel_hi:[1,0]")
            for q in range(4): p(f"v_pk_fma_f32 {vr(A+2*q,2)}, {Pp(q-1)}, {vr(W,2)}, {vr(A+2*q,2)} op_sel:[0,1,0]")
            lo(V+0, b+6); lo(V+1, b+8); hi(V+2, b+6); hi(V+3, b+8); lo(V+4, b+7); lo(V+5, b+9); hi(V+6, b+7); hi(V+7, b+9)
            for q in range(4): p(f"v_pk_fma_f32 {vr(A+2*q,2)}, {Pp(q-2)}, {vr(W+2,2)}, {vr(A+2*q,2)} op_sel_hi:[1,0,1]")
            for q in range(4): p(f"v_pk_fma_f32 {vr(A+2*q,2)}, {Pp(q-3)}, {vr(W+2,2)}, {vr(A+2*q,2)} op_sel:[0,1,0]")
            for q in range(4): p(f"v_pk_mul_f32 {vr(A+2*q,2)}, {vr(A+2*q,2)}, {vr(V+2*q,2)}")
            p(f"""v_cvt_pk_bf16_f32 v{O}, v{A+7}, v{A+5}
            v_cvt_pk_bf16_f32 v{O+1}, v{A+3}, v{A+1}
            v_cvt_pk_bf16_f32 v{O+2}, v{A+6}, v{A+4}
            v_cvt_pk_bf16_f32 v{O+3}, v{A+2}, v{A}
            buffer_store_dwordx4 {vr(O,4)}, v{36+s}, {WS}, {sT0} offen sc1""")
        self.stamp("ust")
        Lh, Lh2 = p.lab("h"), p.lab("h2")
        p(f"s_cmp_eq_u32 {sCONV}, 0\ns_cbranch_scc1 {Lh}")
        p(f"s_lshl_b32 {sT1}, {sCH}, 12\ns_lshl_b32 {sT2}, {sCH}, 1\ns_add_u32 m0, {sLC}, 32")
        for i in range(4): p(f"buffer_load_dwordx4 v{v16L}, {SA}, {sT1} offen offset:{1024*i} lds")
        self.hh = p(f"buffer_load_ushort v45, off, {SB}, {sT2}")
        p(f"s_waitcnt vmcnt(5)\ns_branch {Lh2}\n{Lh}:\ns_waitcnt vmcnt(0)\n{Lh2}:")
        L5 = self.last_of(5, 3, 5)
        p(f"""s_lshl_b32 {sT0}, {sX}, 7
        s_lshl_b32 {sT1}, {sJ}, 2
        s_add_u32 {sT0}, {sT0}, {sT1}
        s_add_u32 {sT0}, {sT0}, {O_FU}
        s_mov_b64 exec, 1
        v_mov_b32 v5, {sT4}
        s_add_u32 {sT1}, {sT0}, {O_FUA - O_FU}
        buffer_store_dword v5, off, {WS}, {sT1}
        buffer_store_dword v5, off, {WS}, {sT0} sc1
        s_mov_b64 exec, -1
        {L5}:""")
        self.stamp("uflag")
        self.lds_wait(6, 1, 26)
        p(f"s_branch {LUE}\n{LU3}:")
        p.wait(hf); self.lds_signal(6, 26); p(f"{LUE}:")
        self.fold()
        self.stamp("p0end")
        self.tables()

    def fold_prep(self):
        p = self.p
        p(f"""v_and_b32 v5, 15, v1
        s_lshl_b32 {sT1}, {sW}, 4
        v_add_u32 v7, {sT1}, v5
        v_lshrrev_b32 v5, 4, v1
        v_lshlrev_b32 v{vSTA}, 3, v7
        v_lshl_add_u32 v{vSTA}, v5, 2, v{vSTA}
        v_and_b32 v7, 31, v7
        v_lshlrev_b32 v7, 4, v7
        s_lshr_b32 {sT1}, {sW}, 1
        s_mul_i32 {sT1}, {sT1}, {SUB}
        v_add_u32 v7, {sT1}, v7
        v_lshl_add_u32 v{vXT}, v5, 9, v7
        s_lshl_b32 {sHEAD}, {sHG}, 2
        s_add_u32 {sHEAD}, {sHEAD}, {sW}
        s_mul_i32 {sWP}, {sHEAD}, 73728
        s_add_u32 {sWP}, {sWP}, {O_WP}
        s_mul_i32 {sZ}, {sRB}, 73728
        s_add_u32 {sZ}, {sZ}, {self.OZ}
        s_lshl_b32 {sFR}, {sRB}, 10
        s_add_u32 {sFR}, {sFR}, {O_FR}
        s_lshl_b32 {sG4}, {sX}, 3
        s_add_u32 {sG4}, {sG4}, {sHG}
        s_lshl_b32 {sG4}, {sG4}, 2
        v_mov_b32 v160, 0x40000000
        v_mov_b32 v214, v160
        v_mov_b32 v212, 0
        v_mov_b32 v213, 0
        v_cndmask_b32 v15, v160, v{v16L}, {M48}
        v_bfe_u32 v5, v1, 3, 2
        v_and_b32 v6, 3, v1
        v_lshl_add_u32 v190, v5, 2, v6
        v_bfe_u32 v191, v1, 2, 1
        v_mul_u32_u24 v5, 9, v191
        v_add_u32 v5, v5, v190
        s_mul_i32 {sT0}, {sW}, 648
        s_add_u32 {sT0}, {sT0}, {L_PHI}
        v_lshl_add_u32 v161, v5, 1, {sT0}
        v_lshrrev_b32 v7, 5, v1
        v_mul_u32_u24 v8, 288, v7
        v_add_u32 v162, v161, v8
        v_bfe_u32 v8, v1, 4, 1
        v_lshl_add_u32 v8, v8, 1, v191
        v_lshl_add_u32 v6, v8, 3, v6
        v_bfe_u32 v8, v1, 3, 1
        v_lshl_add_u32 v6, v8, 2, v6
        v_mul_u32_u24 v6, 144, v6
        s_mul_i32 {sT0}, {sW}, 36
        s_add_u32 {sT0}, {sT0}, {L_WR}
        v_add_u32 v163, {sT0}, v6
        v_lshl_add_u32 v164, v7, 4, v163
        v_lshl_add_u32 v8, v7, 5, {sRB}
        v_and_b32 v6, 31, v1
        v_lshlrev_b32 v6, 4, v6
        v_lshrrev_b32 v167, 1, v8
        v_lshl_add_u32 v6, v167, 10, v6
        v_and_b32 v8, 1, v8
        v_lshl_add_u32 v167, v8, 9, v6
        v_lshlrev_b32 v7, 3, v7
        v_sub_u32 v5, v5, v7
        v_mov_b32 v7, -64
        v_add_u32 v8, -9, v5
        v_cmp_gt_u32 vcc, 9, v190
        v_cndmask_b32 v8, v8, v7, vcc""")
        self.onehot(174, 8, sONE, sONEH, 168)
        p(f"""v_add_u32 v8, -2, v5
        v_add_u32 v6, -9, v190
        v_cmp_lt_u32 vcc, 1, v6
        v_cndmask_b32 v8, v8, v7, vcc""")
        self.onehot(178, 8, sONE, sONEH, 168)
        p(f"""v_add_u32 v8, -16, v8
        v_cmp_gt_u32 vcc, 32, v1
        v_cndmask_b32 v8, v7, v8, vcc""")
        self.onehot(182, 8, sONE, sONEH, 168)
        p("v_mov_b32 v188, v182\nv_mov_b32 v182, 0\nv_mov_b32 v187, 0\nv_mov_b32 v189, 0\nv_mov_b32 v207, 0\nv_add_u32 v165, 4096, v164\nv_add_u32 v166, 8192, v164")

    def fold(self):
        p = self.p
        hph = [p(f"ds_read_u16 v{32+e}, v162 offset:{36*e}") for e in range(8)] + [p(f"ds_read_u16 v{40+e}, v161 offset:{576+36*e}") for e in range(2)]
        for m in range(3):
            p(f"ds_read2_b32 {vr(192+4*m,2)}, v{164+m} offset0:0 offset1:1\nds_read2_b32 {vr(194+4*m,2)}, v{164+m} offset0:2 offset1:3")
        for m in range(3): hW = p(f"ds_read_b32 v{204+m}, v163 offset:{4096*m + 32}")
        p.wait(*hph)
        p("v_cmp_gt_u32 vcc, 9, v190")
        for jj in range(4): p(f"v_lshl_or_b32 v{170+jj}, v{33+2*jj}, 16, v{32+2*jj}")
        p("v_lshl_or_b32 v183, v41, 16, v40")
        for jj in range(4): p(f"v_cndmask_b32 v{170+jj}, 0, v{170+jj}, vcc")
        p("v_cndmask_b32 v183, 0, v183, vcc\ns_mov_b32 exec_lo, 0\nv_mov_b32 v183, 0\ns_mov_b32 exec_lo, -1\nv_mov_b32 v186, v183")
        p.wait(hW)
        p(f"""{M32} v[128:143], v[196:199], v[170:173], 0
        {M32} v[144:159], v[192:195], v[170:173], 0
        {M32} v[128:143], v[200:203], v[174:177], v[128:143]
        {M32} v[144:159], v[200:203], v[178:181], v[144:159]
        {M32} v[128:143], v[204:207], v[182:185], v[128:143]
        {M32} v[144:159], v[204:207], v[186:189], v[144:159]""")
        p(f"""s_lshl_b32 {sT1}, {sHEAD}, 5
        s_add_u32 {sT1}, {sT1}, {sRB}
        s_lshl_b32 {sT1}, {sT1}, 8
        s_add_u32 {sT1}, {sT1}, {O_CS}
        s_add_u32 {sT2}, {sWP}, 32768
        s_add_u32 {sT0}, {sWP}, 36864
        s_add_u32 {sT3}, {sWP}, {36864 + 32768}
        v_mov_b32 v64, 0
        v_mov_b32 v65, 0
        v_lshlrev_b32 v26, 2, v1""")
        for d in range(8): p(f"v_cvt_pk_bf16_f32 v{48+d}, v{128+2*d}, v{129+2*d}")
        for d in range(8): p(f"v_cvt_pk_bf16_f32 v{56+d}, v{144+2*d}, v{145+2*d}")
        Lw = p.lab("n3")
        p(f"""buffer_store_dwordx4 v[48:51], v167, {WS}, {sWP} offen sc1
        buffer_store_dwordx4 v[56:59], v167, {WS}, {sT0} offen sc1
        s_cmp_ge_u32 {sRB}, 8
        s_cbranch_scc1 {Lw}
        s_mov_b32 exec_hi, 0
        buffer_store_dwordx4 v[52:55], v167, {WS}, {sT2} offen sc1
        buffer_store_dwordx4 v[60:63], v167, {WS}, {sT3} offen sc1
        s_mov_b32 exec_hi, -1
        {Lw}:""")
        for d in range(8):
            if d == 4: p("s_mov_b32 exec_hi, 0")
            p(f"v_dot2c_f32_bf16 v64, {sONE2}, v{48+d}\nv_dot2c_f32_bf16 v65, {sONE2}, v{56+d}")
        p("s_mov_b32 exec_hi, -1")
        p(f"v_permlane32_swap_b32 v64, v65\nv_add_f32 v64, v64, v65\nbuffer_store_dword v64, v26, {WS}, {sT1} offen sc1")

    def marks_p(self):
        p = self.p; o = self.opt
        p(f"""v_mov_b32 v72, -1
        v_mov_b32 v73, -1
        v_mov_b32 v74, -1
        v_mov_b32 v75, -1
        s_lshl_b32 {sT3}, {sHG}, 2
        s_add_u32 {sT3}, {sT3}, {sI4}
        s_lshl_b32 {sT3}, {sT3}, 3
        s_add_u32 {sT3}, {sT3}, {sX}
        s_lshl_b32 {sT3}, {sT3}, 11
        s_add_u32 {sT3}, {sT3}, {O_P2[0]}
        s_add_u32 {sT2}, {sT3}, {O_P2[1] - O_P2[0]}""")
        for so in (sT3, sT2):
            for i in range(2): hp = p(f"buffer_store_dwordx4 v[72:75], v{160 if 'P' in o.get('abl', '') else v16L}, {WS}, {so} offen offset:{1024*i} sc1")

    def marks_y(self):
        p = self.p
        p("v_mov_b32 v72, -1\nv_mov_b32 v73, -1\nv_mov_b32 v74, -1\nv_mov_b32 v75, -1")
        p(f"s_mul_i32 {sT1}, {sRB}, 73728\ns_mul_i32 {sT2}, {sHG}, 9216\ns_add_u32 {sT1}, {sT1}, {sT2}\ns_add_u32 {sT1}, {sT1}, {O_Y}")
        for i in range(9):
            p(f"buffer_store_dwordx4 v[72:75], v{v16L}, {WS}, {sT1} offen offset:{1024*(i%4)} sc1")
            if i % 4 == 3: p(f"s_add_u32 {sT1}, {sT1}, 4096")

    def upoll(self):
        p = self.p; o = self.opt
        Lr, Le = p.lab("pu"), p.lab("pue")
        p(f"""v_and_b32 v27, 31, v1
        v_lshlrev_b32 v27, 2, v27
        s_lshl_b32 {sT0}, {sX}, 7
        s_add_u32 {sT1}, {sT0}, {O_FU}
        s_add_u32 {sT0}, {sT0}, {O_FUA}
        s_mov_b32 {sPC}, 0
        {Lr}:
        s_cmp_gt_u32 {sPC}, {o.get("ua_tries", 24)}
        s_cselect_b32 {sT0}, {sT1}, {sT0}
        buffer_load_dword v28, v27, {WS}, {sT0} offen sc1
        s_add_u32 {sPC}, {sPC}, 1
        s_waitcnt vmcnt(0)
        v_xor_b32 v28, {sT4}, v28
        v_cmp_lt_u32 vcc, 15, v28
        s_cmp_gt_u32 {sPC}, {SPIN}
        s_cbranch_scc1 {Le}
        s_cbranch_vccnz {Lr}
        {Le}:
        v_cmp_ne_u32 vcc, 0, v28
        s_nop 4
        s_cmp_eq_u64 vcc, 0
        s_cselect_b32 {sT0}, {1 if o.get('slow') else 2}, 1""")
        self.lds_signal(1, 27, sT0)

    def conv_addr(self):
        p = self.p
        p("v_and_b32 v216, 15, v1\nv_lshrrev_b32 v217, 4, v1")
        p(f"""v_add_u32 v218, 1, v216
        v_and_b32 v219, 3, v218
        v_mul_u32_u24 v219, {CP}, v219
        v_lshrrev_b32 v218, 2, v218
        v_lshl_add_u32 v219, v218, 3, v219
        v_lshl_add_u32 v219, v217, 4, v219
        v_add_u32 v212, {sLC}, v219
        v_lshlrev_b32 v218, 5, v216
        v_lshlrev_b32 v219, 4, v217
        v_sub_u32 v219, v219, v218
        s_add_u32 {sT5}, {sLC}, {L_CU + 4064 - 3584}
        v_add_u32 v213, {sT5}, v219
        v_and_b32 v218, 1, v217
        v_lshlrev_b32 v218, 2, v218
        v_lshrrev_b32 v219, 2, v216
        v_add_u32 v218, v218, v219
        v_mul_u32_u24 v218, 73728, v218
        v_and_b32 v219, 3, v216
        v_lshl_add_u32 v218, v219, 5, v218
        v_lshrrev_b32 v219, 1, v217
        v_lshl_add_u32 v214, v219, 4, v218""")

    def tables(self):
        p = self.p
        L7 = p.lab("noconv2")
        p(f"s_cmp_eq_u32 {sCONV}, 0\ns_cbranch_scc1 {L7}\nv_add_u32 v27, {sLC}, v{v16L}")
        p.raw("s_waitcnt vmcnt(3)"); p.assume_done(self.hh)
        h = []
        for i in range(4):
            p(f"ds_read_b128 {vr(224+6*i,4)}, v27 offset:{32 + 1024*i}")
            h.append(p(f"ds_read_b64 {vr(228+6*i,2)}, v27 offset:{48 + 1024*i}"))
        p(f"""v_mov_b32 v32, 0
        v_mov_b32 v33, 0
        v_mov_b32 v34, 0
        v_mov_b32 v35, 0
        v_lshlrev_b32 v26, 3, v1
        v_add_u32 v26, {sLC}, v26
        ds_write_b64 v26, v[32:33] offset:{L_CU + 4096}""")
        for i in range(4):
            D = 224 + 6 * i; F = 64 + 12 * (i & 1)
            p.wait(h[i])
            if i == 0: p("v_readfirstlane_b32 s86, v224\nv_readfirstlane_b32 s87, v225")
            for q in range(4): p(f"v_alignbit_b32 v{F+q}, v{D+q+1}, v{D+q}, 16")
            p(f"ds_write_b128 v27, {vr(F,4)} offset:{CP + 32 + 1024*i}")
            for q in range(4): p(f"v_mov_b32 v{F+4+q}, v{D+q+1}")
            p(f"ds_write_b128 v27, {vr(F+4,4)} offset:{2*CP + 32 + 1024*i}")
            for q in range(3): p(f"v_mov_b32 v{F+8+q}, v{F+q+1}")
            p(f"v_alignbit_b32 v{F+11}, v{D+5}, v{D+4}, 16")
            p(f"ds_write_b128 v27, {vr(F+8,4)} offset:{3*CP + 32 + 1024*i}")
        p(f"""v_lshlrev_b32 v28, 4, v1
        v_sub_u32 v28, 48, v28
        v_lshlrev_b64 v[36:37], v28, s[86:87]
        v_lshlrev_b64 v[36:37], 16, v[36:37]
        v_mul_u32_u24 v26, {CP}, v1
        v_add_u32 v26, {sLC}, v26
        s_mov_b64 exec, 15
        ds_write_b128 v26, v[32:35]
        ds_write_b128 v26, v[34:37] offset:16
        s_mov_b64 exec, -1
        v_and_b32 v26, 15, v1
        v_lshrrev_b32 v27, 4, v1
        v_lshlrev_b32 v28, 3, v27
        v_add_u32 v28, v28, v26
        v_sub_u32 v29, 15, v28
        v_lshlrev_b32 v44, 16, v45""")
        self.onehot(208, 29, "v45", "v44", 30)
        p(f"{L7}:")

    def wp_loads(self):
        p = self.p; out = []
        for tile in range(2):
            for ks in range(36):
                def g(f=2 * ks + tile, ks=ks, tile=tile):
                    if ks % 2 == 0: p(f"s_add_u32 {sKB}, {sWP}, {tile*36864 + ks*1024}")
                    self.hW[f] = p(f"buffer_load_dwordx4 {wreg(f)}, v{15 if tile else v16L}, {WS}, {sKB} offen offset:{(ks%2)*1024} sc1")
                out.append(g)
        return out
    def small_loads(self):
        p = self.p
        p(f"s_lshl_b32 {sT0}, {sHEAD}, 13\ns_add_u32 {sT0}, {sT0}, {O_CS}\ns_add_u32 {sT1}, {sT0}, 4096")
        for i in range(8): self.hcs = p(f"buffer_load_dwordx4 {vr(144+4*i,4)}, v{v16L}, {WS}, {sT0 if i < 4 else sT1} offen offset:{(i%4)*1024} sc1")

    def conv(self):
        p = self.p; o = self.opt
        self.hW = {}
        NP = self.NP = o.get("w_pre", 36)
        n1 = o.get("w_in_conv", 0)
        LE, LJ = p.lab("noconv3"), p.lab("convend")
        def wflag():
            p(f"""s_lshl_b32 {sT0}, {sHG}, 7
            s_lshl_b32 {sT1}, {sRB}, 2
            s_add_u32 {sT1}, {sT1}, {sT0}
            s_add_u32 {sT1}, {sT1}, {O_FW}""")
            L = self.last_of(0, 4, 26)
            p(f"v_lshlrev_b32 v26, 10, v1\nv_mov_b32 v27, {sN}\ns_mov_b64 exec, 3\nbuffer_store_dword v27, v26, {WS}, {sT1} offen sc1\ns_mov_b64 exec, -1\n{L}:")
        p(f"s_cmp_eq_u32 {sCONV}, 0\ns_cbranch_scc1 {LE}")
        if o.get("wfirst", 1): p.waitall(); wflag()
        self.lds_wait(1, 1, 26)
        self.stamp("useen")
        p(f"s_lshl_b32 {sT1}, {sCH}, 12\ns_add_u32 {sT1}, {sT1}, {O_U}\ns_add_u32 m0, {sLC}, {L_CU}")
        hu = [p(f"buffer_load_dwordx4 v{v16L}, {WS}, {sT1} offen offset:{1024*i} sc1 lds") for i in range(4)]
        if not o.get("wfirst", 1): p("s_waitcnt vmcnt(4)"); wflag()
        ACC, AB, BB = 32, 64, 128
        hA = {}; hB = {}
        def rdA(m, t):
            b = AB + 32 * (m & 1) + 4 * t
            p(f"ds_read_b64 {vr(b,2)}, v212 offset:{512*t + 64*m}")
            hA[m, t] = p(f"ds_read_b64 {vr(b+2,2)}, v212 offset:{512*t + 64*m + 8}")
        def rdB(m, be):
            hB[m, be] = p(f"ds_read_b128 {vr(BB + 32*(m&1) + 4*be, 4)}, v213 offset:{512*(7-be) + 64*m}")
        for t in range(8): rdA(0, t)
        p.wait(*hu); self.lds_signal(3, 26)
        self.stamp("udma")
        for be in range(8): rdB(0, be)
        wl = self.wp_loads()
        bg = list(wl[:n1])
        m0 = o.get("w_step", 5)
        for m in range(8):
            main = []
            if m == 0:
                for b in range(8):
                    def g(b=b):
                        p.wait(hB[0, b]); p(f"{M16} {vr(ACC+4*b,4)}, v[208:211], {vr(BB+4*b,4)}, 0")
                    main.append(g)
            for (t, be) in sorted([(t, be) for t in range(8) for be in range(8 - t)], key=lambda x: (max(x), x[0] + x[1])):
                def g(t=t, be=be):
                    p.wait(hA[m, t], hB[m, be])
                    d = vr(ACC + 4 * (t + be), 4)
                    p(f"{M16} {d}, {vr(AB+32*(m&1)+4*t,4)}, {vr(BB+32*(m&1)+4*be,4)}, {d}")
                main.append(g)
            fill = []
            if m < 7:
                for t in range(8):
                    fill.append((8, lambda t=t: rdB(m + 1, t))); fill.append((8, lambda t=t: rdA(m + 1, t)))
            if m >= m0 and n1:
                if m == m0: self.lds_wait(2, 1, 26)
                k = min(-(-len(bg) // (8 - m)), len(bg))
                extra, bg = bg[:k], bg[k:]
                for i, g in enumerate(extra):
                    j = 2 + i * 34 // k
                    main[j] = (lambda a=main[j], b=g: (a(), b()))
            mix(p, main, fill, 8)
            if m in (1, 3, 5): self.stamp(f"m{m}")
        if not n1: self.lds_wait(2, 1, 26)
        p(f"s_lshl_b32 {sT1}, {sCH}, 7\ns_add_u32 {sT1}, {sT1}, {O_Y}")
        for bp in range(4):
            for d in range(4): p(f"v_cvt_pk_bf16_f32 v{64+4*bp+d}, v{ACC+8*bp+2*d}, v{ACC+8*bp+2*d+1}")
        for bp in range(4):
            O = 64 + 4 * bp
            p(f"v_permlane16_swap_b32 v{O}, v{O+2}\nv_permlane16_swap_b32 v{O+1}, v{O+3}")
            hy = p(f"buffer_store_dwordx4 {vr(O,4)}, v214, {WS}, {sT1} offen sc1")
            p(f"s_add_u32 {sT1}, {sT1}, {8*73728}")
        self.stamp("convE")
        NA = max(o.get("w_a", 36), n1)
        def f2poll():
            p(f"""v_and_b32 v26, 31, v1
            s_lshl_b32 {sT0}, {sX}, 7
            s_add_u32 {sT0}, {sT0}, {O_F2X}
            v_lshl_add_u32 v26, v26, 2, {sT0}
            v_and_b32 v27, 7, v1
            s_lshl_b32 {sT1}, {sRB}, 7
            s_add_u32 {sT1}, {sT1}, {O_FX0}
            v_lshl_add_u32 v27, v27, 2, {sT1}
            v_cmp_gt_u32 vcc, 32, v1
            v_cndmask_b32 v26, v27, v26, vcc""")
            self.poll(26, 0, 27); self.lds_signal(7, 26)
        if o.get("f2", 3) == 0:
            L0 = self.onwave(0); f2poll(); p(f"{L0}:")
        for g in wl[n1:NA]: g()
        p(f"s_branch {LJ}")
        seq_idle = p.seq
        p(f"{LE}:")
        L = self.onwave(3)
        if o.get("pois", "fold") == "fold": self.marks_y(); p.waitall(); wflag()
        self.lds_wait(5, 3, 26)
        if o.get("pois", "fold") == "u": self.marks_y(); p.waitall(); wflag()
        if o.get("udelay", 0): p(f"s_sleep {o.get('udelay', 0)}")
        p.waitall(); self.upoll()
        p(f"s_sub_u32 {sFAST}, {sT0}, 1")
        p(f"""s_lshl_b32 {sT0}, {sHG}, 7
        s_add_u32 {sT0}, {sT0}, {O_FW}
        s_lshl_b32 {sT1}, {sX}, 7
        s_add_u32 {sT1}, {sT1}, {O_FWB}
        s_cmp_lt_u32 {sJ}, 8
        s_cselect_b32 {sNC}, 3, 2
        v_and_b32 v30, 31, v1
        v_lshl_add_u32 v31, v30, 2, {sT1}
        v_lshl_add_u32 v30, v30, 2, {sT0}
        v_cmp_gt_u32 vcc, 32, v1
        v_cndmask_b32 v30, v31, v30, vcc""")
        self.lds_wait(3, sNC, 26)
        self.srd(SA, "q", TEN)
        p(f"s_mul_i32 {sT1}, {sRB}, {64*1152}\ns_mul_i32 {sT2}, {sHG}, 144\ns_add_u32 {sT1}, {sT1}, {sT2}")
        for i in range(9):
            p(f"""v_add_u32 v26, {64*i}, v1
            v_mul_u32_u24 v27, 7282, v26
            v_lshrrev_b32 v27, 16, v27
            v_mul_u32_u24 v27, {1152 - 144}, v27
            v_lshl_add_u32 v26, v26, 4, v27
            s_mov_b32 m0, {L_Q + 1024*i}
            buffer_load_dwordx4 v26, {SA}, {sT1} offen lds""")
        p(f"""v_lshlrev_b32 v26, 7, v1
        s_lshl_b32 {sT3}, {sRB}, 3
        s_add_u32 {sT3}, {sT3}, {sHG}
        s_lshl_b32 {sT3}, {sT3}, 9
        s_add_u32 {sT3}, {sT3}, {O_ST[1]}
        v_and_b32 v27, 0x180, v26
        v_bfe_u32 v28, v1, 2, 1
        v_mul_u32_u24 v28, {O_ST[2] - O_ST[1]}, v28
        v_add3_u32 v27, v27, v28, {sT3}
        v_and_b32 v28, 0x380, v26
        v_add_u32 v28, {sFR}, v28
        v_cmp_gt_u32 vcc, 8, v1
        v_cndmask_b32 v27, v28, v27, vcc
        s_lshl_b32 {sT2}, {sG4}, 5
        s_add_u32 {sT2}, {sT2}, {O_FP}
        v_mov_b32 v28, {sT2}
        v_cmp_gt_u32 vcc, 13, v1
        v_cndmask_b32 v27, v28, v27, vcc
        s_lshl_b32 {sT2}, {sX}, 7
        s_add_u32 {sT2}, {sT2}, {O_F2X}
        v_writelane_b32 v27, {sT2}, 14
        s_lshl_b32 {sT2}, {sRB}, 7
        s_add_u32 {sT2}, {sT2}, {O_FX0}
        v_writelane_b32 v27, {sT2}, 15
        s_mov_b64 exec, 0xffff
        buffer_load_dword v220, v27, {WS}, 0 offen
        s_mov_b64 exec, -1""")
        self.srd(SE, "wo", 576 * 1152)
        p(f"s_mul_i32 {sT1}, {sHG}, 144")
        for i in range(4): p(f"s_mov_b32 m0, {L_WOT + 1024*i}\nbuffer_load_dwordx4 v{216+i}, {SE}, {sT1} offen lds")
        self.marks_p()
        self.poll(30, 0, 27, sleep=o.get('wsleep', 4)); self.lds_signal(2, 76); self.stamp("wseen")
        win = o.get("w_win", 40); k0 = o.get("k0", 0); k1 = o.get("k1", 8)
        for g in wl[:k0]: g()
        p(f"v_mul_u32_u24 v26, 144, v1\nv_mov_b32 v28, 0\nv_mov_b32 v29, 0")
        hq = [p(f"ds_read_b128 {vr(32+4*i,4)}, v26 offset:{L_Q + 16*i}") for i in range(9)]
        for d in range(36):
            p.wait(hq[d // 4]); p(f"v_dot2c_f32_bf16 v28, {sONE2}, v{32+d}\nv_dot2c_f32_bf16 v29, v{32+d}, v{32+d}")
        p(f"""s_lshl_b32 {sT1}, {sRB}, 3
        s_add_u32 {sT1}, {sT1}, {sHG}
        s_lshl_b32 {sT1}, {sT1}, 9
        s_add_u32 {sT1}, {sT1}, {O_ST[0]}
        v_lshlrev_b32 v26, 3, v1
        buffer_store_dwordx2 v[28:29], v26, {WS}, {sT1} offen sc1""")
        p(f"""v_bfe_u32 v76, v1, 2, 2
        v_mul_u32_u24 v76, 144, v76
        v_and_b32 v77, 1, v1
        v_lshl_add_u32 v78, v77, 3, v76
        v_and_b32 v77, 3, v1
        v_lshl_add_u32 v76, v77, 3, v76
        v_lshrrev_b32 v77, 4, v1
        v_lshl_add_u32 v76, v77, 5, v76
        v_and_b32 v79, 15, v1
        v_lshlrev_b32 v79, 4, v79
        v_lshl_add_u32 v79, v77, 10, v79
        s_lshr_b32 {sT1}, {sRB}, 2
        s_mul_i32 {sT1}, {sT1}, 4608
        s_mul_i32 {sT2}, {sHG}, 82944
        s_add_u32 {sT1}, {sT1}, {sT2}
        s_add_u32 {sT1}, {sT1}, {O_WO}
        s_and_b32 {sT2}, {sRB}, 3
        s_lshl_b32 {sT2}, {sT2}, 7
        s_add_u32 {sT1}, {sT1}, {sT2}
        s_add_u32 {sT3}, {sT1}, 4096
        s_add_u32 {sT1}, {sT1}, {sT2}""")
        hw = []
        for c in range(3):
            for k, (a, of) in enumerate(((76, 0), (76, 576), (78, 128), (78, 704))):
                h = p(f"ds_read_b64_tr_b16 {vr(80+8*c+2*k,2)}, v{a} offset:{L_WOT + 1152*c + of}")
            hw.append(h)
        Lc = p.lab("c3")
        for c in (2, 0, 1):
            p.wait(hw[2])
            if c == 2: p(f"s_cmp_ge_u32 {sRB}, 8\ns_cbranch_scc1 {Lc}")
            hs = p(f"""s_add_u32 {sT2}, {sT1}, {8*4608*c}
            buffer_store_dwordx4 {vr(80+8*c,4)}, v79, {WS}, {sT2} offen sc1
            s_add_u32 {sT2}, {sT3}, {8*4608*c}
            s_mov_b64 exec, 0xff
            buffer_store_dwordx4 {vr(84+8*c,4)}, v79, {WS}, {sT2} offen sc1""")
            p("s_mov_b64 exec, -1")
            if c == 2: p(f"{Lc}:")
        for g in wl[k0:k1]: g()
        p.wait(hs)
        p(f"""s_lshl_b32 {sT1}, {sRB}, 7
        s_lshl_b32 {sT2}, {sHG}, 2
        s_add_u32 {sT1}, {sT1}, {sT2}
        s_add_u32 {sT1}, {sT1}, {O_FX0}
        s_lshl_b32 {sT2}, {sX}, 7
        s_lshl_b32 {sT3}, {sJ}, 2
        s_add_u32 {sT2}, {sT2}, {sT3}
        s_add_u32 {sT2}, {sT2}, {O_F2X}
        s_lshl_b32 {sT3}, {sHG}, 7
        s_lshl_b32 {sT4}, {sRB}, 2
        s_add_u32 {sT3}, {sT3}, {sT4}
        s_add_u32 {sT3}, {sT3}, {O_F2C}""")
        self.setflag(sT1, 26, True); self.setflag(sT2, 26, True); self.setflag(sT3, 26)
        k2 = min(o.get("k2", 36), NP)
        for g in wl[k1:k2]: g()
        if o.get("f2", 3) == 3: f2poll()
        for g in wl[k2:NP]: g()
        L2 = p.lab("w2"); p(f"s_branch {L2}\n{L}:")
        p.waitall(); wflag()
        self.lds_wait(2, 1, 26)
        for i, g in enumerate(wl[:NP]):
            g()
            if i >= win: p(f"s_waitcnt vmcnt({win})")
        p(f"{L2}:")
        p(f"{LJ}:")
        X, Tt, Y, R = 76, 96, 116, 136
        self.stamp("wl0")
        self.lds_wait(1, 1, 26)
        p(f"""s_sub_u32 {sFAST}, {sT5}, 1
        v_and_b32 v26, 15, v1
        s_lshl_b32 {sT0}, {sW}, 4
        v_add_u32 v27, {sT0}, v26
        v_mul_u32_u24 v27, 144, v27
        v_lshrrev_b32 v28, 4, v1
        v_lshl_add_u32 v27, v28, 3, v27""")
        for t in range(5): hq = p(f"ds_read_b64 {vr(RES+2*t,2)}, v27 offset:{L_Q + 32*t}")
        p(f"""v_and_b32 v27, 1, v26
        v_lshlrev_b32 v27, 7, v27
        v_lshrrev_b32 v28, 3, v26
        v_lshl_add_u32 v27, v28, 6, v27
        v_bfe_u32 v28, v26, 1, 2
        v_lshl_add_u32 v26, v28, 4, v27
        s_lshl_b32 {sT0}, {sW}, 8
        s_add_u32 {sT0}, {sT0}, {LM_CS}
        v_add_u32 v26, {sT0}, v26
        v_lshrrev_b32 v27, 1, v1
        v_lshlrev_b32 v27, 7, v27
        v_and_b32 v28, 1, v1
        v_lshl_add_u32 v27, v28, 4, v27
        v_mov_b32 v28, 0x40000000
        v_cmp_gt_u32 vcc, 16, v1
        v_cndmask_b32 v29, v28, v27, vcc
        s_mul_i32 {sT4}, {sW}, 3072
        v_lshl_add_u32 v30, v1, 3, {sT4}
        s_mul_i32 {sT3}, {sRB}, 73728
        s_mul_i32 {sT1}, {sHG}, 9216
        s_add_u32 {sT3}, {sT3}, {sT1}
        s_lshl_b32 {sT1}, {sW}, 5
        s_add_u32 {sT3}, {sT3}, {sT1}
        s_add_u32 {sT3}, {sT3}, {O_Y}""")
        p(f"v_lshrrev_b32 v28, 4, v1\nv_mul_u32_u24 v28, 504, v28\nv_sub_u32 v223, v{vXT}, v28")
        ld = self.tile_stats_load(0, 64, 68)
        p(f"s_mov_b32 {sNC}, {sT1}\ns_add_u32 {sFOLD}, {sT3}, 4096\ns_add_u32 {sFH}, {sT3}, 8192")
        self.lds_wait(7, 1, 70)
        self.stamp("w7")
        p(f"s_mov_b32 {sT1}, {sNC}"); ld()
        ydma = "\n".join(f"s_add_u32 m0, {sT4}, {1024*i}\ns_nop 0\nbuffer_load_dwordx4 v{27 if i < 2 else 29}, {WS}, {(sT3, sFOLD, sFH)[i]} offen sc1 lds" for i in range(3))
        hy = p(ydma)
        late = {r for f in range(72) for r in parse_reg(wreg(f))}
        p.forget(lambda h: h.seq > seq_idle and h.dst & late)
        pf = [0]
        def rest(a, b):
            S, E = p.lab("pf"), p.lab("pfe")
            p(f"s_cmp_eq_u32 {sCONV}, 0"); p.raw(f"s_cbranch_scc1 {S}")
            for g in wl[a:b]: g()
            p.raw(f"{E}:"); self.tail.append(f"{S}:")
            for i in range(a, b):
                self.tail += [f"s_add_u32 {sKB}, {sWP}, {36864 + 1024 * pf[0]}", f"buffer_load_dwordx4 v[176:179], v{15 if o.get('pfb') else 160}, {WS}, {sKB} offen sc1"]; pf[0] += 1
            self.tail.append(f"s_branch {E}")
        NB = min(NA + o.get("w_b", 12), NP)
        rest(NA, NB)
        p.wait(hy)
        self.stamp("wland")
        Lr, Lo, Lk = p.lab("py"), p.lab("po"), p.lab("pk")
        p(f"s_mov_b32 {sPC}, 0"); p.raw(f"{Lr}:")
        hy = [p(f"ds_read_b64_tr_b16 {vr(YT+2*t,2)}, v30 offset:{512*t}") for t in range(5)]
        for t in range(5):
            p.wait(hy[t]); self.unpack(Y + 4 * t, YT + 2 * t, 2)
            if t == 0: p(f"v_max3_u32 v28, v{Y}, v{Y+1}, v{Y+2}\nv_max_u32 v28, v28, v{Y+3}")
            else: p(f"v_max3_u32 v28, v28, v{Y+4*t}, v{Y+4*t+1}\nv_max3_u32 v28, v28, v{Y+4*t+2}, v{Y+4*t+3}")
        p(f"v_cmp_eq_u32 vcc, {sHI}, v28"); p.raw(f"s_cbranch_vccnz {Lo}\n{Lk}:")
        self.tail += [f"{Lo}:", f"s_add_u32 {sPC}, {sPC}, 1", f"s_cmp_gt_u32 {sPC}, {SPIN // 10}", f"s_cbranch_scc1 {Lk}", f"s_sleep {o.get('ysleep', 2)}"]
        self.tail += ydma.split("\n") + ["s_waitcnt vmcnt(0)", f"s_branch {Lr}"]
        p.wait(hq)
        self.tile_stats_finish(64, R); self.unpack(X, RES, 10); self.norm_tile(Tt, X, R)
        self.stamp("yland")
        def more():
            rest(NB, NP); self.small_loads()
        def cs_part():
            p.wait(self.hcs)
            for i in range(1, 8):
                for h in (0, 2): p(f"v_pk_add_f32 {vr(144+h,2)}, {vr(144+h,2)}, {vr(144+4*i+h,2)}")
            for sw in ("16", "32"):
                for i in range(4): p(f"v_mov_b32 v{148+i}, v{144+i}")
                for i in range(4): p(f"v_permlane{sw}_swap_b32 v{144+i}, v{148+i}")
                for h in (0, 2): p(f"v_pk_add_f32 {vr(144+h,2)}, {vr(144+h,2)}, {vr(148+h,2)}")
            p("s_mov_b64 exec, 0xffff\nds_write_b128 v26, v[144:147]\ns_mov_b64 exec, -1")
        def f2c():
            L = self.onwave(3)
            p(f"v_and_b32 v27, 31, v1\nv_lshlrev_b32 v27, 2, v27\ns_lshl_b32 {sT0}, {sHG}, 7\ns_add_u32 {sT0}, {sT0}, {O_F2C}")
            self.poll(27, sT0, 28); p(f"{L}:")
        self.cs_part = cs_part
        self.publish_z(0, X, Tt, Y, 140, f2c, more)

    def wo_dma(self):
        p = self.p; out = []
        out.append(lambda: p(f"s_mul_i32 {sNC}, {sHG}, 82944\ns_add_u32 {sNC}, {sNC}, {O_WO}\ns_add_u32 {sNC}, {sNC}, {sW10}"))
        for i in range(21):
            def g(i=i):
                L = None
                if i == 20: L = p.lab("wo"); p(f"s_cmp_ge_u32 {sW}, 1\ns_cbranch_scc1 {L}")
                p(f"s_add_u32 m0, {sW10}, {L_W + 4096*i}\ns_add_u32 {sO}, {sNC}, {4096*i}\nbuffer_load_dwordx4 v{v16L}, {WS}, {sO} offen sc1 lds")
                if L: p(f"{L}:")
            out.append(g)
        return out

    def softmax(self, t, rl, E, tmp, out, pk):
        p = self.p; F = []
        a = lambda c, s: F.append((c, lambda: p(s)))
        mx, mn, c1, c2 = tmp, tmp + 1, tmp + 2, tmp + 3
        a(4, f"v_max3_f32 v{mx}, v{t}, v{t+1}, v{t+2}"); a(4, f"v_max3_f32 v{mn}, -v{t}, -v{t+1}, -v{t+2}")
        for i in (3, 5, 7):
            a(4, f"v_max3_f32 v{mx}, v{mx}, v{t+i}, v{t+i+1}"); a(4, f"v_max3_f32 v{mn}, v{mn}, -v{t+i}, -v{t+i+1}")
        a(12, f"v_permlane32_swap_b32 v{mx}, v{mn}")
        a(4, f"v_max_f32 v{mx}, v{mx}, v{mn}")
        a(4, f"v_mul_f32 v{c1}, -v{mx}, v{rl}"); a(4, f"v_mul_f32 v{c2}, -v{mx}, v{rl}")
        a(12, f"v_permlane32_swap_b32 v{c1}, v{c2}")
        P, N = E, E + 10
        assert rl % 2 == 0 and c1 % 2 == 0
        if pk:
            for i in range(0, 8, 2):
                a(5, f"v_pk_fma_f32 {vr(P+i,2)}, {vr(t+i,2)}, {vr(rl,2)}, {vr(c1,2)} op_sel_hi:[1,0,0]")
                a(5, f"v_pk_fma_f32 {vr(N+i,2)}, {vr(t+i,2)}, {vr(rl,2)}, {vr(c1,2)} op_sel:[0,0,1] op_sel_hi:[1,0,1] neg_lo:[1,0,0] neg_hi:[1,0,0]")
        for i in range(8 if pk else 0, 9):
            a(4, f"v_fma_f32 v{P+i}, v{t+i}, v{rl}, v{c1}"); a(4, f"v_fma_f32 v{N+i}, -v{t+i}, v{rl}, v{c2}")
        for i in range(9):
            a(8, f"v_exp_f32 v{P+i}, v{P+i}"); a(8, f"v_exp_f32 v{N+i}, v{N+i}")
        s1, s2 = tmp, tmp + 2
        if pk:
            a(5, f"v_pk_add_f32 {vr(s1,2)}, {vr(P,2)}, {vr(P+2,2)}"); a(5, f"v_pk_add_f32 {vr(s2,2)}, {vr(N,2)}, {vr(N+2,2)}")
            for i in (4, 6):
                a(5, f"v_pk_add_f32 {vr(s1,2)}, {vr(s1,2)}, {vr(P+i,2)}"); a(5, f"v_pk_add_f32 {vr(s2,2)}, {vr(s2,2)}, {vr(N+i,2)}")
        else:
            for h in range(2):
                a(4, f"v_add_f32 v{s1+h}, v{P+h}, v{P+2+h}"); a(4, f"v_add_f32 v{s2+h}, v{N+h}, v{N+2+h}")
            for i in (4, 6):
                for h in range(2):
                    a(4, f"v_add_f32 v{s1+h}, v{s1+h}, v{P+i+h}"); a(4, f"v_add_f32 v{s2+h}, v{s2+h}, v{N+i+h}")
        a(4, f"v_add_f32 v{s1}, v{s1}, v{s1+1}"); a(4, f"v_add_f32 v{s2}, v{s2}, v{s2+1}")
        a(4, f"v_add_f32 v{s1}, v{s1}, v{P+8}"); a(4, f"v_add_f32 v{s2}, v{s2}, v{N+8}")
        a(12, f"v_permlane32_swap_b32 v{s1}, v{s2}")
        a(4, f"v_add_f32 v{s1}, v{s1}, v{s2}")
        a(8, f"v_rcp_f32 v{s1}, v{s1}"); a(8, f"v_mov_b32 v{s1+1}, v{s1}")
        a(12, f"v_permlane32_swap_b32 v{s1}, v{s1+1}")
        if pk:
            for i in range(0, 8, 2):
                a(5, f"v_pk_mul_f32 {vr(P+i,2)}, {vr(P+i,2)}, {vr(s1,2)} op_sel_hi:[1,0]")
                a(5, f"v_pk_mul_f32 {vr(N+i,2)}, {vr(N+i,2)}, {vr(s1,2)} op_sel:[0,1]")
        for i in range(8 if pk else 0, 9):
            a(4, f"v_mul_f32 v{P+i}, v{P+i}, v{s1}"); a(4, f"v_mul_f32 v{N+i}, v{N+i}, v{s1+1}")
        for i in range(4): a(4, f"v_cvt_pk_bf16_f32 v{out[i]}, v{P+2*i}, v{P+2*i+1}")
        for i in range(4): a(4, f"v_cvt_pk_bf16_f32 v{out[4+i]}, v{N+2*i}, v{N+2*i+1}")
        a(4, f"v_cvt_pk_bf16_f32 v{out[8]}, v{P+8}, v{N+8}")
        return F

    def layer(self, L):
        p = self.p; o = self.opt
        A_, B_ = [32, 48], [64, 80]; FB, CS, PK, E, TMP = 96, 128, [156, 172], 188, 208
        RL = [212, 214]; RS = [216, 217]; vB = 218
        WA = [219, 220, 221, 222]; RA = [26, 27, 28]
        hZ = {}; hst = []
        def zdma(n):
            T, i = divmod(n, 9)
            p(f"s_add_u32 m0, {sW10}, {SUB*T + 4096*i}\ns_add_u32 {sO}, {sT3}, {SUB*T + 4096*i}")
            hZ[n] = p(f"buffer_load_dwordx4 v{v16L}, {WS}, {sO} offen sc1 lds")
        p(f"s_add_u32 {sT3}, {sZ}, {sW10}")
        NU = o.get("NU", 6)
        for n in range(NU): zdma(n)
        if L == 0: self.cs_part(); p.waitall(vm=False)
        p(f"""v_lshrrev_b32 v29, 5, v1
        v_lshlrev_b32 v29, 7, v29
        s_lshl_b32 {sT0}, {sW}, 8
        s_add_u32 {sT0}, {sT0}, {LM_CS}
        v_add_u32 v29, {sT0}, v29
        v_add_u32 v{vB}, {SUB}, v{v16L}
        v_lshlrev_b32 v31, 3, v1
        s_lshl_b32 {sT4}, {sRB}, 12
        s_add_u32 {sT4}, {sT4}, {O_ST[1]}""")
        for i in range(7): hcs = p(f"ds_read_b128 {vr(CS+4*i,4)}, v29 offset:{16*i}")
        bud = o.get("budget", 16)
        stl = [(lambda i=i: hst.append(p(f"buffer_load_dwordx2 {vr(PK[1]+2*i,2)}, v31, {WS}, {sT4} offen offset:{512*i} sc1"))) for i in range(8)]
        zl = [(lambda n=n: zdma(n)) for n in range(NU, 18)]
        mem = {1 + 2 * i: g for i, g in enumerate(zl[:13 - NU] + stl + zl[13 - NU:])}
        def lines(text, c=4): return [(c, (lambda s=s: p(s))) for s in text.strip().split("\n")]
        S = PK[1]
        stats = [(0, lambda: p.wait(*hst))]
        for i in range(1, 8): stats += lines(f"v_add_f32 v{S}, v{S}, v{S+2*i}\nv_add_f32 v{S+1}, v{S+1}, v{S+2*i+1}")
        stats += lines(f"""v_mul_f32 v{RL[0]+1}, {INV576 | 0x80000000}, v{S}
        v_mul_f32 v{S+1}, {INV576}, v{S+1}
        v_fma_f32 v{S+1}, -v{RL[0]+1}, v{RL[0]+1}, v{S+1}
        v_mov_b32 v{RL[1]+1}, v{RL[0]+1}
        v_max_f32 v{S+1}, 0, v{S+1}
        v_add_f32 v{S+1}, {EPS}, v{S+1}
        v_rsq_f32 v{RS[0]}, v{S+1}
        v_permlane32_swap_b32 v{RL[0]+1}, v{RL[1]+1}
        v_mov_b32 v{RS[1]}, v{RS[0]}
        s_nop 1
        v_permlane32_swap_b32 v{RS[0]}, v{RS[1]}
        v_mul_f32 v{RL[0]}, {LOG2E}, v{RS[0]}
        v_mul_f32 v{RL[1]}, {LOG2E}, v{RS[1]}""")
        addr = lines(f"""v_and_b32 v{E}, 31, v1
        v_bfe_u32 v{E+1}, v1, 1, 1
        v_lshlrev_b32 v{E+1}, 2, v{E+1}
        v_and_b32 v{E+2}, 1, v1
        v_lshl_add_u32 v{E+1}, v{E+2}, 1, v{E+1}
        v_bfe_u32 v{E+2}, v1, 2, 1
        v_add_u32 v{E+1}, v{E+1}, v{E+2}
        v_lshlrev_b32 v{E+1}, 4, v{E+1}
        v_lshl_add_u32 v{E}, v{E}, 7, v{E+1}
        s_lshl_b32 {sT0}, {sW}, 13
        v_add_u32 v{E}, {sT0}, v{E}
        v_lshrrev_b32 v{E+1}, 5, v1
        v_lshlrev_b32 v{E+2}, 5, v{E+1}
        v_xor_b32 v{WA[0]}, v{E}, v{E+2}
        v_xor_b32 v{WA[1]}, 16, v{WA[0]}
        v_lshlrev_b32 v{E+2}, 4, v{E+1}
        v_or_b32 v{E+2}, 64, v{E+2}
        v_xor_b32 v{WA[2]}, v{E}, v{E+2}
        v_xor_b32 v{WA[3]}, 32, v{WA[2]}
        v_bfe_u32 v{E}, v1, 2, 2
        v_lshl_add_u32 v{E}, v{E+1}, 2, v{E}
        v_bfe_u32 v{E+2}, v{E}, 1, 1
        v_lshlrev_b32 v{E+2}, 2, v{E+2}
        v_and_b32 v{E+3}, 1, v{E}
        v_lshl_add_u32 v{E+2}, v{E+3}, 1, v{E+2}
        v_add_u32 v{E+2}, v{E+2}, v{E+1}
        v_lshlrev_b32 v{E+2}, 4, v{E+2}
        v_lshl_add_u32 v{E}, v{E}, 7, v{E+2}
        v_add_u32 v{E}, {sT0}, v{E}
        v_and_b32 v{E+1}, 1, v1
        v_bfe_u32 v{E+2}, v1, 1, 1
        v_bfe_u32 v{E+3}, v1, 4, 1
        v_lshlrev_b32 v{RA[0]}, 5, v{E+1}
        v_lshl_add_u32 v{RA[0]}, v{E+3}, 4, v{RA[0]}
        v_xor_b32 v{RA[0]}, v{E}, v{RA[0]}
        v_lshl_add_u32 v{RA[0]}, v{E+2}, 3, v{RA[0]}
        v_lshlrev_b32 v{RA[1]}, 4, v{E+1}
        v_or_b32 v{RA[1]}, 64, v{RA[1]}
        v_xor_b32 v{RA[1]}, v{E}, v{RA[1]}
        v_xor_b32 v{RA[2]}, 32, v{RA[1]}
        v_lshl_add_u32 v{RA[2]}, v{E+2}, 3, v{RA[2]}
        v_add_u32 v{E+4}, 8, v{RA[1]}
        v_cmp_eq_u32 vcc, 1, v{E+3}
        v_lshrrev_b32 v29, 5, v1
        v_cndmask_b32 v{RA[2]}, v{RA[2]}, v{E+4}, vcc
        v_mul_u32_u24 v29, 24, v29
        v_and_b32 v30, 31, v1
        v_add_u32 v30, v29, v30
        v_lshlrev_b32 v29, 4, v30
        v_lshlrev_b32 v30, 3, v30""")
        def kpart(T):
            A, k, nm, r = A_[T], PK[T], RL[T] + 1, RS[T]
            F = [(0, lambda: p.wait(hcs))]
            F += lines("\n".join(f"v_fmac_f32 v{A+i}, v{CS+i}, v{nm}" for i in range(16)))
            F += self.softmax(A, RL[T], E, TMP, [k + i for i in range(9)], False)
            F += lines("\n".join(f"v_mul_f32 v{A+i}, v{A+i}, v{r}" for i in range(9, 16)))
            F += lines("\n".join(f"v_cvt_pk_bf16_f32 v{k+12+i}, v{A+9+2*i}, v{A+10+2*i}" for i in range(3)))
            F += lines(f"v_mov_b32 v{k+9}, 0\nv_mov_b32 v{k+11}, 0")
            return F
        def vtail(T):
            A, B, k, nm, r = A_[T], B_[T], PK[T], RL[T] + 1, RS[T]
            return lines(f"""v_fmac_f32 v{B+9}, v{CS+25}, v{nm}
            v_fmac_f32 v{B+10}, v{CS+26}, v{nm}
            v_mul_f32 v{B+9}, v{B+9}, v{r}
            v_mul_f32 v{B+10}, v{B+10}, v{r}
            v_cvt_pk_bf16_f32 v{k+15}, v{A+15}, v{B+9}
            v_cvt_pk_bf16_f32 v{k+10}, v{B+10}, 1.0""")
        hw = {}
        def wr(T, idx):
            def g():
                for i in idx: hw[T] = p(f"ds_write_b128 v{WA[i]}, {vr(PK[T]+4*i,4)} offset:{4096*T}")
            return [(4 * len(idx), g)]
        hA = {}; FR = [156, 188, 96, 108]
        def rd_part(s):
            def g():
                p.wait(hw[s >> 1])
                for i in range(3):
                    for rd in range(2): hA[s] = p(f"ds_read_b64_tr_b16 {vr(FR[s]+4*i+2*rd,2)}, v{RA[i]} offset:{2048*s + 1024*rd}")
            return [(24, g)]
        seq = [(tile, T, ks) for tile in range(2) for T in range(2) for ks in range(36)]
        PD = o.get("PD", 6); hF = {}
        def rd_frag(n):
            tile, T, ks = seq[n]
            hF[n] = p(f"ds_read_b128 {vr(FB + 4*(n&7), 4)}, v{vB if T else v16L} offset:{1024*ks}")
        need = {4: (1, 0), 8: (3, 3), 16: (5, 10), 24: (8, 18), 36: (12, 30), 52: (17, 49)}
        fa = o.get("free_at", 110); WG = o.get("WG", 2); nxt = [4]
        def step(n):
            def g():
                tile, T, ks = seq[n]; d = vr((A_, B_)[tile][T], 16)
                p.wait(hF[n], self.hW.get(2 * ks + tile))
                p(f"{M32} {d}, {wreg(2*ks+tile)}, {vr(FB + 4*(n&7), 4)}, {d if ks else 0}")
                for _ in range(2):
                    m = nxt[0]
                    if m >= 144 or m > n + PD or (m in need and n < need[m][1]): break
                    if m in need: p.wait(hZ[need[m][0]]); self.barrier()
                    rd_frag(m); nxt[0] += 1
                if n in mem: mem[n]()
                if n == fa: self.barrier()
                if n % WG == WG - 1 and n < 143 and n > 8: p.wait(hF[min(n + WG, 143)])
            return g
        p.wait(hZ[0]); self.barrier()
        self.stamp("z0")
        for n in range(4): rd_frag(n)
        if L == 1: mem[60] = lambda: self.clean_l2("g")
        def touch():
            p(f"""s_lshl_b32 {sT1}, {sRB}, 3
            s_add_u32 {sT1}, {sT1}, {sHG}
            s_lshl_b32 {sT1}, {sT1}, 9
            s_add_u32 {sT1}, {sT1}, {O_ST[2]}
            s_lshl_b32 {sT2}, {sG4}, 5
            s_add_u32 {sT2}, {sT2}, {O_FP}
            v_lshl_add_u32 v31, v1, 7, {sT1}
            v_writelane_b32 v31, {sT2}, 4
            s_add_u32 {sT2}, {sFR}, 128
            v_writelane_b32 v31, {sT2}, 5
            s_add_u32 {sT2}, {sFR}, 256
            v_writelane_b32 v31, {sT2}, 6
            s_mov_b64 exec, 127
            buffer_load_dword v31, v31, {WS}, 0 offen
            s_mov_b64 exec, -1""")
        if L == 0:
            mem[40] = touch
            rest = self.wp_loads()[self.NP:]
            assert self.NP % 2 == 0
            n = 41
            for i, g in enumerate(rest): mem[n] = g; n += 2 if len(rest) <= 20 or i % 2 else 1
            ws_ = 3 if n + 3 * 22 < 144 else 2
            for i, g in enumerate(self.wo_dma()): mem[n + ws_ * i] = g
        K0, K1 = kpart(0), kpart(1)
        mix(p, [step(n) for n in range(0, 38)], addr, bud)
        self.stamp("p1")
        left = mix(p, [step(n) for n in range(38, 74)], stats + K0, bud, False)
        self.stamp("p2")
        left = mix(p, [step(n) for n in range(74, fa + 1)], left + K1, bud, False)
        self.stamp("p3")
        mix(p, [step(n) for n in range(fa + 1, 144)], vtail(0) + wr(0, [0, 1]) + wr(0, [2, 3]) + left + wr(1, [0, 1]) + rd_part(0) + rd_part(1), bud)
        self.stamp("gemm")
        KV0, KV1 = A_
        def mm_part(s):
            b = FR[s]; p.wait(hA[s])
            p(f"{M32} {vr(KV0,16)}, {vr(b,4)}, {vr(b+8,4)}, {vr(KV0,16) if s else 0}")
            p(f"{M32} {vr(KV1,16)}, {vr(b+4,4)}, {vr(b+8,4)}, {vr(KV1,16) if s else 0}")
        p(f"""s_mul_i32 {sT1}, {sW}, 18432
        s_mul_i32 {sT2}, {sHG}, 2304
        s_add_u32 {sT1}, {sT1}, {sT2}
        s_add_u32 {sT1}, {sT1}, {sZ}
        s_add_u32 {sT1}, {sT1}, {self.OO - self.OZ}""")
        run(vtail(1)); run(wr(1, [2, 3]))
        mm_part(0); mm_part(1)
        run(rd_part(2)); run(rd_part(3))
        mm_part(2); mm_part(3)
        for d in range(10): p(f"v_cvt_pk_bf16_f32 v{96+d}, v{(KV0 + 2*d) if d < 8 else (KV1 + 2*d - 16)}, v{(KV0 + 2*d + 1) if d < 8 else (KV1 + 2*d - 15)}")
        self.dual(f"""s_mov_b64 exec, {M48}
        buffer_store_dwordx4 v[96:99], v29, {WS}, {sT1} offen
        buffer_store_dwordx4 v[100:103], v29, {WS}, {sT1} offen offset:768
        buffer_store_dwordx2 v[104:105], v30, {WS}, {sT1} offen offset:1536
        s_mov_b64 exec, -1""")
        self.stamp("part")
        def qsoft(T, half):
            A, B, rl = A_[T], B_[T], RL[T]
            F = lines("\n".join(f"v_pk_fma_f32 {vr(B+i,2)}, {vr(CS+16+i,2)}, {vr(rl,2)}, {vr(B+i,2)} op_sel:[0,1,0]" for i in range(0, 8, 2)))
            F += lines(f"v_fmac_f32 v{B+8}, v{CS+24}, v{rl+1}")
            F += self.softmax(B, rl, E, TMP, [A + i for i in range(9)], True)
            F += lines("\n".join(f"v_mov_b32 v{A+9+i}, 0" for i in range(3)))
            n = o.get("qsplit", 45)
            run(F[:n] if half == 0 else F[n:])
        p(f"""s_lshl_b32 {sT0}, {sG4}, 5
        s_add_u32 {sT0}, {sT0}, {O_FP + 64*L}
        s_lshl_b32 {sT1}, {sI4}, 2
        s_lshl_b32 {sT2}, {sW}, 4
        s_add_u32 {sT1}, {sT1}, {sT2}
        s_add_u32 {sT1}, {sT1}, {sT0}
        s_lshl_b32 {sT2}, {sI4}, 4
        s_add_u32 {sT0}, {sT0}, {sT2}""")
        qsoft(0, 0)
        p.waitall(); self.setflag(sT1, 106, True)
        self.stamp("ack1")
        p(f"""v_lshlrev_b32 v116, 3, v0
        v_mov_b32 v118, 0x40000000
        v_cmp_gt_u32 vcc, 240, v0
        s_mul_i32 {sT2}, {sX}, {4*73728}
        v_cndmask_b32 v116, v118, v116, vcc
        s_mul_i32 {sT3}, {sI4}, 18432
        s_add_u32 {sT2}, {sT2}, {sT3}
        s_mul_i32 {sT3}, {sHG}, 2304
        s_add_u32 {sT2}, {sT2}, {sT3}
        s_add_u32 {sT2}, {sT2}, {self.OO}
        s_lshl_b32 {sT3}, {sHG}, 2
        s_add_u32 {sT3}, {sT3}, {sI4}
        s_lshl_b32 {sT3}, {sT3}, 3
        s_add_u32 {sT3}, {sT3}, {sX}
        s_lshl_b32 {sT3}, {sT3}, 11
        s_add_u32 {sT3}, {sT3}, {O_P2[L]}""")
        p("v_and_b32 v96, 3, v1\nv_lshlrev_b32 v96, 2, v96")
        self.poll(96, sT0, 97)
        self.stamp("Fp")
        hr = []
        for pp in range(4):
            hr.append(p(f"buffer_load_dwordx2 {vr(96+2*pp,2)}, v116, {WS}, {sT2} offen sc1"))
            if pp < 3: p(f"s_add_u32 {sT2}, {sT2}, 73728")
        p.wait(hr[0]); self.unpack(104, 96, 2)
        for pp in range(1, 4):
            p.wait(hr[pp])
            for d in range(2): p(f"v_dot2c_f32_bf16 v{104+2*d}, {sONE}, v{96+2*pp+d}\nv_dot2c_f32_bf16 v{105+2*d}, {sONEH}, v{96+2*pp+d}")
        p("""v_cvt_pk_bf16_f32 v96, v104, v105
        v_cvt_pk_bf16_f32 v97, v106, v107
        v_min_u32 v96, -2, v96
        v_min_u32 v97, -2, v97""")
        hs = p(f"buffer_store_dwordx2 v[96:97], v116, {WS}, {sT3} offen sc1")
        self.stamp("lred")
        if L == 1: self.clean_l2("p")
        self.barrier()
        qsoft(0, 1); qsoft(1, 0); qsoft(1, 1)
        p(f"""s_lshl_b32 {sT0}, {sHEAD}, 14
        s_add_u32 {sT0}, {sT0}, {O_P2[L]}
        s_mul_i32 {sT3}, {sHG}, 2304
        s_add_u32 {sT3}, {sT3}, {sZ}
        s_add_u32 {sT3}, {sT3}, {self.OO - self.OZ}
        s_add_u32 {sT4}, {sT3}, 36864
        v_bfe_u32 v26, v1, 4, 1
        v_mul_u32_u24 v26, 18432, v26
        v_and_b32 v27, 15, v1
        v_lshl_add_u32 v26, v27, 4, v26
        v_lshrrev_b32 v27, 5, v1
        s_lshl_b32 {sT2}, {sW}, 1
        v_add_u32 v27, {sT2}, v27
        v_lshl_add_u32 v28, v27, 1, v26
        v_lshl_add_u32 v26, v27, 8, v26
        v_mov_b32 v205, 0
        v_mov_b32 v206, 0
        v_mov_b32 v207, 0""")
        self.stamp("Fk")
        hg_ = []; GB, SU, KF = 96, 176, 196
        p(f"s_add_u32 {sT1}, {sT0}, 4096\ns_add_u32 {sT2}, {sT0}, 8192\ns_add_u32 {sO}, {sT0}, 12288\ns_mov_b32 {sPC}, 0")
        def gl(xx):
            b = GB + 10 * xx; of = (xx & 1) * 2048; so = (sT0, sT1, sT2, sO)[xx >> 1]
            return f"""buffer_load_dwordx4 {vr(b,4)}, v29, {WS}, {so} offen offset:{of} sc1
            buffer_load_dwordx4 {vr(b+4,4)}, v29, {WS}, {so} offen offset:{of+768} sc1
            buffer_load_dword v{b+8}, v30, {WS}, {so} offen offset:{of+1536} sc1"""
        p(f"s_mov_b64 exec, {M48}")
        for xx in range(8): hg_.append(p(gl(xx)))
        for xx in range(8):
            b = GB + 10 * xx; Lr, Lo, Lk = p.lab("gr"), p.lab("go"), p.lab("gk")
            p.raw(f"{Lr}:"); p.wait(hg_[xx])
            if xx == 0: self.stamp("g0")
            p(f"v_max3_u32 v{b+9}, v{b}, v{b+2}, v{b+4}\nv_max3_u32 v{b+9}, v{b+9}, v{b+6}, v{b+8}\nv_cmp_eq_u32 vcc, -1, v{b+9}")
            p.raw(f"s_cbranch_vccnz {Lo}\n{Lk}:")
            self.tail += [f"{Lo}:", f"s_add_u32 {sPC}, {sPC}, 1", f"s_cmp_gt_u32 {sPC}, {SPIN // 10}", f"s_cbranch_scc1 {Lk}", "s_waitcnt vmcnt(0)"]
            self.tail += [l.strip() for x2 in range(xx, 8) for l in gl(x2).split("\n")] + [f"s_branch {Lr}"]
            if xx == 0: self.unpack(SU, b, 9)
            else:
                for d in range(9): p(f"v_dot2c_f32_bf16 v{SU+2*d}, {sONE}, v{b+d}\nv_dot2c_f32_bf16 v{SU+2*d+1}, {sONEH}, v{b+d}")
        p("s_mov_b64 exec, -1")
        for d in range(9): p(f"v_cvt_pk_bf16_f32 v{KF+d}, v{SU+2*d}, v{SU+2*d+1}")
        self.stamp("gath")
        for T in range(2):
            for s in range(3):
                d = vr(B_[T], 16)
                p(f"{M32} {d}, {vr(KF+4*s,4)}, {vr(A_[T]+4*s,4)}, {d if s else 0}")
        p(f"""v_add_u32 v208, {L_W}, v{v16L}
        v_add_u32 v209, {L_W + 9*4608}, v{v16L}
        v_lshrrev_b32 v210, 4, v1
        v_lshlrev_b32 v210, 3, v210
        v_and_b32 v211, 7, v1
        v_add_u32 v210, v210, v211
        v_lshlrev_b32 v210, 4, v210
        v_add_u32 v211, {L_W + 9*4608 + 4096}, v210
        v_add_u32 v210, {L_W + 4096}, v210""")
        self.barrier()
        for T in range(2):
            B = B_[T]; O = 96 + 4 * T
            p(f"v_add_f32 v{B+10}, {EPS6}, v{B+9}\nv_rcp_f32 v{B+10}, v{B+10}")
            for i in range(0, 8, 2): p(f"v_pk_mul_f32 {vr(B+i,2)}, {vr(B+i,2)}, {vr(B+10,2)} op_sel_hi:[1,0]")
            p(f"v_mul_f32 v{B+8}, v{B+8}, v{B+10}")
            for i in range(4): p(f"v_cvt_pk_bf16_f32 v{O+i}, v{B+2*i}, v{B+2*i+1}")
            p(f"v_cvt_pk_bf16_f32 v{B+8}, v{B+8}, v{B+8}")
            so = sT3 if T == 0 else sT4
            self.dual(f"buffer_store_dwordx4 {vr(O,4)}, v26, {WS}, {so} offen\nbuffer_store_short v{B+8}, v28, {WS}, {so} offen offset:2048")
        self.stamp("ost")
        AC, OF, WF, NS = 32, 52, 124, 4
        hwo = {}
        def rd_wo(s, t):
            a = (208 if t < 4 else 210) + (s >= 9)
            hwo[s, t] = p(f"ds_read_b128 {vr(WF + 20*(s%NS) + 4*t, 4)}, v{a} offset:{4608*(s%9) + 1024*(t&3)}")
        def pre():
            for s in range(NS):
                for t in range(5): rd_wo(s, t)
            p(f"s_mul_i32 {sT0}, {sW}, 18432\ns_add_u32 {sT0}, {sT0}, {sZ}\ns_add_u32 {sT0}, {sT0}, {self.OO - self.OZ}")
        self.rowhop(1 + 3 * L, 212, pre)
        self.stamp("Fo")
        hO = {}; NO = o.get("NO", 6)
        def ld_o(s):
            hO[s] = p(f"buffer_load_dwordx4 {vr(OF+4*s,4)}, v{v16L}, {WS}, {sT0} offen offset:{(s%4)*1024} sc1")
            if s % 4 == 3: p(f"s_add_u32 {sT0}, {sT0}, 4096")
        for s in range(NO): ld_o(s)
        if L == 1: self.clean_l2("o")
        for s in range(18):
            p.wait(hO[s], hwo[s, 4])
            if s == 0: self.stamp("o0")
            for t in range(5):
                d = vr(AC + 4 * t, 4)
                p(f"{M16} {d}, {vr(WF + 20*(s%NS) + 4*t, 4)}, {vr(OF+4*s,4)}, {d if s else 0}")
                if t == 0 and s + NO < 18: ld_o(s + NO)
                if s and s - 1 + NS < 18: rd_wo(s - 1 + NS, t)
        self.stamp("mm")
        X, Tt, Y, R = 56, 76, 96, 116
        self.unpack(X, RES, 10)
        if L == 0:
            for t in range(5):
                for d in (0, 2): p(f"v_pk_add_f32 {vr(X+4*t+d,2)}, {vr(X+4*t+d,2)}, {vr(AC+4*t+d,2)}")
            self.rowstats(X, 124, 2, True)
            ld = {}
            def mid():
                self.unpack(Y, YT, 10); ld[0] = self.tile_stats_load(2, 124, 128)
            self.stamp("s2st")
            p(f"v_lshrrev_b32 v28, 4, v1\nv_mul_u32_u24 v28, 504, v28\nv_sub_u32 v223, v{vXT}, v28")
            self.rowhop(2, 140, mid, True)
            self.stamp("s2seen")
            h = ld[0](); p.wait(h)
            self.tile_stats_finish(124, R); self.norm_tile(Tt, X, R)
            self.publish_z(1, X, Tt, Y, 124)
        else:
            self.srd(SA, "out", TEN)
            p(f"""v_and_b32 v26, 15, v1
            v_mul_u32_u24 v26, 1152, v26
            v_lshrrev_b32 v27, 4, v1
            v_lshl_add_u32 v26, v27, 3, v26
            s_lshl_b32 {sT0}, {sRB}, 2
            s_add_u32 {sT0}, {sT0}, {sW}
            s_mul_i32 {sT0}, {sT0}, 18432
            s_mul_i32 {sT1}, {sHG}, 144
            s_add_u32 {sT0}, {sT0}, {sT1}""")
            for t in range(5):
                for d in (0, 2): p(f"v_pk_add_f32 {vr(X+4*t+d,2)}, {vr(X+4*t+d,2)}, {vr(AC+4*t+d,2)}")
                for d in range(2): p(f"v_cvt_pk_bf16_f32 v{Y+2*t+d}, v{X+4*t+2*d}, v{X+4*t+2*d+1}")
                if t == 4: p("s_mov_b32 exec_hi, 0")
                p(f"buffer_store_dwordx2 {vr(Y+2*t,2)}, v26, {SA}, {sT0} offen offset:{32*t} {o.get('outpol', '')}")
            p("s_mov_b64 exec, -1")

    def build(self):
        p = self.p
        self.prologue(); self.phase0(); self.conv(); self.layer(0); self.layer(1)
        if self.prof: self.stamp("out"); p.waitall(); self.stamp("end")
        if self.opt.get("echo"):
            a, b, f, wg = self.opt["echo"]; Le, Ll = p.lab("ec"), p.lab("el")
            idx = lambda n: [i for i, x in enumerate(self.names) if x == n.split("#")[0]][int((n + "#0").split("#")[1])]
            ra, rb_ = self.STAMP_REGS[idx(a)], self.STAMP_REGS[idx(b)]
            p(f"""s_cmp_lg_u32 s2, {wg}
            s_cbranch_scc1 {Le}
            s_cmp_lg_u32 {sW}, 0
            s_cbranch_scc1 {Le}
            s_sub_u32 {sT0}, s{rb_}, s{ra}""")
            if self.opt.get("skew"):
                op = self.opt["skew"]
                p(f"""v_lshlrev_b32 v4, 4, v1
                s_mov_b32 s88, {O_PROF}
                buffer_load_dwordx4 v[8:11], v4, {WS}, s88 offen sc1
                s_waitcnt vmcnt(0)
                v_{op}3_u32 v8, v8, v9, v10
                v_{op}_u32 v8, v8, v11
                v_readlane_b32 {sT0}, v8, 0""")
                for i in range(1, 64): p(f"v_readlane_b32 {sT1}, v8, {i}\ns_{op}_u32 {sT0}, {sT0}, {sT1}")
                p(f"s_sub_u32 {sT0}, s34, {sT0}" if op == "min" else f"s_sub_u32 {sT0}, {sT0}, s34")
            p(f"""
            s_mul_i32 {sT0}, {sT0}, {f}
            s_min_u32 {sT0}, {sT0}, 100000
            {Ll}:
            s_memrealtime s[86:87]
            s_waitcnt lgkmcnt(0)
            s_sub_u32 {sT1}, s86, s{self.STAMP_REGS[self.names.index("end")]}
            s_cmp_lt_u32 {sT1}, {sT0}
            s_cbranch_scc1 {Ll}
            {Le}:""")
        elif self.prof: self.stamp_flush()
        L = p.lab("ep")
        p(f"s_or_b32 {sT0}, s2, {sW}\ns_cmp_lg_u32 {sT0}, 0\ns_cbranch_scc1 {L}")
        p(f"s_mov_b32 {sT0}, {O_EPOCH}"); self.setflag(sT0, 26)
        p(f"{L}:\nL_end:\ns_endpgm")
        p.raw("\n".join(self.tail))
        return p.text()

HEADER = open("interleave_layers__ssm_conv_h3__linear_kernel_hedgehog__prompt.s.ref").read().split("; Override launch")[0]

def full(prof=False, opt=None):
    k = K(prof, opt); body = k.build()
    assert k.p.maxv <= 255 and k.p.maxa <= 255 and k.p.maxs <= 101
    txt = HEADER + f"; @launch grid=(256,1,1) block=(256,1,1) lds={LDS_BYTES}\n"
    txt += f""".amdgcn_target "amdgcn-amd-amdhsa--gfx950"
.text
.globl {NAME}
.p2align 8
.type {NAME},@function
{NAME}:
{body}.section .rodata,"a"
.p2align 6
.amdhsa_kernel {NAME}
  .amdhsa_next_free_vgpr 512
  .amdhsa_next_free_sgpr 102
  .amdhsa_accum_offset 256
  .amdhsa_group_segment_fixed_size 0
  .amdhsa_kernarg_size 104
  .amdhsa_user_sgpr_count 2
  .amdhsa_user_sgpr_kernarg_segment_ptr 1
  .amdhsa_system_sgpr_workgroup_id_x 1
.end_amdhsa_kernel
"""
    return txt, k
```

```python
import re

TRANS = ("v_exp_f32", "v_log_f32", "v_rcp_f32", "v_rsq_f32", "v_sqrt_f32", "v_sin_f32", "v_cos_f32")

def parse_reg(tok):
    tok = tok.strip()
    t = tok
    if t.startswith("-"): t = t[1:]
    if t.startswith("abs(") and t.endswith(")"): t = t[4:-1]
    if t.startswith("|") and t.endswith("|"): t = t[1:-1]
    m = re.fullmatch(r"([vas])(\d+)", t)
    if m: return [(m.group(1), int(m.group(2)))]
    m = re.fullmatch(r"([vas])\[(\d+):(\d+)\]", t)
    if m: return [(m.group(1), i) for i in range(int(m.group(2)), int(m.group(3)) + 1)]
    if t == "vcc": return [("x", "vcc")]
    if t in ("exec", "exec_lo", "exec_hi"): return [("x", "exec")]
    if t == "m0": return [("x", "m0")]
    return []

class Ins:
    __slots__ = ("text", "op", "dst", "src", "ops", "mods", "kind", "seq", "lds", "passes", "srcc")
    def __init__(self, text):
        self.text = text
        body = text.split(";")[0].strip()
        self.op = body.split()[0] if body else ""
        rest = body[len(self.op):].strip()
        parts = [p.strip() for p in re.split(r",(?![^\[]*\])", rest)] if rest else []
        mods = ""
        if parts:
            last = parts[-1].split(None, 1)
            parts[-1] = last[0]
            mods = last[1] if len(last) > 1 else ""
        self.ops, self.mods = parts, mods
        op = self.op
        R = [parse_reg(p) for p in parts]
        flat = lambda L: [r for x in L for r in x]
        self.lds = False; self.passes = 0; self.srcc = []
        if op.endswith(":"):
            self.kind, self.dst, self.src = "label", [], []
        elif op.startswith("v_mfma"):
            self.kind = "mfma"; self.dst = R[0]; self.src = flat(R[1:]); self.srcc = R[3]
            self.passes = 8 if "32x32x16" in op else 4 if "16x16x32" in op else None
            assert self.passes
        elif op.startswith("v_"):
            self.kind = "valu"
            if op.startswith("v_permlane") and "swap" in op:
                self.dst = flat(R[:2]); self.src = flat(R[:2])
            elif re.match(r"v_(add|sub|subrev|addc|subb)_co_", op):
                self.dst = flat(R[:2]); self.src = flat(R[2:])
            else:
                self.dst = R[0]; self.src = flat(R[1:])
                if op.startswith(("v_fmac", "v_dot2c", "v_pk_fmac", "v_writelane")) or "_dpp" in op:
                    self.src = self.src + R[0]
        elif op.startswith("ds_"):
            self.kind = "ds"
            if op.startswith("ds_read") or "_rtn_" in op: self.dst = R[0]; self.src = flat(R[1:])
            else: self.dst = []; self.src = flat(R)
        elif op.startswith(("buffer_", "global_")):
            self.kind = "vm"
            ml = mods.split()
            if "load" in op and "lds" in ml:
                self.lds = True; self.dst = []; self.src = flat(R) + [("x", "m0")]
            elif "load" in op: self.dst = R[0]; self.src = flat(R[1:])
            elif "atomic" in op: self.dst = R[0] if "sc0" in ml else []; self.src = flat(R)
            else: self.dst = []; self.src = flat(R)
        elif op.startswith(("s_load", "s_memtime", "s_memrealtime")):
            self.kind = "smem"; self.dst = R[0]; self.src = flat(R[1:])
        elif op.startswith(("s_cbranch", "s_branch")):
            self.kind = "branch"; self.dst = []; self.src = []
        elif op in ("s_waitcnt", "s_barrier", "s_nop", "s_endpgm", "s_sleep", "s_setprio"):
            self.kind = "ctl"; self.dst = []; self.src = []
        elif op.startswith("s_cmp"):
            self.kind = "salu"; self.dst = []; self.src = flat(R)
        elif op.startswith("s_"):
            self.kind = "salu"; self.dst = R[0]; self.src = flat(R[1:])
            if "saveexec" in op: self.dst = self.dst + [("x", "exec")]
        else:
            self.kind, self.dst, self.src = "dir", [], []

class Op:
    __slots__ = ("seq", "dst", "cnt", "text")
    def __init__(self, seq, dst, cnt, text): self.seq, self.dst, self.cnt, self.text = seq, set(dst), cnt, text

class State:
    def __init__(self):
        self.q = {"vm": [], "lg": []}
        self.haz = []
        self.dead = False
    def copy(self):
        s = State(); s.q = {k: [list(e) for e in v] for k, v in self.q.items()}
        s.haz = [list(e) for e in self.haz]; return s
    def merge(self, o):
        if self.dead:
            c = o.copy(); self.q, self.haz, self.dead = c.q, c.haz, False; return
        for k in self.q:
            a = {e[0].seq: e for e in self.q[k]}; b = {e[0].seq: e for e in o.q[k]}
            out = []
            for s in sorted(set(a) | set(b)):
                if s in a and s in b: out.append([a[s][0], a[s][1] and b[s][1]])
                else: out.append([(a.get(s) or b.get(s))[0], False])
            self.q[k] = out
        d = {}
        for ins, age in self.haz + o.haz:
            if id(ins) not in d or age < d[id(ins)][1]: d[id(ins)] = [ins, age]
        self.haz = list(d.values())

class Prog:
    def __init__(self):
        self.out = []; self.st = State(); self.seq = 0; self.snap = {}; self.nlab = 0
        self.nops = 0; self.seen_labels = set(); self.maxv = -1; self.maxa = -1; self.maxs = -1
    def lab(self, base="L"):
        self.nlab += 1; return f"{base}_{self.nlab}"
    def _need(self, p, c):
        ps, cs_src, cs_dst = set(p.dst), set(c.src), set(c.dst)
        n = 0
        if p.kind == "valu":
            vd = {r for r in ps if r[0] in "va"}; sd = {r for r in ps if r[0] in "sx"}
            if c.kind == "mfma" and vd & cs_src: n = max(n, 2)
            if c.kind == "valu":
                if vd & cs_src:
                    if "_dpp" in c.op or c.op.startswith("v_permlane"): n = max(n, 2)
                    if c.op.startswith(("v_readlane", "v_readfirstlane")): n = max(n, 1)
                    if p.op.split("_e")[0] in TRANS and c.op.split("_e")[0] not in TRANS: n = max(n, 1)
                    if p.op in TRANS and c.op not in TRANS: n = max(n, 1)
                if sd & cs_src: n = max(n, 4 if c.op.startswith(("v_readlane", "v_writelane")) else 2)
            if p.op.startswith("v_dot") and c.op != p.op and c.kind in ("valu", "vm", "ds", "mfma") and vd & (cs_src | cs_dst): n = max(n, 3)
            if p.op.startswith("v_dot") and c.op == p.op and vd & set(c.src[:len(c.src) - len(c.dst)]): n = max(n, 3)
            if c.kind in ("vm",) and sd & cs_src: n = max(n, 5)
            if c.kind in ("vm", "ds") and vd & cs_src and p.op in TRANS: n = max(n, 1)
        elif p.kind == "mfma":
            big = 12 if p.passes == 8 else 8
            if c.kind == "mfma":
                ab = set(c.src[:len(c.src) - len(c.srcc)])
                if ps & ab: n = max(n, big)
                cc = set(c.srcc)
                if ps & cc and not (c.srcc == p.dst and c.passes == p.passes): n = max(n, big - 2)
                if ps & cs_dst and not (c.dst == p.dst and c.srcc == p.dst): n = max(n, big - 2)
            elif c.kind in ("valu", "vm", "ds"):
                if ps & (cs_src | cs_dst): n = max(n, big)
                if c.kind == "valu" and set(p.srcc) & cs_dst: n = max(n, 7 if p.passes == 8 else 3)
        elif p.kind == "vm" and "store" in p.op and ("x4" in p.op or "x3" in p.op):
            data = set(parse_reg(p.ops[0]))
            if data & cs_dst: n = max(n, 2)
        elif p.kind == "salu":
            if ("x", "m0") in ps and c.kind == "vm" and c.lds: n = max(n, 1)
        return n
    def _age(self, k):
        self.st.haz = [[i, a + k] for i, a in self.st.haz if a + k < 13]
    def _check_pending(self, c):
        touched = set(c.src) | set(c.dst)
        for k in self.st.q:
            for o, _ in self.st.q[k]:
                if o.dst & touched:
                    raise RuntimeError(f"use of pending load result: '{c.text}' touches {sorted(o.dst & touched)} of '{o.text}'")
    def _emit(self, c):
        for r in c.src + c.dst:
            if r[0] == "v": self.maxv = max(self.maxv, r[1])
            if r[0] == "a": self.maxa = max(self.maxa, r[1])
            if r[0] == "s": self.maxs = max(self.maxs, r[1])
        if c.kind == "dir": self.out.append(c.text); return None
        if c.kind == "label":
            name = c.op[:-1]; self.seen_labels.add(name)
            for s in self.snap.pop(name, []): self.st.merge(s)
            assert not self.st.dead, f"unreachable label {name}"
            self.out.append(c.text); return None
        assert not self.st.dead, "code after unconditional branch: " + c.text
        need = 0
        for p, age in self.st.haz: need = max(need, self._need(p, c) - age)
        if need > 0:
            self.out.append(f"s_nop {need - 1}"); self.nops += need; self._age(need)
        self._check_pending(c)
        self.out.append(c.text)
        h = None
        if c.op == "s_waitcnt":
            for k, nm in (("vm", "vmcnt"), ("lg", "lgkmcnt")):
                m = re.search(nm + r"\((\d+)\)", c.text)
                if m: self._pop(k, int(m.group(1)))
        if c.kind in ("vm", "ds", "smem"):
            self.seq += 1
            k = "vm" if c.kind == "vm" else "lg"
            h = Op(self.seq, c.dst, k, c.text); h.dst = {r for r in h.dst}
            if c.kind == "smem": h.cnt = "smem"
            self.st.q[k].append([h, True])
        self._age(int(c.ops[0]) + 1 if c.op == "s_nop" else 1)
        if c.kind in ("valu", "mfma", "salu") or (c.kind == "vm" and "store" in c.op):
            self.st.haz.append([c, 0])
        if c.kind == "branch":
            tgt = c.ops[0]
            if tgt not in self.seen_labels: self.snap.setdefault(tgt, []).append(self.st.copy())
            if c.op == "s_branch": self.st.dead = True
        if c.op == "s_endpgm": self.st.dead = True
        return h
    def _pop(self, k, n):
        q = self.st.q[k]
        if k == "lg" and n > 0 and any(o.cnt == "smem" for o, _ in q): return
        keep = []; younger = 0
        for e in reversed(q):
            if younger < n: keep.append(e)
            if e[1]: younger += 1
        self.st.q[k] = list(reversed(keep))
    def __call__(self, text):
        h = None
        for ln in text.split("\n"):
            ln = ln.strip()
            if not ln or ln.startswith(";"): continue
            h = self._emit(Ins(ln))
        return h
    def wait(self, *hs):
        arg = []
        for k, nm, mx in (("vm", "vmcnt", 63), ("lg", "lgkmcnt", 15)):
            q = self.st.q[k]; best = None
            for h in hs:
                if h is None: continue
                idx = [i for i, e in enumerate(q) if e[0] is h]
                if not idx: continue
                n = sum(1 for e in q[idx[0] + 1:] if e[1])
                if k == "lg" and any(o.cnt == "smem" for o, _ in q): n = 0
                best = n if best is None else min(best, n)
            if best is not None: arg.append(f"{nm}({min(best, mx)})")
        if arg: self("s_waitcnt " + " ".join(arg))
    def waitall(self, vm=True, lg=True):
        arg = []
        if vm and self.st.q["vm"]: arg.append("vmcnt(0)")
        if lg and self.st.q["lg"]: arg.append("lgkmcnt(0)")
        if arg: self("s_waitcnt " + " ".join(arg))
    def raw(self, text):
        for ln in text.split("\n"):
            if ln.strip(): self.out.append(ln.strip())
    def assume_done(self, h):
        q = self.st.q["vm"]; idx = [i for i, e in enumerate(q) if e[0] is h]
        if idx: self.st.q["vm"] = q[idx[0] + 1:]
    def forget(self, pred):
        self.st.q["vm"] = [x for x in self.st.q["vm"] if x[1] or not pred(x[0])]
    def nvm(self): return len(self.st.q["vm"])
    def text(self):
        assert not self.snap, f"unresolved labels {list(self.snap)}"
        return "\n".join(self.out) + "\n"

COST = {"trans": 8, "valu4": 4, "valu8": 5}
def mix(p, main, fill, budget, flush=True, base=0):
    fill = list(fill); credit = 0
    for i, m in enumerate(main):
        m(); credit += budget
        while fill and (len(fill[0]) < 3 or fill[0][2] <= base + i) and (fill[0][0] <= credit or (credit >= budget and fill[0][0] > budget)):
            e = fill.pop(0); e[1](); credit -= e[0]
        credit = min(credit, budget)
    if not flush: return fill
    for e in fill: e[1]()
```

```python
import sys
from emit import Prog, mix, parse_reg

NAME = "interleave_layers__ssm_conv_h3__linear_kernel_hedgehog__prompt_kernel"
O_EPOCH = 0
O_FU, O_FW, O_FWB, O_F2X, O_FX0, O_F2C = 0x1000, 0x1400, 0x1800, 0x1C00, 0x2000, 0x3000
O_FUA = 0x3400
O_FR = 0x10000
O_FP = 0x8000
O_FK = [0xC000, 0xE000]
O_CS = 0x1C0000
O_ST = [0x40000, 0x60000, 0x80000]
O_P2 = [0xA0000, 0x120000]
O_PROF = 0x1A0000
O_WO = 0x200000
O_P1 = 0x2C0000
O_U = 0x680000
O_Y = O_U + 0x240000
O_WP = O_Y + 0x240000
O_Z, O_O = O_U, O_Y
WS_USED = O_WP + 3 * 0x240000
TEN = 2048 * 576 * 2
SUB = 36864
L_W = 2 * SUB
L_M = L_W + 82944
L_K, L_V, L_Q, L_PHI, L_WOT, L_WR = 0, 10240, 20480, 32768, 36864, 40960
CONV_STRIDE = 21248; CP = 4160; L_CU = 16640
LM_CS = L_M
LM_SY = L_M + 1024
LDS_BYTES = 163840
WS = "s[4:7]"
SA, SB, SC, SD, SE = "s[36:39]", "s[40:43]", "s[44:47]", "s[48:51]", "s[52:55]"
sX, sJ, sRB, sHG, sI4, sW, sN, sHI = "s56", "s57", "s58", "s59", "s60", "s61", "s62", "s63"
sT0, sT1, sT2, sT3, sT4, sT5 = "s66", "s67", "s68", "s69", "s70", "s71"
sCH, sLC, sHEAD, sPC = "s72", "s73", "s74", "s75"
M40 = "s[76:77]"
M48 = "s[78:79]"
MU1 = "s[80:81]"
sONE, sONEH, sONE2, sCONV = "s82", "s83", "s84", "s85"
sKB, sFH, sFOLD, sO, sWP, sZ, sW10, sNC, sFAST, sFR, sG4 = "s89", "s90", "s91", "s92", "s93", "s94", "s95", "s96", "s97", "s98", "s99"
PTR = dict(q=8, k=10, v=12, shift=14, ssm=16, D=18, wqkv=22, wphi=24, wo=26, out=28, dbg=30)
LOG2E = 0x3fb8aa3b; INV576 = 0x3ae38e39; EPS = 0x3727c5ac; EPS6 = 0x358637bd
SPIN = 200000
RES, vXT, vSTA, v16L, YT = 2, 12, 13, 14, 16
M32 = "v_mfma_f32_32x32x16_bf16"; M16 = "v_mfma_f32_16x16x32_bf16"

def vr(a, n): return f"v[{a}:{a+n-1}]" if n > 1 else f"v{a}"
def wreg(f): return f"a[{4*f}:{4*f+3}]" if f < 64 else vr(224 + 4 * (f - 64), 4)
def run(F):
    for e in F: e[1]()

class K:
    STAMP_REGS = [34, 35, 64, 65, 100, 101, 20, 21, 3] + list(range(10, 20)) + [22, 23, 24, 25, 30, 31, 32, 33, 88, 8, 9]
    def __init__(self, prof=False, opt=None):
        self.p = Prog(); self.prof = prof; self.nstamp = 0; self.names = []; self.opt = opt or {}; self.tail = []
        self.OZ, self.OO = (O_WP + 0x240000, O_WP + 2 * 0x240000) if self.opt.get("noalias") else (O_Z, O_O)
    def srd(self, dst, name, nbytes):
        b = int(dst[2:].split(":")[0]); s = PTR[name]
        self.p(f"s_mov_b32 s{b}, s{s}\ns_mov_b32 s{b+1}, s{s+1}\ns_mov_b32 s{b+2}, {nbytes}\ns_mov_b32 s{b+3}, 0x20000")
    def stamp(self, name=""):
        if not self.prof: return
        if self.opt.get("only") and self.nstamp and name not in self.opt["only"]: return
        p = self.p; i = self.nstamp; self.nstamp += 1; self.names.append(name)
        p(("s_memtime" if self.opt.get("cyc") else "s_memrealtime") + f" s[86:87]\ns_waitcnt lgkmcnt(0)\ns_mov_b32 s{self.STAMP_REGS[i]}, s86")
    def note(self, name, sreg):
        if self.prof and self.opt.get("notes"):
            i = self.nstamp; self.nstamp += 1; self.names.append("#" + name); self.p(f"s_mov_b32 s{self.STAMP_REGS[i]}, {sreg}")
    def stamp_flush(self):
        if not self.prof: return
        p = self.p
        for i in range(self.nstamp): p(f"v_writelane_b32 v2, s{self.STAMP_REGS[i]}, {i}")
        p(f"v_writelane_b32 v2, {sFAST}, 31")
        p(f"s_lshl_b32 s88, s2, 9\ns_lshl_b32 s86, {sW}, 7\ns_add_u32 s88, s88, s86\ns_add_u32 s88, s88, {O_PROF}\nv_lshlrev_b32 v3, 2, v1\ns_mov_b32 exec_hi, 0\nbuffer_store_dword v2, v3, {WS}, s88 offen\ns_mov_b64 exec, -1")
    def onwave(self, w):
        L = self.p.lab("w"); self.p(f"s_cmp_lg_u32 {sW}, {w}\ns_cbranch_scc1 {L}"); return L
    def barrier(self): self.p("s_barrier")
    def dual(self, text):
        p = self.p; S, E = p.lab("slow"), p.lab("back")
        p(f"s_cmp_eq_u32 {sFAST}, 0"); p.raw(f"s_cbranch_scc1 {S}")
        n = len(p.out); h = p(text); body = p.out[n:]; p.raw(f"{E}:")
        self.tail += [f"{S}:"] + [l + " sc1" if l.startswith("buffer_store") else l for l in body] + [f"s_branch {E}"]
        return h
    def setflag(self, soff, tmp, local=False, off=0):
        t = f"s_mov_b64 exec, 1\nv_mov_b32 v{tmp}, {sN}\nbuffer_store_dword v{tmp}, off, {WS}, {soff} offset:{off}"
        if local: self.dual(t + "\ns_mov_b64 exec, -1")
        else: self.p(t + " sc1\ns_mov_b64 exec, -1")
    def poll(self, vaddr, soff, tmp, wide=False, off=0, sleep=0):
        p = self.p; L = p.lab("poll"); E = p.lab("polle")
        p.waitall(lg=False)
        p(f"s_mov_b32 {sPC}, 0\n{L}:")
        if wide: p(f"buffer_load_dwordx4 {vr(tmp,4)}, v{vaddr}, {WS}, {soff} offen offset:{off} sc1")
        else: p(f"buffer_load_dword v{tmp}, v{vaddr}, {WS}, {soff} offen offset:{off} sc1")
        p(f"s_add_u32 {sPC}, {sPC}, 1\ns_waitcnt vmcnt(0)")
        if wide:
            for i in range(4): p(f"v_xor_b32 v{tmp+i}, {sN}, v{tmp+i}")
            p(f"v_or3_b32 v{tmp}, v{tmp}, v{tmp+1}, v{tmp+2}\nv_or_b32 v{tmp}, v{tmp}, v{tmp+3}\nv_cmp_ne_u32 vcc, 0, v{tmp}")
        else: p(f"v_cmp_ne_u32 vcc, {sN}, v{tmp}")
        if sleep:
            p(f"s_cmp_gt_u32 {sPC}, {SPIN}\ns_cbranch_scc1 {E}\ns_cbranch_vccz {E}\ns_sleep {sleep}"); p.raw(f"s_branch {L}"); p(f"{E}:")
        else: p(f"s_cmp_gt_u32 {sPC}, {SPIN}\ns_cbranch_scc1 {E}\ns_cbranch_vccnz {L}\n{E}:")
    def rowhop(self, kind, tmp, between=None, own=False, h=None):
        p = self.p; mode = self.opt.get("hop", "bar")
        if mode == "bar":
            p(f"s_lshl_b32 {sT5}, {sHG}, 2\ns_add_u32 {sT5}, {sT5}, {sFR}\nv_and_b32 v{tmp+2}, 7, v1\nv_lshlrev_b32 v{tmp+2}, 2, v{tmp+2}")
            p.wait(h) if h else p.waitall()
            p.waitall(vm=False); self.barrier()
            L = self.onwave(0); self.setflag(sT5, tmp, True, 128 * kind); p(f"{L}:")
        else:
            p(f"s_lshl_b32 {sT5}, {sHG}, 4\ns_lshl_b32 {sPC}, {sW}, 2\ns_add_u32 {sT5}, {sT5}, {sPC}\ns_add_u32 {sT5}, {sT5}, {sFR}")
            if own and mode == "wave": p(f"v_and_b32 v{tmp+2}, 7, v1\nv_lshl_add_u32 v{tmp+2}, v{tmp+2}, 4, {sPC}")
            else: p(f"v_and_b32 v{tmp+2}, 31, v1\nv_lshlrev_b32 v{tmp+2}, 2, v{tmp+2}")
            p.waitall(); self.setflag(sT5, tmp, True, 128 * kind)
        if between: between()
        if mode == "wave": self.poll(tmp + 2, sFR, tmp + 1, off=128 * kind); return
        L = self.onwave(0); self.poll(tmp + 2, sFR, tmp + 1, off=128 * kind); p(f"{L}:")
        self.barrier()
    def last_of(self, word, count, t):
        p = self.p; L = p.lab("nl")
        p(f"s_mov_b64 exec, 1\nv_mov_b32 v{t}, {LM_SY + 4*word}\nv_mov_b32 v{t+1}, 1")
        h = p(f"ds_add_rtn_u32 v{t+1}, v{t}, v{t+1}")
        p("s_mov_b64 exec, -1"); p.wait(h)
        p(f"v_readfirstlane_b32 {sT5}, v{t+1}\ns_cmp_lg_u32 {sT5}, {count - 1}\ns_cbranch_scc1 {L}")
        return L
    def clean_l2(self, tag):
        if tag not in self.opt.get("wb", ""): return
        p = self.p; L = p.lab("wb")
        p(f"s_lshl_b32 {sT5}, {sJ}, 2\ns_add_u32 {sT5}, {sT5}, {sW}\ns_cmp_lg_u32 {sT5}, 3\ns_cbranch_scc1 {L}\nbuffer_wbl2 sc1\n{L}:")
    def lds_signal(self, word, t, val=1):
        self.p(f"s_mov_b64 exec, 1\nv_mov_b32 v{t}, {LM_SY + 4*word}\nv_mov_b32 v{t+1}, {val}\nds_add_u32 v{t}, v{t+1}\ns_mov_b64 exec, -1")
    def lds_wait(self, word, val, t):
        p = self.p; L = p.lab("lw"); E = p.lab("lwe")
        p.waitall(vm=False)
        p(f"v_mov_b32 v{t}, {LM_SY + 4*word}\ns_mov_b32 {sPC}, 0\n{L}:\nds_read_b32 v{t+1}, v{t}\ns_add_u32 {sPC}, {sPC}, 1\ns_waitcnt lgkmcnt(0)")
        p(f"v_readfirstlane_b32 {sT5}, v{t+1}\ns_cmp_gt_u32 {sPC}, {SPIN*20}\ns_cbranch_scc1 {E}\ns_cmp_lt_u32 {sT5}, {val}\ns_cbranch_scc1 {L}\n{E}:")
    def onehot(self, dst, idx, val_lo, val_hi, t):
        p = self.p
        p(f"v_and_b32 v{t}, 1, v{idx}\nv_cmp_eq_u32 vcc, 1, v{t}\nv_mov_b32 v{t}, {val_lo}\nv_mov_b32 v{t+1}, {val_hi}\nv_cndmask_b32 v{t}, v{t}, v{t+1}, vcc\nv_ashrrev_i32 v{t+1}, 1, v{idx}")
        for jj in range(4): p(f"v_cmp_eq_u32 vcc, {jj}, v{t+1}\nv_cndmask_b32 v{dst+jj}, 0, v{t}, vcc")
    def unpack(self, dst, src, n):
        for d in range(n): self.p(f"v_lshlrev_b32 v{dst+2*d}, 16, v{src+d}\nv_and_b32 v{dst+2*d+1}, {sHI}, v{src+d}")
    def rowstats(self, X, T, which, local):
        p = self.p; S, Q = T, T + 2
        p("s_mov_b32 exec_lo, 0")
        for r in range(4): p(f"v_mov_b32 v{X+16+r}, 0")
        p("s_mov_b32 exec_lo, -1")
        p(f"v_pk_add_f32 {vr(S,2)}, {vr(X,2)}, {vr(X+2,2)}\nv_pk_mul_f32 {vr(Q,2)}, {vr(X,2)}, {vr(X,2)}")
        for i in range(2, 20, 2):
            if i > 2: p(f"v_pk_add_f32 {vr(S,2)}, {vr(S,2)}, {vr(X+i,2)}")
            p(f"v_pk_fma_f32 {vr(Q,2)}, {vr(X+i,2)}, {vr(X+i,2)}, {vr(Q,2)}")
        p(f"""v_add_f32 v{S}, v{S}, v{S+1}
        v_add_f32 v{Q}, v{Q}, v{Q+1}
        s_lshl_b32 {sT1}, {sRB}, 3
        s_add_u32 {sT1}, {sT1}, {sHG}
        v_permlane16_swap_b32 v{S}, v{Q}
        v_add_f32 v{S}, v{S}, v{Q}
        v_mov_b32 v{Q}, v{S}
        s_lshl_b32 {sT1}, {sT1}, 9
        s_add_u32 {sT1}, {sT1}, {O_ST[which]}
        v_permlane32_swap_b32 v{S}, v{Q}
        v_add_f32 v{S}, v{S}, v{Q}
        v_min_u32 v{S}, -2, v{S}""")
        p("s_mov_b32 exec_hi, 0")
        h = self.dual(f"buffer_store_dword v{S}, v{vSTA}, {WS}, {sT1} offen")
        p("s_mov_b32 exec_hi, -1")
        return h
    def tile_stats_load(self, which, d, t):
        p = self.p
        p(f"""v_and_b32 v{t}, 15, v1
        v_lshlrev_b32 v{t}, 3, v{t}
        v_lshrrev_b32 v{t+1}, 4, v1
        v_lshl_add_u32 v{t}, v{t+1}, 10, v{t}
        s_lshl_b32 {sT1}, {sRB}, 12
        s_lshl_b32 {sT2}, {sW}, 7
        s_add_u32 {sT1}, {sT1}, {sT2}
        s_add_u32 {sT1}, {sT1}, {O_ST[which]}""")
        return lambda: p(f"buffer_load_dwordx2 {vr(d,2)}, v{t}, {WS}, {sT1} offen sc1\nbuffer_load_dwordx2 {vr(d+2,2)}, v{t}, {WS}, {sT1} offen offset:512 sc1")
    def tile_stats_finish(self, d, R):
        self.p(f"""v_pk_add_f32 {vr(d,2)}, {vr(d,2)}, {vr(d+2,2)}
        s_mov_b32 {sT2}, {INV576}
        v_permlane16_swap_b32 v{d}, v{d+1}
        v_add_f32 v{d}, v{d}, v{d+1}
        v_mov_b32 v{d+1}, v{d}
        v_permlane32_swap_b32 v{d}, v{d+1}
        v_add_f32 v{d}, v{d}, v{d+1}
        v_mul_f32 v{d}, {INV576}, v{d}
        v_mov_b32 v{d+1}, v{d}
        v_permlane16_swap_b32 v{d}, v{d+1}
        v_fma_f32 v{d+1}, -v{d}, v{d}, v{d+1}
        v_max_f32 v{d+1}, 0, v{d+1}
        v_add_f32 v{d+1}, {EPS}, v{d+1}
        v_rsq_f32 v{R}, v{d+1}
        v_mul_f32 v{R+1}, -v{d}, v{R}""")
    def norm_tile(self, Tt, X, R):
        for i in range(0, 20, 2): self.p(f"v_pk_fma_f32 {vr(Tt+i,2)}, {vr(X+i,2)}, {vr(R,2)}, {vr(R,2)} op_sel:[0,0,1] op_sel_hi:[1,0,1]")
    def publish_z(self, L, X, Tt, Y, tmp, between=None, more=None):
        p = self.p
        p(f"s_mul_i32 {sT0}, {sHG}, 4608\ns_add_u32 {sT0}, {sT0}, {sZ}\ns_add_u32 {sT2}, {sT0}, 4096")
        for i in range(0, 20, 2): p(f"v_pk_fma_f32 {vr(X+i,2)}, {vr(Tt+i,2)}, {vr(Y+i,2)}, {vr(X+i,2)}")
        for d in range(10): p(f"v_cvt_pk_bf16_f32 v{RES+d}, v{X+2*d}, v{X+2*d+1}")
        self.dual(f"""buffer_store_dwordx4 {vr(RES,4)}, v{vXT}, {WS}, {sT0} offen
        buffer_store_dwordx4 {vr(RES+4,4)}, v{vXT}, {WS}, {sT0} offen offset:2048
        s_mov_b32 exec_hi, 0
        buffer_store_dwordx2 {vr(RES+8,2)}, v223, {WS}, {sT2} offen
        s_mov_b32 exec_hi, -1""")
        h = self.rowstats(X, tmp, 1, True)
        self.stamp("zst")
        if more: more()
        self.rowhop(3 * L, tmp, between, h=h)
        self.stamp("zseen")

    def prologue(self):
        p = self.p
        if self.opt.get("first"): self.stamp("first")
        p(f"""s_cmp_ge_u32 s2, 256
        s_cbranch_scc1 L_end
        s_load_dwordx16 s[8:23], s[0:1], 0
        s_load_dwordx8 s[24:31], s[0:1], 64
        s_load_dwordx2 s[32:33], s[0:1], 96
        v_and_b32 v1, 63, v0
        v_lshrrev_b32 v2, 6, v0
        s_and_b32 {sX}, s2, 7
        v_readfirstlane_b32 {sW}, v2
        s_lshr_b32 {sJ}, s2, 3
        s_and_b32 {sHG}, {sJ}, 7
        s_lshr_b32 {sI4}, {sJ}, 3
        s_lshl_b32 {sRB}, {sX}, 2
        s_add_u32 {sRB}, {sRB}, {sI4}""")
        for i in range(3):
            p(f"""v_add_u32 v5, {256*i}, v0
            v_mul_u32_u24 v6, 7282, v5
            v_lshrrev_b32 v6, 16, v6
            v_mul_u32_u24 v7, 9, v6
            v_sub_u32 v7, v5, v7
            v_mul_u32_u24 v6, 1152, v6
            v_lshl_add_u32 v{2+i}, v7, 4, v6""")
        p(f"""s_mul_i32 {sT0}, {sJ}, {64*1152}
        s_mul_i32 {sT1}, {sX}, 144
        s_add_u32 {sT0}, {sT0}, {sT1}
        s_sub_u32 {sT2}, {sT0}, {4*1152}
        v_add_u32 v6, {sT2}, v2
        v_add_u32 v7, {sT2}, v3
        v_add_u32 v8, {sT2}, v4
        s_lshl_b32 {sW10}, {sW}, 10
        s_waitcnt lgkmcnt(0)
        s_mov_b32 s4, s32
        s_mov_b32 s5, s33
        s_mov_b32 s6, {WS_USED}
        s_mov_b32 s7, 0x20000""")
        self.srd(SA, "k", TEN); self.srd(SB, "v", TEN)

    def phase0(self):
        p = self.p; o = self.opt
        self.stamp("start")
        if self.opt.get("skew"):
            p(f"s_lshl_b32 s88, s2, 2\ns_add_u32 s88, s88, {O_PROF}\nv_mov_b32 v9, s34\nbuffer_store_dword v9, off, {WS}, s88 sc1")
        for i in range(2):
            p(f"s_add_u32 m0, {sW10}, {L_K + 4096*i}\nbuffer_load_dwordx4 v{6+i}, {SA}, 0 offen lds")
            p(f"s_add_u32 m0, {sW10}, {L_V + 4096*i}\nbuffer_load_dwordx4 v{2+i}, {SB}, {sT0} offen lds")
        L1 = p.lab("t3")
        p(f"s_cmp_ge_u32 {sW}, 2\ns_cbranch_scc1 {L1}")
        p(f"s_add_u32 m0, {sW10}, {L_K + 8192}\nbuffer_load_dwordx4 v8, {SA}, 0 offen lds")
        p(f"s_cmp_ge_u32 {sW}, 1\ns_cbranch_scc1 {L1}")
        p(f"s_mov_b32 m0, {L_V + 8192}\nbuffer_load_dwordx4 v4, {SB}, {sT0} offen lds")
        p(f"{L1}:")
        self.srd(SD, "shift", 4608)
        p(f"""s_mov_b32 {sHI}, 0xffff0000
        s_mov_b32 s76, 0x0033ffff
        s_mov_b32 s77, 0x0033ffff
        s_mov_b32 s78, 0x00ffffff
        s_mov_b32 s79, 0x00ffffff
        s_mov_b32 {sONE}, 0x3f80
        s_mov_b32 {sONEH}, 0x3f800000
        s_mov_b32 {sONE2}, 0x3f803f80
        s_cmp_eq_u32 {sW}, 2
        s_cselect_b64 s[80:81], -1, 0
        v_and_b32 v40, 15, v1
        v_lshrrev_b32 v41, 4, v1
        v_and_b32 v42, 3, v1
        v_bfe_u32 v43, v1, 2, 2
        v_lshl_add_u32 v43, v41, 3, v43
        s_mul_i32 {sT3}, {sX}, 72
        s_lshl_b32 {sT4}, {sJ}, 6""")
        for s in range(3):
            p(f"""s_cmp_eq_u32 {sW}, 2
            s_cselect_b32 {sT1}, {32*s}, {sW10}
            s_cselect_b32 {sT2}, 48, {16*s}""")
            p(f"s_cbranch_scc0 Lu{s}\ns_lshl_b32 {sT1}, {sT1}, 5\nLu{s}:\ns_lshr_b32 {sT1}, {sT1}, 5")
            if s < 2:
                p(f"""v_add_u32 v44, {sT1}, v43
                v_lshl_add_u32 v45, v42, 2, {sT2}
                v_lshl_add_u32 v46, v41, 3, {sT1}
                v_add_u32 v47, {sT2}, v40""")
            else:
                p(f"""v_lshrrev_b32 v5, 1, v42
                v_lshlrev_b32 v5, 5, v5
                v_mov_b32 v6, {sT1}
                v_cndmask_b32 v5, v6, v5, s[80:81]
                v_add_u32 v44, v5, v43
                v_and_b32 v5, 1, v42
                v_lshl_add_u32 v5, v5, 2, 64
                v_lshl_add_u32 v45, v42, 2, 32
                v_cndmask_b32 v45, v45, v5, s[80:81]
                v_lshrrev_b32 v5, 3, v40
                v_lshlrev_b32 v5, 5, v5
                v_cndmask_b32 v5, v6, v5, s[80:81]
                v_lshl_add_u32 v46, v41, 3, v5
                v_and_b32 v5, 7, v40
                v_add_u32 v5, 64, v5
                v_add_u32 v47, 32, v40
                v_cndmask_b32 v47, v47, v5, s[80:81]""")
            p(f"""v_add_u32 v47, {sT3}, v47
            v_lshlrev_b32 v5, 3, v47""")
            hcrit = p(f"buffer_load_dwordx2 {vr(26+2*s,2)}, v5, {SD}, 0 offen")
            p(f"""v_mul_u32_u24 v44, 144, v44
            v_lshl_add_u32 v{32+s}, v45, 1, v44
            v_add_u32 v46, {sT4}, v46
            v_sub_u32 v46, 2040, v46
            v_lshlrev_b32 v46, 1, v46
            v_lshl_add_u32 v{36+s}, v47, 12, v46""")
        hcrit = p(f"buffer_load_dword v9, off, {WS}, 0 sc1")
        p(f"v_lshlrev_b32 v6, 2, v1\nv_add_u32 v6, {LM_SY}, v6\nv_mov_b32 v7, 0\nds_write_b32 v6, v7")
        p.waitall(vm=False)
        self.barrier()
        self.stamp("crit")
        self.srd(SA, "ssm", TEN); self.srd(SB, "D", 1152)
        p(f"""s_lshl_b32 {sT1}, {sW}, 5
        s_add_u32 {sT1}, {sT1}, {sJ}
        s_add_u32 {sCH}, {sT3}, {sT1}
        s_mul_i32 {sLC}, {sW}, {CONV_STRIDE}
        s_add_u32 {sLC}, {sLC}, {L_W}
        v_lshlrev_b32 v{v16L}, 4, v1
        s_cmp_ge_u32 {sT1}, 72
        s_cselect_b32 {sCONV}, 0, 1""")
        for i in range(4): p(f"v_mov_b32 v{216+i}, 0x40000000")
        p(f"s_cmp_eq_u32 {sCONV}, 0")
        LW3, LNC, LJ = p.lab("w3"), p.lab("nc"), p.lab("j")
        p(f"s_cbranch_scc1 {LNC}")
        self.fold_prep(); self.conv_addr()
        p.wait(hcrit); p(f"s_branch {LJ}\n{LNC}:\ns_cmp_eq_u32 {sW}, 3\ns_cbranch_scc1 {LW3}")
        self.fold_prep()
        p.wait(hcrit); p(f"s_branch {LJ}\n{LW3}:")
        self.srd(SC, "wqkv", 576 * 3456); self.srd(SD, "wphi", 32 * 648)
        p(f"s_lshl_b32 {sT1}, {sX}, 7\ns_add_u32 {sT1}, {sT1}, {O_FUA}\nbuffer_load_dword v221, off, {WS}, {sT1}")
        p(f"s_mul_i32 {sT1}, {sHG}, 2592\ns_mov_b32 m0, {L_PHI}")
        for i in range(3): p(f"buffer_load_dwordx4 v{v16L}, {SD}, {sT1} offen offset:{1024*i} lds")
        p(f"s_mul_i32 {sT1}, {sHG}, 144\ns_add_u32 {sT2}, {sT1}, 1152\ns_add_u32 {sT3}, {sT1}, 2304\nv_mov_b32 v47, 0x40000000")
        for i in range(4):
            p(f"""v_add_u32 v5, {64*i}, v1
            v_mul_u32_u24 v6, 7282, v5
            v_lshrrev_b32 v6, 16, v6
            v_mul_u32_u24 v7, 9, v6
            v_sub_u32 v5, v5, v7
            v_and_b32 v7, 7, v6
            v_lshrrev_b32 v6, 3, v6
            v_lshl_add_u32 v6, v6, 5, {sRB}
            v_cmp_gt_u32 vcc, 72, v6
            v_mul_u32_u24 v8, 57, v6
            s_mov_b64 s[86:87], vcc
            v_lshrrev_b32 v8, 9, v8
            v_mul_u32_u24 v8, 9, v8
            v_sub_u32 v6, v6, v8
            v_cmp_eq_u32 vcc, 8, v6
            v_lshlrev_b32 v8, 3, v8
            v_lshrrev_b32 v40, 2, v6
            v_and_b32 v41, 3, v6
            v_lshlrev_b32 v41, 2, v41
            v_lshl_add_u32 v40, v40, 5, v41
            v_lshrrev_b32 v41, 2, v7
            v_lshl_add_u32 v40, v41, 4, v40
            v_and_b32 v41, 3, v7
            v_add_u32 v40, v40, v41
            v_add_u32 v41, 64, v7
            v_cndmask_b32 v40, v40, v41, vcc
            v_add_u32 v40, v40, v8
            v_mul_u32_u24 v40, 3456, v40
            v_lshl_add_u32 v40, v5, 4, v40
            v_cndmask_b32 v40, v47, v40, s[86:87]
            s_mov_b32 m0, {L_WR + 1024*i}
            buffer_load_dwordx4 v40, {SC}, {sT1} offen lds
            s_mov_b32 m0, {L_WR + 4096 + 1024*i}
            buffer_load_dwordx4 v40, {SC}, {sT2} offen lds
            s_mov_b32 m0, {L_WR + 8192 + 1024*i}
            v_mad_u32_u24 v41, v6, 9, v7
            v_mad_u32_u24 v42, v7, 9, 8
            v_cndmask_b32 v41, v41, v42, vcc
            v_add_u32 v41, v41, v8
            v_mul_u32_u24 v41, 1152, v41
            v_lshl_add_u32 v41, v5, 4, v41
            v_cndmask_b32 v{216+i}, v47, v41, s[86:87]""")
            hf = p(f"buffer_load_dwordx4 v40, {SC}, {sT3} offen lds")
        self.fold_prep()
        p.wait(hcrit); p(f"{LJ}:")
        p("v_add_u32 v9, 1, v9"); self.stamp("landed"); self.barrier()
        p(f"v_readfirstlane_b32 {sN}, v9\ns_getreg_b32 {sT4}, hwreg(HW_REG_XCC_ID, 0, 4)\ns_lshl_b32 {sT1}, {sN}, 4\ns_or_b32 {sT4}, {sT4}, {sT1}")
        self.stamp("bar1")
        LU3, LUE = p.lab("u3"), p.lab("ue")
        p(f"s_cmp_eq_u32 {sW}, 3\ns_cbranch_scc1 {LU3}")
        hs = []
        for s in range(3):
            b = 48 + 10 * s
            h = [p(f"ds_read_b64_tr_b16 {vr(b+2*i,2)}, v{32+s} offset:{L_K + 576*i}") for i in range(3)]
            h += [p(f"ds_read_b64_tr_b16 {vr(b+6+2*i,2)}, v{32+s} offset:{L_V + 576*i}") for i in range(2)]
            hs.append(h)
        lo = lambda d, s: p(f"v_lshlrev_b32 v{d}, 16, v{s}")
        hi = lambda d, s: p(f"v_and_b32 v{d}, {sHI}, v{s}")
        p(f"s_mov_b32 {sT0}, {O_U}")
        for s in range(3):
            b = 48 + 10 * s; P, W, A, V, O = 80, 94, 98, 106, 114 + 4 * s
            lo(W, 26+2*s); hi(W+1, 26+2*s); lo(W+2, 27+2*s); hi(W+3, 27+2*s)
            p.wait(*hs[s])
            hi(P+0, b); hi(P+1, b+2); lo(P+2, b+1); lo(P+3, b+3); hi(P+4, b+1); hi(P+5, b+3)
            lo(P+6, b+2); lo(P+7, b+4); hi(P+8, b+2); hi(P+9, b+4); lo(P+10, b+3); lo(P+11, b+5); hi(P+12, b+3); hi(P+13, b+5)
            Pp = lambda x: vr(P + 2 * (x + 3), 2)
            for q in range(4): p(f"v_pk_mul_f32 {vr(A+2*q,2)}, {Pp(q)}, {vr(W,2)} op_sel_hi:[1,0]")
            for q in range(4): p(f"v_pk_fma_f32 {vr(A+2*q,2)}, {Pp(q-1)}, {vr(W,2)}, {vr(A+2*q,2)} op_sel:[0,1,0]")
            lo(V+0, b+6); lo(V+1, b+8); hi(V+2, b+6); hi(V+3, b+8); lo(V+4, b+7); lo(V+5, b+9); hi(V+6, b+7); hi(V+7, b+9)
            for q in range(4): p(f"v_pk_fma_f32 {vr(A+2*q,2)}, {Pp(q-2)}, {vr(W+2,2)}, {vr(A+2*q,2)} op_sel_hi:[1,0,1]")
            for q in range(4): p(f"v_pk_fma_f32 {vr(A+2*q,2)}, {Pp(q-3)}, {vr(W+2,2)}, {vr(A+2*q,2)} op_sel:[0,1,0]")
            for q in range(4): p(f"v_pk_mul_f32 {vr(A+2*q,2)}, {vr(A+2*q,2)}, {vr(V+2*q,2)}")
            p(f"""v_cvt_pk_bf16_f32 v{O}, v{A+7}, v{A+5}
            v_cvt_pk_bf16_f32 v{O+1}, v{A+3}, v{A+1}
            v_cvt_pk_bf16_f32 v{O+2}, v{A+6}, v{A+4}
            v_cvt_pk_bf16_f32 v{O+3}, v{A+2}, v{A}
            buffer_store_dwordx4 {vr(O,4)}, v{36+s}, {WS}, {sT0} offen sc1""")
        self.stamp("ust")
        Lh, Lh2 = p.lab("h"), p.lab("h2")
        p(f"s_cmp_eq_u32 {sCONV}, 0\ns_cbranch_scc1 {Lh}")
        p(f"s_lshl_b32 {sT1}, {sCH}, 12\ns_lshl_b32 {sT2}, {sCH}, 1\ns_add_u32 m0, {sLC}, 32")
        for i in range(4): p(f"buffer_load_dwordx4 v{v16L}, {SA}, {sT1} offen offset:{1024*i} lds")
        self.hh = p(f"buffer_load_ushort v45, off, {SB}, {sT2}")
        p(f"s_waitcnt vmcnt(5)\ns_branch {Lh2}\n{Lh}:\ns_waitcnt vmcnt(0)\n{Lh2}:")
        L5 = self.last_of(5, 3, 5)
        p(f"""s_lshl_b32 {sT0}, {sX}, 7
        s_lshl_b32 {sT1}, {sJ}, 2
        s_add_u32 {sT0}, {sT0}, {sT1}
        s_add_u32 {sT0}, {sT0}, {O_FU}
        s_mov_b64 exec, 1
        v_mov_b32 v5, {sT4}
        s_add_u32 {sT1}, {sT0}, {O_FUA - O_FU}
        buffer_store_dword v5, off, {WS}, {sT1}
        buffer_store_dword v5, off, {WS}, {sT0} sc1
        s_mov_b64 exec, -1
        {L5}:""")
        self.stamp("uflag")
        self.lds_wait(6, 1, 26)
        p(f"s_branch {LUE}\n{LU3}:")
        p.wait(hf); self.lds_signal(6, 26); p(f"{LUE}:")
        self.fold()
        self.stamp("p0end")
        self.tables()

    def fold_prep(self):
        p = self.p
        p(f"""v_and_b32 v5, 15, v1
        s_lshl_b32 {sT1}, {sW}, 4
        v_add_u32 v7, {sT1}, v5
        v_lshrrev_b32 v5, 4, v1
        v_lshlrev_b32 v{vSTA}, 3, v7
        v_lshl_add_u32 v{vSTA}, v5, 2, v{vSTA}
        v_and_b32 v7, 31, v7
        v_lshlrev_b32 v7, 4, v7
        s_lshr_b32 {sT1}, {sW}, 1
        s_mul_i32 {sT1}, {sT1}, {SUB}
        v_add_u32 v7, {sT1}, v7
        v_lshl_add_u32 v{vXT}, v5, 9, v7
        s_lshl_b32 {sHEAD}, {sHG}, 2
        s_add_u32 {sHEAD}, {sHEAD}, {sW}
        s_mul_i32 {sWP}, {sHEAD}, 73728
        s_add_u32 {sWP}, {sWP}, {O_WP}
        s_mul_i32 {sZ}, {sRB}, 73728
        s_add_u32 {sZ}, {sZ}, {self.OZ}
        s_lshl_b32 {sFR}, {sRB}, 10
        s_add_u32 {sFR}, {sFR}, {O_FR}
        s_lshl_b32 {sG4}, {sX}, 3
        s_add_u32 {sG4}, {sG4}, {sHG}
        s_lshl_b32 {sG4}, {sG4}, 2
        v_mov_b32 v160, 0x40000000
        v_mov_b32 v214, v160
        v_mov_b32 v212, 0
        v_mov_b32 v213, 0
        v_cndmask_b32 v15, v160, v{v16L}, {M48}
        v_bfe_u32 v5, v1, 3, 2
        v_and_b32 v6, 3, v1
        v_lshl_add_u32 v190, v5, 2, v6
        v_bfe_u32 v191, v1, 2, 1
        v_mul_u32_u24 v5, 9, v191
        v_add_u32 v5, v5, v190
        s_mul_i32 {sT0}, {sW}, 648
        s_add_u32 {sT0}, {sT0}, {L_PHI}
        v_lshl_add_u32 v161, v5, 1, {sT0}
        v_lshrrev_b32 v7, 5, v1
        v_mul_u32_u24 v8, 288, v7
        v_add_u32 v162, v161, v8
        v_bfe_u32 v8, v1, 4, 1
        v_lshl_add_u32 v8, v8, 1, v191
        v_lshl_add_u32 v6, v8, 3, v6
        v_bfe_u32 v8, v1, 3, 1
        v_lshl_add_u32 v6, v8, 2, v6
        v_mul_u32_u24 v6, 144, v6
        s_mul_i32 {sT0}, {sW}, 36
        s_add_u32 {sT0}, {sT0}, {L_WR}
        v_add_u32 v163, {sT0}, v6
        v_lshl_add_u32 v164, v7, 4, v163
        v_lshl_add_u32 v8, v7, 5, {sRB}
        v_and_b32 v6, 31, v1
        v_lshlrev_b32 v6, 4, v6
        v_lshrrev_b32 v167, 1, v8
        v_lshl_add_u32 v6, v167, 10, v6
        v_and_b32 v8, 1, v8
        v_lshl_add_u32 v167, v8, 9, v6
        v_lshlrev_b32 v7, 3, v7
        v_sub_u32 v5, v5, v7
        v_mov_b32 v7, -64
        v_add_u32 v8, -9, v5
        v_cmp_gt_u32 vcc, 9, v190
        v_cndmask_b32 v8, v8, v7, vcc""")
        self.onehot(174, 8, sONE, sONEH, 168)
        p(f"""v_add_u32 v8, -2, v5
        v_add_u32 v6, -9, v190
        v_cmp_lt_u32 vcc, 1, v6
        v_cndmask_b32 v8, v8, v7, vcc""")
        self.onehot(178, 8, sONE, sONEH, 168)
        p(f"""v_add_u32 v8, -16, v8
        v_cmp_gt_u32 vcc, 32, v1
        v_cndmask_b32 v8, v7, v8, vcc""")
        self.onehot(182, 8, sONE, sONEH, 168)
        p("v_mov_b32 v188, v182\nv_mov_b32 v182, 0\nv_mov_b32 v187, 0\nv_mov_b32 v189, 0\nv_mov_b32 v207, 0\nv_add_u32 v165, 4096, v164\nv_add_u32 v166, 8192, v164")

    def fold(self):
        p = self.p
        hph = [p(f"ds_read_u16 v{32+e}, v162 offset:{36*e}") for e in range(8)] + [p(f"ds_read_u16 v{40+e}, v161 offset:{576+36*e}") for e in range(2)]
        for m in range(3):
            p(f"ds_read2_b32 {vr(192+4*m,2)}, v{164+m} offset0:0 offset1:1\nds_read2_b32 {vr(194+4*m,2)}, v{164+m} offset0:2 offset1:3")
        for m in range(3): hW = p(f"ds_read_b32 v{204+m}, v163 offset:{4096*m + 32}")
        p.wait(*hph)
        p("v_cmp_gt_u32 vcc, 9, v190")
        for jj in range(4): p(f"v_lshl_or_b32 v{170+jj}, v{33+2*jj}, 16, v{32+2*jj}")
        p("v_lshl_or_b32 v183, v41, 16, v40")
        for jj in range(4): p(f"v_cndmask_b32 v{170+jj}, 0, v{170+jj}, vcc")
        p("v_cndmask_b32 v183, 0, v183, vcc\ns_mov_b32 exec_lo, 0\nv_mov_b32 v183, 0\ns_mov_b32 exec_lo, -1\nv_mov_b32 v186, v183")
        p.wait(hW)
        p(f"""{M32} v[128:143], v[196:199], v[170:173], 0
        {M32} v[144:159], v[192:195], v[170:173], 0
        {M32} v[128:143], v[200:203], v[174:177], v[128:143]
        {M32} v[144:159], v[200:203], v[178:181], v[144:159]
        {M32} v[128:143], v[204:207], v[182:185], v[128:143]
        {M32} v[144:159], v[204:207], v[186:189], v[144:159]""")
        p(f"""s_lshl_b32 {sT1}, {sHEAD}, 5
        s_add_u32 {sT1}, {sT1}, {sRB}
        s_lshl_b32 {sT1}, {sT1}, 8
        s_add_u32 {sT1}, {sT1}, {O_CS}
        s_add_u32 {sT2}, {sWP}, 32768
        s_add_u32 {sT0}, {sWP}, 36864
        s_add_u32 {sT3}, {sWP}, {36864 + 32768}
        v_mov_b32 v64, 0
        v_mov_b32 v65, 0
        v_lshlrev_b32 v26, 2, v1""")
        for d in range(8): p(f"v_cvt_pk_bf16_f32 v{48+d}, v{128+2*d}, v{129+2*d}")
        for d in range(8): p(f"v_cvt_pk_bf16_f32 v{56+d}, v{144+2*d}, v{145+2*d}")
        Lw = p.lab("n3")
        p(f"""buffer_store_dwordx4 v[48:51], v167, {WS}, {sWP} offen sc1
        buffer_store_dwordx4 v[56:59], v167, {WS}, {sT0} offen sc1
        s_cmp_ge_u32 {sRB}, 8
        s_cbranch_scc1 {Lw}
        s_mov_b32 exec_hi, 0
        buffer_store_dwordx4 v[52:55], v167, {WS}, {sT2} offen sc1
        buffer_store_dwordx4 v[60:63], v167, {WS}, {sT3} offen sc1
        s_mov_b32 exec_hi, -1
        {Lw}:""")
        for d in range(8):
            if d == 4: p("s_mov_b32 exec_hi, 0")
            p(f"v_dot2c_f32_bf16 v64, {sONE2}, v{48+d}\nv_dot2c_f32_bf16 v65, {sONE2}, v{56+d}")
        p("s_mov_b32 exec_hi, -1")
        p(f"v_permlane32_swap_b32 v64, v65\nv_add_f32 v64, v64, v65\nbuffer_store_dword v64, v26, {WS}, {sT1} offen sc1")

    def marks_p(self):
        p = self.p; o = self.opt
        p(f"""v_mov_b32 v72, -1
        v_mov_b32 v73, -1
        v_mov_b32 v74, -1
        v_mov_b32 v75, -1
        s_lshl_b32 {sT3}, {sHG}, 2
        s_add_u32 {sT3}, {sT3}, {sI4}
        s_lshl_b32 {sT3}, {sT3}, 3
        s_add_u32 {sT3}, {sT3}, {sX}
        s_lshl_b32 {sT3}, {sT3}, 11
        s_add_u32 {sT3}, {sT3}, {O_P2[0]}
        s_add_u32 {sT2}, {sT3}, {O_P2[1] - O_P2[0]}""")
        for so in (sT3, sT2):
            for i in range(2): hp = p(f"buffer_store_dwordx4 v[72:75], v{160 if 'P' in o.get('abl', '') else v16L}, {WS}, {so} offen offset:{1024*i} sc1")

    def marks_y(self):
        p = self.p
        p("v_mov_b32 v72, -1\nv_mov_b32 v73, -1\nv_mov_b32 v74, -1\nv_mov_b32 v75, -1")
        p(f"s_mul_i32 {sT1}, {sRB}, 73728\ns_mul_i32 {sT2}, {sHG}, 9216\ns_add_u32 {sT1}, {sT1}, {sT2}\ns_add_u32 {sT1}, {sT1}, {O_Y}")
        for i in range(9):
            p(f"buffer_store_dwordx4 v[72:75], v{v16L}, {WS}, {sT1} offen offset:{1024*(i%4)} sc1")
            if i % 4 == 3: p(f"s_add_u32 {sT1}, {sT1}, 4096")

    def upoll(self):
        p = self.p; o = self.opt
        Lr, Le = p.lab("pu"), p.lab("pue")
        p(f"""v_and_b32 v27, 31, v1
        v_lshlrev_b32 v27, 2, v27
        s_lshl_b32 {sT0}, {sX}, 7
        s_add_u32 {sT1}, {sT0}, {O_FU}
        s_add_u32 {sT0}, {sT0}, {O_FUA}
        s_mov_b32 {sPC}, 0
        {Lr}:
        s_cmp_gt_u32 {sPC}, {o.get("ua_tries", 24)}
        s_cselect_b32 {sT0}, {sT1}, {sT0}
        buffer_load_dword v28, v27, {WS}, {sT0} offen sc1
        s_add_u32 {sPC}, {sPC}, 1
        s_waitcnt vmcnt(0)
        v_xor_b32 v28, {sT4}, v28
        v_cmp_lt_u32 vcc, 15, v28
        s_cmp_gt_u32 {sPC}, {SPIN}
        s_cbranch_scc1 {Le}
        s_cbranch_vccnz {Lr}
        {Le}:
        v_cmp_ne_u32 vcc, 0, v28
        s_nop 4
        s_cmp_eq_u64 vcc, 0
        s_cselect_b32 {sT0}, {1 if o.get('slow') else 2}, 1""")
        self.lds_signal(1, 27, sT0)

    def conv_addr(self):
        p = self.p
        p("v_and_b32 v216, 15, v1\nv_lshrrev_b32 v217, 4, v1")
        p(f"""v_add_u32 v218, 1, v216
        v_and_b32 v219, 3, v218
        v_mul_u32_u24 v219, {CP}, v219
        v_lshrrev_b32 v218, 2, v218
        v_lshl_add_u32 v219, v218, 3, v219
        v_lshl_add_u32 v219, v217, 4, v219
        v_add_u32 v212, {sLC}, v219
        v_lshlrev_b32 v218, 5, v216
        v_lshlrev_b32 v219, 4, v217
        v_sub_u32 v219, v219, v218
        s_add_u32 {sT5}, {sLC}, {L_CU + 4064 - 3584}
        v_add_u32 v213, {sT5}, v219
        v_and_b32 v218, 1, v217
        v_lshlrev_b32 v218, 2, v218
        v_lshrrev_b32 v219, 2, v216
        v_add_u32 v218, v218, v219
        v_mul_u32_u24 v218, 73728, v218
        v_and_b32 v219, 3, v216
        v_lshl_add_u32 v218, v219, 5, v218
        v_lshrrev_b32 v219, 1, v217
        v_lshl_add_u32 v214, v219, 4, v218""")

    def tables(self):
        p = self.p
        L7 = p.lab("noconv2")
        p(f"s_cmp_eq_u32 {sCONV}, 0\ns_cbranch_scc1 {L7}\nv_add_u32 v27, {sLC}, v{v16L}")
        p.raw("s_waitcnt vmcnt(3)"); p.assume_done(self.hh)
        h = []
        for i in range(4):
            p(f"ds_read_b128 {vr(224+6*i,4)}, v27 offset:{32 + 1024*i}")
            h.append(p(f"ds_read_b64 {vr(228+6*i,2)}, v27 offset:{48 + 1024*i}"))
        p(f"""v_mov_b32 v32, 0
        v_mov_b32 v33, 0
        v_mov_b32 v34, 0
        v_mov_b32 v35, 0
        v_lshlrev_b32 v26, 3, v1
        v_add_u32 v26, {sLC}, v26
        ds_write_b64 v26, v[32:33] offset:{L_CU + 4096}""")
        for i in range(4):
            D = 224 + 6 * i; F = 64 + 12 * (i & 1)
            p.wait(h[i])
            if i == 0: p("v_readfirstlane_b32 s86, v224\nv_readfirstlane_b32 s87, v225")
            for q in range(4): p(f"v_alignbit_b32 v{F+q}, v{D+q+1}, v{D+q}, 16")
            p(f"ds_write_b128 v27, {vr(F,4)} offset:{CP + 32 + 1024*i}")
            for q in range(4): p(f"v_mov_b32 v{F+4+q}, v{D+q+1}")
            p(f"ds_write_b128 v27, {vr(F+4,4)} offset:{2*CP + 32 + 1024*i}")
            for q in range(3): p(f"v_mov_b32 v{F+8+q}, v{F+q+1}")
            p(f"v_alignbit_b32 v{F+11}, v{D+5}, v{D+4}, 16")
            p(f"ds_write_b128 v27, {vr(F+8,4)} offset:{3*CP + 32 + 1024*i}")
        p(f"""v_lshlrev_b32 v28, 4, v1
        v_sub_u32 v28, 48, v28
        v_lshlrev_b64 v[36:37], v28, s[86:87]
        v_lshlrev_b64 v[36:37], 16, v[36:37]
        v_mul_u32_u24 v26, {CP}, v1
        v_add_u32 v26, {sLC}, v26
        s_mov_b64 exec, 15
        ds_write_b128 v26, v[32:35]
        ds_write_b128 v26, v[34:37] offset:16
        s_mov_b64 exec, -1
        v_and_b32 v26, 15, v1
        v_lshrrev_b32 v27, 4, v1
        v_lshlrev_b32 v28, 3, v27
        v_add_u32 v28, v28, v26
        v_sub_u32 v29, 15, v28
        v_lshlrev_b32 v44, 16, v45""")
        self.onehot(208, 29, "v45", "v44", 30)
        p(f"{L7}:")

    def wp_loads(self):
        p = self.p; out = []
        for tile in range(2):
            for ks in range(36):
                def g(f=2 * ks + tile, ks=ks, tile=tile):
                    if ks % 2 == 0: p(f"s_add_u32 {sKB}, {sWP}, {tile*36864 + ks*1024}")
                    self.hW[f] = p(f"buffer_load_dwordx4 {wreg(f)}, v{15 if tile else v16L}, {WS}, {sKB} offen offset:{(ks%2)*1024} sc1")
                out.append(g)
        return out
    def small_loads(self):
        p = self.p
        p(f"s_lshl_b32 {sT0}, {sHEAD}, 13\ns_add_u32 {sT0}, {sT0}, {O_CS}\ns_add_u32 {sT1}, {sT0}, 4096")
        for i in range(8): self.hcs = p(f"buffer_load_dwordx4 {vr(144+4*i,4)}, v{v16L}, {WS}, {sT0 if i < 4 else sT1} offen offset:{(i%4)*1024} sc1")

    def conv(self):
        p = self.p; o = self.opt
        self.hW = {}
        NI = o.get("w_idle", 36)
        NP = self.NP = o.get("w_pre", 46)
        n1 = o.get("w_in_conv", 0)
        LE, LJ = p.lab("noconv3"), p.lab("convend")
        def wflag():
            p(f"""s_lshl_b32 {sT0}, {sHG}, 7
            s_lshl_b32 {sT1}, {sRB}, 2
            s_add_u32 {sT1}, {sT1}, {sT0}
            s_add_u32 {sT1}, {sT1}, {O_FW}""")
            L = self.last_of(0, 4, 26)
            p(f"v_lshlrev_b32 v26, 10, v1\nv_mov_b32 v27, {sN}\ns_mov_b64 exec, 3\nbuffer_store_dword v27, v26, {WS}, {sT1} offen sc1\ns_mov_b64 exec, -1\n{L}:")
        p(f"s_cmp_eq_u32 {sCONV}, 0\ns_cbranch_scc1 {LE}")
        if o.get("wfirst", 1): p.waitall(); wflag()
        self.lds_wait(1, 1, 26)
        self.stamp("useen")
        p(f"s_lshl_b32 {sT1}, {sCH}, 12\ns_add_u32 {sT1}, {sT1}, {O_U}\ns_add_u32 m0, {sLC}, {L_CU}")
        hu = [p(f"buffer_load_dwordx4 v{v16L}, {WS}, {sT1} offen offset:{1024*i} sc1 lds") for i in range(4)]
        if not o.get("wfirst", 1): p("s_waitcnt vmcnt(4)"); wflag()
        ACC, AB, BB = 32, 64, 128
        hA = {}; hB = {}
        def rdA(m, t):
            b = AB + 32 * (m & 1) + 4 * t
            p(f"ds_read_b64 {vr(b,2)}, v212 offset:{512*t + 64*m}")
            hA[m, t] = p(f"ds_read_b64 {vr(b+2,2)}, v212 offset:{512*t + 64*m + 8}")
        def rdB(m, be):
            hB[m, be] = p(f"ds_read_b128 {vr(BB + 32*(m&1) + 4*be, 4)}, v213 offset:{512*(7-be) + 64*m}")
        for t in range(8): rdA(0, t)
        p.wait(*hu); self.lds_signal(3, 26)
        self.stamp("udma")
        for be in range(8): rdB(0, be)
        wl = self.wp_loads()
        bg = list(wl[:n1])
        m0 = o.get("w_step", 5)
        for m in range(8):
            main = []
            if m == 0:
                for b in range(8):
                    def g(b=b):
                        p.wait(hB[0, b]); p(f"{M16} {vr(ACC+4*b,4)}, v[208:211], {vr(BB+4*b,4)}, 0")
                    main.append(g)
            for (t, be) in sorted([(t, be) for t in range(8) for be in range(8 - t)], key=lambda x: (max(x), x[0] + x[1])):
                def g(t=t, be=be):
                    p.wait(hA[m, t], hB[m, be])
                    d = vr(ACC + 4 * (t + be), 4)
                    p(f"{M16} {d}, {vr(AB+32*(m&1)+4*t,4)}, {vr(BB+32*(m&1)+4*be,4)}, {d}")
                main.append(g)
            fill = []
            if m < 7:
                for t in range(8):
                    fill.append((8, lambda t=t: rdB(m + 1, t))); fill.append((8, lambda t=t: rdA(m + 1, t)))
            if m >= m0 and n1:
                if m == m0: self.lds_wait(2, 1, 26)
                k = min(-(-len(bg) // (8 - m)), len(bg))
                extra, bg = bg[:k], bg[k:]
                for i, g in enumerate(extra):
                    j = 2 + i * 34 // k
                    main[j] = (lambda a=main[j], b=g: (a(), b()))
            mix(p, main, fill, 8)
            if m in (1, 3, 5): self.stamp(f"m{m}")
        if not n1: self.lds_wait(2, 1, 26)
        p(f"s_lshl_b32 {sT1}, {sCH}, 7\ns_add_u32 {sT1}, {sT1}, {O_Y}")
        for bp in range(4):
            for d in range(4): p(f"v_cvt_pk_bf16_f32 v{64+4*bp+d}, v{ACC+8*bp+2*d}, v{ACC+8*bp+2*d+1}")
        for bp in range(4):
            O = 64 + 4 * bp
            p(f"v_permlane16_swap_b32 v{O}, v{O+2}\nv_permlane16_swap_b32 v{O+1}, v{O+3}")
            hy = p(f"buffer_store_dwordx4 {vr(O,4)}, v214, {WS}, {sT1} offen sc1")
            p(f"s_add_u32 {sT1}, {sT1}, {8*73728}")
        self.stamp("convE")
        NA = max(o.get("w_a", 36), n1)
        def f2poll():
            p(f"""v_and_b32 v26, 31, v1
            s_lshl_b32 {sT0}, {sX}, 7
            s_add_u32 {sT0}, {sT0}, {O_F2X}
            v_lshl_add_u32 v26, v26, 2, {sT0}
            v_and_b32 v27, 7, v1
            s_lshl_b32 {sT1}, {sRB}, 7
            s_add_u32 {sT1}, {sT1}, {O_FX0}
            v_lshl_add_u32 v27, v27, 2, {sT1}
            v_cmp_gt_u32 vcc, 32, v1
            v_cndmask_b32 v26, v27, v26, vcc""")
            self.poll(26, 0, 27); self.lds_signal(7, 26)
        if o.get("f2", 3) == 0:
            L0 = self.onwave(0); f2poll(); p(f"{L0}:")
        for g in wl[n1:NA]: g()
        p(f"s_branch {LJ}")
        seq_idle = p.seq
        p(f"{LE}:")
        L = self.onwave(3)
        if o.get("pois", "fold") == "fold": self.marks_y(); p.waitall(); wflag()
        self.lds_wait(5, 3, 26)
        if o.get("pois", "fold") == "u": self.marks_y(); p.waitall(); wflag()
        if o.get("udelay", 0): p(f"s_sleep {o.get('udelay', 0)}")
        p.waitall(); self.upoll()
        p(f"s_sub_u32 {sFAST}, {sT0}, 1")
        p(f"""s_lshl_b32 {sT0}, {sHG}, 7
        s_add_u32 {sT0}, {sT0}, {O_FW}
        s_lshl_b32 {sT1}, {sX}, 7
        s_add_u32 {sT1}, {sT1}, {O_FWB}
        s_cmp_lt_u32 {sJ}, 8
        s_cselect_b32 {sNC}, 3, 2
        v_and_b32 v30, 31, v1
        v_lshl_add_u32 v31, v30, 2, {sT1}
        v_lshl_add_u32 v30, v30, 2, {sT0}
        v_cmp_gt_u32 vcc, 32, v1
        v_cndmask_b32 v30, v31, v30, vcc""")
        self.lds_wait(3, sNC, 26)
        self.srd(SA, "q", TEN)
        p(f"s_mul_i32 {sT1}, {sRB}, {64*1152}\ns_mul_i32 {sT2}, {sHG}, 144\ns_add_u32 {sT1}, {sT1}, {sT2}")
        for i in range(9):
            p(f"""v_add_u32 v26, {64*i}, v1
            v_mul_u32_u24 v27, 7282, v26
            v_lshrrev_b32 v27, 16, v27
            v_mul_u32_u24 v27, {1152 - 144}, v27
            v_lshl_add_u32 v26, v26, 4, v27
            s_mov_b32 m0, {L_Q + 1024*i}
            buffer_load_dwordx4 v26, {SA}, {sT1} offen lds""")
        p(f"""v_lshlrev_b32 v26, 7, v1
        s_lshl_b32 {sT3}, {sRB}, 3
        s_add_u32 {sT3}, {sT3}, {sHG}
        s_lshl_b32 {sT3}, {sT3}, 9
        s_add_u32 {sT3}, {sT3}, {O_ST[1]}
        v_and_b32 v27, 0x180, v26
        v_bfe_u32 v28, v1, 2, 1
        v_mul_u32_u24 v28, {O_ST[2] - O_ST[1]}, v28
        v_add3_u32 v27, v27, v28, {sT3}
        v_and_b32 v28, 0x380, v26
        v_add_u32 v28, {sFR}, v28
        v_cmp_gt_u32 vcc, 8, v1
        v_cndmask_b32 v27, v28, v27, vcc
        s_lshl_b32 {sT2}, {sG4}, 5
        s_add_u32 {sT2}, {sT2}, {O_FP}
        v_mov_b32 v28, {sT2}
        v_cmp_gt_u32 vcc, 13, v1
        v_cndmask_b32 v27, v28, v27, vcc
        s_lshl_b32 {sT2}, {sX}, 7
        s_add_u32 {sT2}, {sT2}, {O_F2X}
        v_writelane_b32 v27, {sT2}, 14
        s_lshl_b32 {sT2}, {sRB}, 7
        s_add_u32 {sT2}, {sT2}, {O_FX0}
        v_writelane_b32 v27, {sT2}, 15
        s_mov_b64 exec, 0xffff
        buffer_load_dword v220, v27, {WS}, 0 offen
        s_mov_b64 exec, -1""")
        self.srd(SE, "wo", 576 * 1152)
        p(f"s_mul_i32 {sT1}, {sHG}, 144")
        for i in range(4): p(f"s_mov_b32 m0, {L_WOT + 1024*i}\nbuffer_load_dwordx4 v{216+i}, {SE}, {sT1} offen lds")
        self.marks_p()
        self.poll(30, 0, 27, sleep=o.get('wsleep', 0)); self.lds_signal(2, 76); self.stamp("wseen")
        win = o.get("w_win", 40); k0 = o.get("k0", 0); k1 = o.get("k1", 2)
        for g in wl[:k0]: g()
        p(f"v_mul_u32_u24 v26, 144, v1\nv_mov_b32 v28, 0\nv_mov_b32 v29, 0")
        hq = [p(f"ds_read_b128 {vr(32+4*i,4)}, v26 offset:{L_Q + 16*i}") for i in range(9)]
        for d in range(36):
            p.wait(hq[d // 4]); p(f"v_dot2c_f32_bf16 v28, {sONE2}, v{32+d}\nv_dot2c_f32_bf16 v29, v{32+d}, v{32+d}")
        p(f"""s_lshl_b32 {sT1}, {sRB}, 3
        s_add_u32 {sT1}, {sT1}, {sHG}
        s_lshl_b32 {sT1}, {sT1}, 9
        s_add_u32 {sT1}, {sT1}, {O_ST[0]}
        v_lshlrev_b32 v26, 3, v1
        buffer_store_dwordx2 v[28:29], v26, {WS}, {sT1} offen sc1""")
        p(f"s_add_u32 {sT1}, {sT1}, {O_ST[2] - O_ST[0]}")
        self.dual(f"buffer_store_dwordx2 v[72:73], v26, {WS}, {sT1} offen")
        p(f"""v_bfe_u32 v76, v1, 2, 2
        v_mul_u32_u24 v76, 144, v76
        v_and_b32 v77, 1, v1
        v_lshl_add_u32 v78, v77, 3, v76
        v_and_b32 v77, 3, v1
        v_lshl_add_u32 v76, v77, 3, v76
        v_lshrrev_b32 v77, 4, v1
        v_lshl_add_u32 v76, v77, 5, v76
        v_and_b32 v79, 15, v1
        v_lshlrev_b32 v79, 4, v79
        v_lshl_add_u32 v79, v77, 10, v79
        s_lshr_b32 {sT1}, {sRB}, 2
        s_mul_i32 {sT1}, {sT1}, 4608
        s_mul_i32 {sT2}, {sHG}, 82944
        s_add_u32 {sT1}, {sT1}, {sT2}
        s_add_u32 {sT1}, {sT1}, {O_WO}
        s_and_b32 {sT2}, {sRB}, 3
        s_lshl_b32 {sT2}, {sT2}, 7
        s_add_u32 {sT1}, {sT1}, {sT2}
        s_add_u32 {sT3}, {sT1}, 4096
        s_add_u32 {sT1}, {sT1}, {sT2}""")
        hw = []
        for c in range(3):
            for k, (a, of) in enumerate(((76, 0), (76, 576), (78, 128), (78, 704))):
                h = p(f"ds_read_b64_tr_b16 {vr(80+8*c+2*k,2)}, v{a} offset:{L_WOT + 1152*c + of}")
            hw.append(h)
        Lc = p.lab("c3")
        for c in (2, 0, 1):
            p.wait(hw[2])
            if c == 2: p(f"s_cmp_ge_u32 {sRB}, 8\ns_cbranch_scc1 {Lc}")
            hs = p(f"""s_add_u32 {sT2}, {sT1}, {8*4608*c}
            buffer_store_dwordx4 {vr(80+8*c,4)}, v79, {WS}, {sT2} offen sc1
            s_add_u32 {sT2}, {sT3}, {8*4608*c}
            s_mov_b64 exec, 0xff
            buffer_store_dwordx4 {vr(84+8*c,4)}, v79, {WS}, {sT2} offen sc1""")
            p("s_mov_b64 exec, -1")
            if c == 2: p(f"{Lc}:")
        for g in wl[k0:k1]: g()
        p.wait(hs)
        p(f"""s_lshl_b32 {sT1}, {sRB}, 7
        s_lshl_b32 {sT2}, {sHG}, 2
        s_add_u32 {sT1}, {sT1}, {sT2}
        s_add_u32 {sT1}, {sT1}, {O_FX0}
        s_lshl_b32 {sT2}, {sX}, 7
        s_lshl_b32 {sT3}, {sJ}, 2
        s_add_u32 {sT2}, {sT2}, {sT3}
        s_add_u32 {sT2}, {sT2}, {O_F2X}
        s_lshl_b32 {sT3}, {sHG}, 7
        s_lshl_b32 {sT4}, {sRB}, 2
        s_add_u32 {sT3}, {sT3}, {sT4}
        s_add_u32 {sT3}, {sT3}, {O_F2C}""")
        self.setflag(sT1, 26, True); self.setflag(sT2, 26, True); self.setflag(sT3, 26)
        k2 = min(o.get("k2", 36), NI)
        for g in wl[k1:k2]: g()
        if o.get("f2", 3) == 3: f2poll()
        for g in wl[k2:NI]: g()
        L2 = p.lab("w2"); p(f"s_branch {L2}\n{L}:")
        p.waitall(); wflag()
        self.lds_wait(2, 1, 26)
        for i, g in enumerate(wl[:NI]):
            g()
            if i >= win: p(f"s_waitcnt vmcnt({win})")
        p(f"{L2}:")
        p(f"{LJ}:")
        X, Tt, Y, R = 76, 96, 116, 136
        self.stamp("wl0")
        self.lds_wait(1, 1, 26)
        p(f"""s_sub_u32 {sFAST}, {sT5}, 1
        v_and_b32 v26, 15, v1
        s_lshl_b32 {sT0}, {sW}, 4
        v_add_u32 v27, {sT0}, v26
        v_mul_u32_u24 v27, 144, v27
        v_lshrrev_b32 v28, 4, v1
        v_lshl_add_u32 v27, v28, 3, v27""")
        for t in range(5): hq = p(f"ds_read_b64 {vr(RES+2*t,2)}, v27 offset:{L_Q + 32*t}")
        p(f"""v_and_b32 v27, 1, v26
        v_lshlrev_b32 v27, 7, v27
        v_lshrrev_b32 v28, 3, v26
        v_lshl_add_u32 v27, v28, 6, v27
        v_bfe_u32 v28, v26, 1, 2
        v_lshl_add_u32 v26, v28, 4, v27
        s_lshl_b32 {sT0}, {sW}, 8
        s_add_u32 {sT0}, {sT0}, {LM_CS}
        v_add_u32 v26, {sT0}, v26
        v_lshrrev_b32 v27, 1, v1
        v_lshlrev_b32 v27, 7, v27
        v_and_b32 v28, 1, v1
        v_lshl_add_u32 v27, v28, 4, v27
        v_mov_b32 v28, 0x40000000
        v_cmp_gt_u32 vcc, 16, v1
        v_cndmask_b32 v29, v28, v27, vcc
        s_mul_i32 {sT4}, {sW}, 3072
        v_lshl_add_u32 v30, v1, 3, {sT4}
        s_mul_i32 {sT3}, {sRB}, 73728
        s_mul_i32 {sT1}, {sHG}, 9216
        s_add_u32 {sT3}, {sT3}, {sT1}
        s_lshl_b32 {sT1}, {sW}, 5
        s_add_u32 {sT3}, {sT3}, {sT1}
        s_add_u32 {sT3}, {sT3}, {O_Y}""")
        p(f"v_lshrrev_b32 v28, 4, v1\nv_mul_u32_u24 v28, 504, v28\nv_sub_u32 v223, v{vXT}, v28")
        ld = self.tile_stats_load(0, 64, 68)
        p(f"s_mov_b32 {sNC}, {sT1}\ns_add_u32 {sFOLD}, {sT3}, 4096\ns_add_u32 {sFH}, {sT3}, 8192")
        self.lds_wait(7, 1, 70)
        self.stamp("w7")
        p(f"s_mov_b32 {sT1}, {sNC}"); ld()
        ydma = "\n".join(f"s_add_u32 m0, {sT4}, {1024*i}\ns_nop 0\nbuffer_load_dwordx4 v{27 if i < 2 else 29}, {WS}, {(sT3, sFOLD, sFH)[i]} offen sc1 lds" for i in range(3))
        hy = p(ydma)
        late = {r for f in range(72) for r in parse_reg(wreg(f))}
        p.forget(lambda h: h.seq > seq_idle and h.dst & late)
        pf = [0]
        def rest(a, b):
            S, E = p.lab("pf"), p.lab("pfe")
            p(f"s_cmp_eq_u32 {sCONV}, 0"); p.raw(f"s_cbranch_scc1 {S}")
            for g in wl[a:b]: g()
            p.raw(f"{E}:"); self.tail.append(f"{S}:")
            for i in range(a, b):
                self.tail += [f"s_add_u32 {sKB}, {sWP}, {36864 + 1024 * pf[0]}", f"buffer_load_dwordx4 v[176:179], v{15 if o.get('pfb') else 160}, {WS}, {sKB} offen sc1"]; pf[0] += 1
            self.tail.append(f"s_branch {E}")
        if NA < NI: rest(NA, NI)
        self.small_loads()
        for g in wl[NI:NP]: g()
        p.wait(hy)
        self.stamp("wland")
        Lr, Lo, Lk = p.lab("py"), p.lab("po"), p.lab("pk")
        p(f"s_mov_b32 {sPC}, 0"); p.raw(f"{Lr}:")
        hy = [p(f"ds_read_b64_tr_b16 {vr(YT+2*t,2)}, v30 offset:{512*t}") for t in range(5)]
        for t in range(5):
            p.wait(hy[t]); self.unpack(Y + 4 * t, YT + 2 * t, 2)
            if t == 0: p(f"v_max3_u32 v28, v{Y}, v{Y+1}, v{Y+2}\nv_max_u32 v28, v28, v{Y+3}")
            else: p(f"v_max3_u32 v28, v28, v{Y+4*t}, v{Y+4*t+1}\nv_max3_u32 v28, v28, v{Y+4*t+2}, v{Y+4*t+3}")
        p(f"v_cmp_eq_u32 vcc, {sHI}, v28"); p.raw(f"s_cbranch_vccnz {Lo}\n{Lk}:")
        self.tail += [f"{Lo}:", f"s_add_u32 {sPC}, {sPC}, 1", f"s_cmp_gt_u32 {sPC}, {SPIN // 10}", f"s_cbranch_scc1 {Lk}", f"s_sleep {o.get('ysleep', 2)}"]
        self.tail += ydma.split("\n") + ["s_waitcnt vmcnt(0)", f"s_branch {Lr}"]
        p.wait(hq)
        self.tile_stats_finish(64, R); self.unpack(X, RES, 10); self.norm_tile(Tt, X, R)
        self.stamp("yland"); self.note("yre", sPC)
        def cs_part():
            p.wait(self.hcs)
            for i in range(1, 8):
                for h in (0, 2): p(f"v_pk_add_f32 {vr(144+h,2)}, {vr(144+h,2)}, {vr(144+4*i+h,2)}")
            for sw in ("16", "32"):
                for i in range(4): p(f"v_mov_b32 v{148+i}, v{144+i}")
                for i in range(4): p(f"v_permlane{sw}_swap_b32 v{144+i}, v{148+i}")
                for h in (0, 2): p(f"v_pk_add_f32 {vr(144+h,2)}, {vr(144+h,2)}, {vr(148+h,2)}")
            p("s_mov_b64 exec, 0xffff\nds_write_b128 v26, v[144:147]\ns_mov_b64 exec, -1")
        self.publish_z(0, X, Tt, Y, 140, cs_part)

    def wo_dma(self):
        p = self.p; out = []
        out.append(lambda: p(f"s_mul_i32 {sNC}, {sHG}, 82944\ns_add_u32 {sNC}, {sNC}, {O_WO}\ns_add_u32 {sNC}, {sNC}, {sW10}"))
        for i in range(21):
            def g(i=i):
                L = None
                if i == 20: L = p.lab("wo"); p(f"s_cmp_ge_u32 {sW}, 1\ns_cbranch_scc1 {L}")
                p(f"s_add_u32 m0, {sW10}, {L_W + 4096*i}\ns_add_u32 {sO}, {sNC}, {4096*i}\nbuffer_load_dwordx4 v{v16L}, {WS}, {sO} offen sc1 lds")
                if L: p(f"{L}:")
            out.append(g)
        return out

    def softmax(self, t, rl, E, tmp, out, pk):
        p = self.p; F = []
        a = lambda c, s: F.append((c, lambda: p(s)))
        mx, mn, c1, c2 = tmp, tmp + 1, tmp + 2, tmp + 3
        a(4, f"v_max3_f32 v{mx}, v{t}, v{t+1}, v{t+2}"); a(4, f"v_max3_f32 v{mn}, -v{t}, -v{t+1}, -v{t+2}")
        for i in (3, 5, 7):
            a(4, f"v_max3_f32 v{mx}, v{mx}, v{t+i}, v{t+i+1}"); a(4, f"v_max3_f32 v{mn}, v{mn}, -v{t+i}, -v{t+i+1}")
        a(12, f"v_permlane32_swap_b32 v{mx}, v{mn}")
        a(4, f"v_max_f32 v{mx}, v{mx}, v{mn}")
        a(4, f"v_mul_f32 v{c1}, -v{mx}, v{rl}"); a(4, f"v_mul_f32 v{c2}, -v{mx}, v{rl}")
        a(12, f"v_permlane32_swap_b32 v{c1}, v{c2}")
        P, N = E, E + 10
        assert rl % 2 == 0 and c1 % 2 == 0
        if pk:
            for i in range(0, 8, 2):
                a(5, f"v_pk_fma_f32 {vr(P+i,2)}, {vr(t+i,2)}, {vr(rl,2)}, {vr(c1,2)} op_sel_hi:[1,0,0]")
                a(5, f"v_pk_fma_f32 {vr(N+i,2)}, {vr(t+i,2)}, {vr(rl,2)}, {vr(c1,2)} op_sel:[0,0,1] op_sel_hi:[1,0,1] neg_lo:[1,0,0] neg_hi:[1,0,0]")
        for i in range(8 if pk else 0, 9):
            a(4, f"v_fma_f32 v{P+i}, v{t+i}, v{rl}, v{c1}"); a(4, f"v_fma_f32 v{N+i}, -v{t+i}, v{rl}, v{c2}")
        for i in range(9):
            a(8, f"v_exp_f32 v{P+i}, v{P+i}"); a(8, f"v_exp_f32 v{N+i}, v{N+i}")
        s1, s2 = tmp, tmp + 2
        if pk:
            a(5, f"v_pk_add_f32 {vr(s1,2)}, {vr(P,2)}, {vr(P+2,2)}"); a(5, f"v_pk_add_f32 {vr(s2,2)}, {vr(N,2)}, {vr(N+2,2)}")
            for i in (4, 6):
                a(5, f"v_pk_add_f32 {vr(s1,2)}, {vr(s1,2)}, {vr(P+i,2)}"); a(5, f"v_pk_add_f32 {vr(s2,2)}, {vr(s2,2)}, {vr(N+i,2)}")
        else:
            for h in range(2):
                a(4, f"v_add_f32 v{s1+h}, v{P+h}, v{P+2+h}"); a(4, f"v_add_f32 v{s2+h}, v{N+h}, v{N+2+h}")
            for i in (4, 6):
                for h in range(2):
                    a(4, f"v_add_f32 v{s1+h}, v{s1+h}, v{P+i+h}"); a(4, f"v_add_f32 v{s2+h}, v{s2+h}, v{N+i+h}")
        a(4, f"v_add_f32 v{s1}, v{s1}, v{s1+1}"); a(4, f"v_add_f32 v{s2}, v{s2}, v{s2+1}")
        a(4, f"v_add_f32 v{s1}, v{s1}, v{P+8}"); a(4, f"v_add_f32 v{s2}, v{s2}, v{N+8}")
        a(12, f"v_permlane32_swap_b32 v{s1}, v{s2}")
        a(4, f"v_add_f32 v{s1}, v{s1}, v{s2}")
        a(8, f"v_rcp_f32 v{s1}, v{s1}"); a(8, f"v_mov_b32 v{s1+1}, v{s1}")
        a(12, f"v_permlane32_swap_b32 v{s1}, v{s1+1}")
        if pk:
            for i in range(0, 8, 2):
                a(5, f"v_pk_mul_f32 {vr(P+i,2)}, {vr(P+i,2)}, {vr(s1,2)} op_sel_hi:[1,0]")
                a(5, f"v_pk_mul_f32 {vr(N+i,2)}, {vr(N+i,2)}, {vr(s1,2)} op_sel:[0,1]")
        for i in range(8 if pk else 0, 9):
            a(4, f"v_mul_f32 v{P+i}, v{P+i}, v{s1}"); a(4, f"v_mul_f32 v{N+i}, v{N+i}, v{s1+1}")
        for i in range(4): a(4, f"v_cvt_pk_bf16_f32 v{out[i]}, v{P+2*i}, v{P+2*i+1}")
        for i in range(4): a(4, f"v_cvt_pk_bf16_f32 v{out[4+i]}, v{N+2*i}, v{N+2*i+1}")
        a(4, f"v_cvt_pk_bf16_f32 v{out[8]}, v{P+8}, v{N+8}")
        return F

    def layer(self, L):
        p = self.p; o = self.opt
        A_, B_ = [32, 48], [64, 80]; FB, CS, PK, E, TMP = 96, 128, [156, 172], 188, 208
        RL = [212, 214]; RS = [216, 217]; vB = 218
        WA = [219, 220, 221, 222]; RA = [26, 27, 28]; PA = 120
        hZ = {}; hst = []
        def zdma(n):
            T, i = divmod(n, 9)
            p(f"s_add_u32 m0, {sW10}, {SUB*T + 4096*i}\ns_add_u32 {sO}, {sT3}, {SUB*T + 4096*i}")
            hZ[n] = p(f"buffer_load_dwordx4 v{v16L}, {WS}, {sO} offen sc1 lds")
        p(f"s_add_u32 {sT3}, {sZ}, {sW10}")
        NU = o.get("NU", 6)
        for n in range(NU): zdma(n)
        p(f"""v_lshrrev_b32 v29, 5, v1
        v_lshlrev_b32 v29, 7, v29
        s_lshl_b32 {sT0}, {sW}, 8
        s_add_u32 {sT0}, {sT0}, {LM_CS}
        v_add_u32 v29, {sT0}, v29
        v_add_u32 v{vB}, {SUB}, v{v16L}
        v_lshlrev_b32 v31, 3, v1
        s_lshl_b32 {sT4}, {sRB}, 12
        s_add_u32 {sT4}, {sT4}, {O_ST[1]}""")
        for i in range(7): hcs = p(f"ds_read_b128 {vr(CS+4*i,4)}, v29 offset:{16*i}")
        bud = o.get("budget", 16)
        stl = [(lambda i=i: hst.append(p(f"buffer_load_dwordx2 {vr(PK[1]+2*i,2)}, v31, {WS}, {sT4} offen offset:{512*i} sc1"))) for i in range(8)]
        zl = [(lambda n=n: zdma(n)) for n in range(NU, 18)]
        mem = {}; n = 1
        for g in zl[:13 - NU]: mem[n] = g; n += 2
        for g in stl: mem[n] = g; n += o.get("st_step", 2)
        for g in zl[13 - NU:]: mem[n] = g; n += 2
        nmem = n
        def lines(text, c=4): return [(c, (lambda s=s: p(s))) for s in text.strip().split("\n")]
        S = PK[1]
        stats = [(0, lambda: p.wait(*hst), o.get('st_at', 38))]
        for i in range(1, 8): stats += lines(f"v_add_f32 v{S}, v{S}, v{S+2*i}\nv_add_f32 v{S+1}, v{S+1}, v{S+2*i+1}")
        stats += lines(f"""v_mul_f32 v{RL[0]+1}, {INV576 | 0x80000000}, v{S}
        v_mul_f32 v{S+1}, {INV576}, v{S+1}
        v_fma_f32 v{S+1}, -v{RL[0]+1}, v{RL[0]+1}, v{S+1}
        v_mov_b32 v{RL[1]+1}, v{RL[0]+1}
        v_max_f32 v{S+1}, 0, v{S+1}
        v_add_f32 v{S+1}, {EPS}, v{S+1}
        v_rsq_f32 v{RS[0]}, v{S+1}
        v_permlane32_swap_b32 v{RL[0]+1}, v{RL[1]+1}
        v_mov_b32 v{RS[1]}, v{RS[0]}
        s_nop 1
        v_permlane32_swap_b32 v{RS[0]}, v{RS[1]}
        v_mul_f32 v{RL[0]}, {LOG2E}, v{RS[0]}
        v_mul_f32 v{RL[1]}, {LOG2E}, v{RS[1]}""")
        addr = lines(f"""v_and_b32 v{E}, 31, v1
        v_bfe_u32 v{E+1}, v1, 1, 1
        v_lshlrev_b32 v{E+1}, 2, v{E+1}
        v_and_b32 v{E+2}, 1, v1
        v_lshl_add_u32 v{E+1}, v{E+2}, 1, v{E+1}
        v_bfe_u32 v{E+2}, v1, 2, 1
        v_add_u32 v{E+1}, v{E+1}, v{E+2}
        v_lshlrev_b32 v{E+1}, 4, v{E+1}
        v_lshl_add_u32 v{E}, v{E}, 7, v{E+1}
        s_lshl_b32 {sT0}, {sW}, 13
        v_add_u32 v{E}, {sT0}, v{E}
        v_lshrrev_b32 v{E+1}, 5, v1
        v_lshlrev_b32 v{E+2}, 5, v{E+1}
        v_xor_b32 v{WA[0]}, v{E}, v{E+2}
        v_xor_b32 v{WA[1]}, 16, v{WA[0]}
        v_lshlrev_b32 v{E+2}, 4, v{E+1}
        v_or_b32 v{E+2}, 64, v{E+2}
        v_xor_b32 v{WA[2]}, v{E}, v{E+2}
        v_xor_b32 v{WA[3]}, 32, v{WA[2]}
        v_bfe_u32 v{E}, v1, 2, 2
        v_lshl_add_u32 v{E}, v{E+1}, 2, v{E}
        v_bfe_u32 v{E+2}, v{E}, 1, 1
        v_lshlrev_b32 v{E+2}, 2, v{E+2}
        v_and_b32 v{E+3}, 1, v{E}
        v_lshl_add_u32 v{E+2}, v{E+3}, 1, v{E+2}
        v_add_u32 v{E+2}, v{E+2}, v{E+1}
        v_lshlrev_b32 v{E+2}, 4, v{E+2}
        v_lshl_add_u32 v{E}, v{E}, 7, v{E+2}
        v_add_u32 v{E}, {sT0}, v{E}
        v_and_b32 v{E+1}, 1, v1
        v_bfe_u32 v{E+2}, v1, 1, 1
        v_bfe_u32 v{E+3}, v1, 4, 1
        v_lshlrev_b32 v{RA[0]}, 5, v{E+1}
        v_lshl_add_u32 v{RA[0]}, v{E+3}, 4, v{RA[0]}
        v_xor_b32 v{RA[0]}, v{E}, v{RA[0]}
        v_lshl_add_u32 v{RA[0]}, v{E+2}, 3, v{RA[0]}
        v_lshlrev_b32 v{RA[1]}, 4, v{E+1}
        v_or_b32 v{RA[1]}, 64, v{RA[1]}
        v_xor_b32 v{RA[1]}, v{E}, v{RA[1]}
        v_xor_b32 v{RA[2]}, 32, v{RA[1]}
        v_lshl_add_u32 v{RA[2]}, v{E+2}, 3, v{RA[2]}
        v_add_u32 v{E+4}, 8, v{RA[1]}
        v_cmp_eq_u32 vcc, 1, v{E+3}
        v_lshrrev_b32 v29, 5, v1
        v_cndmask_b32 v{RA[2]}, v{RA[2]}, v{E+4}, vcc
        v_mul_u32_u24 v29, 20, v29
        v_and_b32 v30, 31, v1
        v_add_u32 v29, v29, v30
        v_cmp_lt_u32 vcc, 19, v30
        v_add_u32 v30, -2, v29
        s_nop 0
        v_cndmask_b32 v30, v29, v30, vcc
        v_lshlrev_b32 v29, 4, v30
        v_lshlrev_b32 v30, 2, v30""")
        def kpart(T):
            A, k, nm, r = A_[T], PK[T], RL[T] + 1, RS[T]
            F = [(0, lambda: p.wait(hcs))]
            F += lines("\n".join(f"v_fmac_f32 v{A+i}, v{CS+i}, v{nm}" for i in range(16)))
            F += self.softmax(A, RL[T], E, TMP, [k + i for i in range(9)], False)
            F += lines("\n".join(f"v_mul_f32 v{A+i}, v{A+i}, v{r}" for i in range(9, 16)))
            F += lines("\n".join(f"v_cvt_pk_bf16_f32 v{k+12+i}, v{A+9+2*i}, v{A+10+2*i}" for i in range(3)))
            F += lines(f"v_mov_b32 v{k+9}, 0\nv_mov_b32 v{k+11}, 0")
            return F
        def vtail(T):
            A, B, k, nm, r = A_[T], B_[T], PK[T], RL[T] + 1, RS[T]
            return lines(f"""v_fmac_f32 v{B+9}, v{CS+25}, v{nm}
            v_fmac_f32 v{B+10}, v{CS+26}, v{nm}
            v_mul_f32 v{B+9}, v{B+9}, v{r}
            v_mul_f32 v{B+10}, v{B+10}, v{r}
            v_cvt_pk_bf16_f32 v{k+15}, v{A+15}, v{B+9}
            v_cvt_pk_bf16_f32 v{k+10}, v{B+10}, 1.0""")
        hw = {}
        def wr(T, idx):
            def g():
                for i in idx: hw[T] = p(f"ds_write_b128 v{WA[i]}, {vr(PK[T]+4*i,4)} offset:{4096*T}")
            return [(4 * len(idx), g)]
        hA = {}; FR = [156, 188, 96, 108]
        def rd_part(s):
            def g():
                p.wait(hw[s >> 1])
                for i in range(3):
                    for rd in range(2): hA[s] = p(f"ds_read_b64_tr_b16 {vr(FR[s]+4*i+2*rd,2)}, v{RA[i]} offset:{2048*s + 1024*rd}")
            return [(24, g)]
        seq = [(tile, T, ks) for tile in range(2) for T in range(2) for ks in range(36)]
        PD = o.get("PD", 6); hF = {}
        def rd_frag(n):
            tile, T, ks = seq[n]
            hF[n] = p(f"ds_read_b128 {vr(FB + 4*(n&7), 4)}, v{vB if T else v16L} offset:{1024*ks}")
        need = {4: (1, 0), 8: (3, 3), 16: (5, 10), 24: (8, 18), 36: (12, 30), 52: (17, 49)}
        fa = o.get("free_at", 110); WG = o.get("WG", 2); nxt = [4]
        def step(n):
            def g():
                tile, T, ks = seq[n]; d = vr((A_, B_)[tile][T], 16)
                p.wait(hF[n], self.hW.get(2 * ks + tile))
                p(f"{M32} {d}, {wreg(2*ks+tile)}, {vr(FB + 4*(n&7), 4)}, {d if ks else 0}")
                for _ in range(2):
                    m = nxt[0]
                    if m >= 144 or m > n + PD or (m in need and n < need[m][1]): break
                    if m in need: p.wait(hZ[need[m][0]]); self.barrier()
                    rd_frag(m); nxt[0] += 1
                if n in mem: mem[n]()
                if n == fa: self.barrier()
                if n % WG == WG - 1 and n < 143 and n > 8: p.wait(hF[min(n + WG, nxt[0] - 1)])
            return g
        p.wait(hZ[0]); self.barrier()
        self.stamp("z0")
        for n in range(4): rd_frag(n)
        if L == 1: mem[60] = lambda: self.clean_l2("g")
        def touch():
            p(f"""s_lshl_b32 {sT1}, {sRB}, 3
            s_add_u32 {sT1}, {sT1}, {sHG}
            s_lshl_b32 {sT1}, {sT1}, 9
            s_add_u32 {sT1}, {sT1}, {O_ST[2]}
            s_lshl_b32 {sT2}, {sG4}, 5
            s_add_u32 {sT2}, {sT2}, {O_FP}
            v_lshl_add_u32 v31, v1, 7, {sT1}
            v_writelane_b32 v31, {sT2}, 4
            s_add_u32 {sT2}, {sFR}, 128
            v_writelane_b32 v31, {sT2}, 5
            s_add_u32 {sT2}, {sFR}, 256
            v_writelane_b32 v31, {sT2}, 6
            s_mov_b64 exec, 127
            buffer_load_dword v31, v31, {WS}, 0 offen
            s_mov_b64 exec, -1""")
        wo = self.wo_dma() if L == 0 else []
        na, nb = o.get("wo_g", 0), o.get("wo_p", 11)
        hf2 = []
        if L == 0:
            rest = self.wp_loads()[self.NP:]
            assert self.NP % 2 == 0
            n = nmem
            for i, g in enumerate(rest): mem[n] = g; n += 1 if i % o.get('b_mod', 4) == 0 else 2
            mem[n] = touch; n += 2
            def f2c():
                p(f"v_and_b32 v223, 31, v1\nv_lshlrev_b32 v223, 2, v223\ns_lshl_b32 {sFH}, {sHG}, 7\ns_add_u32 {sFH}, {sFH}, {O_F2C}")
                hf2.append(p(f"buffer_load_dword v15, v223, {WS}, {sFH} offen sc1"))
            def f2chk():
                Lr, Lo, Lk = p.lab("fr"), p.lab("fo"), p.lab("fk")
                p(f"s_mov_b32 {sPC}, 0"); p.wait(hf2[0]); p.raw(f"{Lr}:")
                p(f"v_cmp_ne_u32 vcc, {sN}, v15"); p.raw(f"s_cbranch_vccnz {Lo}\n{Lk}:")
                self.tail += [f"{Lo}:", f"s_add_u32 {sPC}, {sPC}, 1", f"s_cmp_gt_u32 {sPC}, {SPIN}", f"s_cbranch_scc1 {Lk}",
                              f"buffer_load_dword v15, v223, {WS}, {sFH} offen sc1", "s_waitcnt vmcnt(0)", f"s_branch {Lr}"]
            mem[n] = f2c; n += 16
            mem[n] = f2chk; n += 1
            for g in wo[:1 + na]: mem[n] = g; n += 2
            assert n <= 144
        K0, K1 = kpart(0), kpart(1)
        left = mix(p, [step(n) for n in range(0, 38)], addr, bud, False)
        self.stamp("p1")
        left = mix(p, [step(n) for n in range(38, 74)], left + stats + K0, bud, False, 38)
        self.stamp("p2")
        left = mix(p, [step(n) for n in range(74, fa + 1)], left + K1, bud, False)
        self.stamp("p3")
        mix(p, [step(n) for n in range(fa + 1, 144)], vtail(0) + wr(0, [0, 1]) + wr(0, [2, 3]) + left + wr(1, [0, 1]) + rd_part(0) + rd_part(1), bud)
        self.stamp("gemm")
        KV0, KV1 = A_
        def mm_part(s):
            b = FR[s]; p.wait(hA[s])
            p(f"{M32} {vr(KV0,16)}, {vr(b,4)}, {vr(b+8,4)}, {vr(KV0,16) if s else 0}")
            p(f"{M32} {vr(KV1,16)}, {vr(b+4,4)}, {vr(b+8,4)}, {vr(KV1,16) if s else 0}")
        p(f"""s_lshl_b32 {sT1}, {sW}, 9
        s_mul_i32 {sT2}, {sHG}, 2304
        s_add_u32 {sT1}, {sT1}, {sT2}
        s_add_u32 {sT1}, {sT1}, {sZ}
        s_add_u32 {sT1}, {sT1}, {self.OO - self.OZ}
        s_add_u32 {sT2}, {sT1}, {2*18432 + 256}""")
        run(vtail(1)); run(wr(1, [2, 3]))
        mm_part(0); mm_part(1)
        run(rd_part(2)); run(rd_part(3))
        p(f"""v_lshrrev_b32 v{PA+2}, 9, v29
        v_mul_u32_u24 v{PA+2}, {18432 - 512}, v{PA+2}
        v_add_u32 v{PA}, v29, v{PA+2}
        v_add_u32 v{PA+3}, 640, v29
        v_lshrrev_b32 v{PA+2}, 9, v{PA+3}
        v_mul_u32_u24 v{PA+2}, {18432 - 512}, v{PA+2}
        v_add_u32 v{PA+1}, v{PA+3}, v{PA+2}""")
        mm_part(2); mm_part(3)
        for d in range(9): p(f"v_cvt_pk_bf16_f32 v{96+d}, v{(KV0 + 2*d) if d < 8 else (KV1 + 2*d - 16)}, v{(KV0 + 2*d + 1) if d < 8 else (KV1 + 2*d - 15)}")
        self.dual(f"""s_mov_b64 exec, {M40}
        buffer_store_dwordx4 v[96:99], v{PA}, {WS}, {sT1} offen
        buffer_store_dwordx4 v[100:103], v{PA+1}, {WS}, {sT1} offen
        buffer_store_dword v104, v30, {WS}, {sT2} offen
        s_mov_b64 exec, -1""")
        self.stamp("part")
        def qsoft(T, half):
            A, B, rl = A_[T], B_[T], RL[T]
            F = lines("\n".join(f"v_pk_fma_f32 {vr(B+i,2)}, {vr(CS+16+i,2)}, {vr(rl,2)}, {vr(B+i,2)} op_sel:[0,1,0]" for i in range(0, 8, 2)))
            F += lines(f"v_fmac_f32 v{B+8}, v{CS+24}, v{rl+1}")
            F += self.softmax(B, rl, E, TMP, [A + i for i in range(9)], True)
            F += lines("\n".join(f"v_mov_b32 v{A+9+i}, 0" for i in range(3)))
            n = o.get("qsplit", 45)
            run(F[:n] if half == 0 else F[n:])
        p(f"""s_lshl_b32 {sT0}, {sG4}, 5
        s_add_u32 {sT0}, {sT0}, {O_FP + 64*L}
        s_lshl_b32 {sT1}, {sI4}, 2
        s_lshl_b32 {sT2}, {sW}, 4
        s_add_u32 {sT1}, {sT1}, {sT2}
        s_add_u32 {sT1}, {sT1}, {sT0}
        s_lshl_b32 {sT2}, {sI4}, 4
        s_add_u32 {sT0}, {sT0}, {sT2}""")
        qsoft(0, 0)
        p.waitall(); self.setflag(sT1, 106, True)
        self.stamp("ack1")
        p(f"""v_lshlrev_b32 v116, 3, v0
        v_mov_b32 v118, 0x40000000
        v_cmp_gt_u32 vcc, 180, v0
        s_mul_i32 {sT2}, {sX}, {4*73728}
        v_cndmask_b32 v116, v118, v116, vcc
        s_lshl_b32 {sT3}, {sI4}, 9
        s_mul_i32 {sT4}, {sW}, {18432 - 512}
        v_add_u32 v117, {sT4}, v116
        s_add_u32 {sT2}, {sT2}, {sT3}
        s_mul_i32 {sT3}, {sHG}, 2304
        s_add_u32 {sT2}, {sT2}, {sT3}
        s_add_u32 {sT2}, {sT2}, {self.OO}
        s_lshl_b32 {sT3}, {sHG}, 2
        s_add_u32 {sT3}, {sT3}, {sI4}
        s_lshl_b32 {sT3}, {sT3}, 3
        s_add_u32 {sT3}, {sT3}, {sX}
        s_lshl_b32 {sT3}, {sT3}, 11
        s_add_u32 {sT3}, {sT3}, {O_P2[L]}""")
        p("v_and_b32 v96, 3, v1\nv_lshlrev_b32 v96, 2, v96")
        self.poll(96, sT0, 97)
        self.stamp("Fp")
        hr = []
        for pp in range(4):
            hr.append(p(f"buffer_load_dwordx2 {vr(96+2*pp,2)}, v117, {WS}, {sT2} offen sc1"))
            if pp < 3: p(f"s_add_u32 {sT2}, {sT2}, 73728")
        p.wait(hr[0]); self.unpack(104, 96, 2)
        for pp in range(1, 4):
            p.wait(hr[pp])
            for d in range(2): p(f"v_dot2c_f32_bf16 v{104+2*d}, {sONE}, v{96+2*pp+d}\nv_dot2c_f32_bf16 v{105+2*d}, {sONEH}, v{96+2*pp+d}")
        p("""v_cvt_pk_bf16_f32 v96, v104, v105
        v_cvt_pk_bf16_f32 v97, v106, v107
        v_min_u32 v96, -2, v96
        v_min_u32 v97, -2, v97""")
        hs = p(f"buffer_store_dwordx2 v[96:97], v116, {WS}, {sT3} offen sc1")
        self.stamp("lred")
        for g in wo[1 + na:1 + na + nb]: g()
        qsoft(0, 1); qsoft(1, 0); qsoft(1, 1)
        p(f"""s_lshl_b32 {sT0}, {sHEAD}, 14
        s_add_u32 {sT0}, {sT0}, {O_P2[L]}
        s_mul_i32 {sT3}, {sHG}, 2304
        s_add_u32 {sT3}, {sT3}, {sZ}
        s_add_u32 {sT3}, {sT3}, {self.OO - self.OZ}
        s_add_u32 {sT4}, {sT3}, 36864
        v_bfe_u32 v26, v1, 4, 1
        v_mul_u32_u24 v26, 18432, v26
        v_and_b32 v27, 15, v1
        v_lshl_add_u32 v26, v27, 4, v26
        v_lshrrev_b32 v27, 5, v1
        s_lshl_b32 {sT2}, {sW}, 1
        v_add_u32 v27, {sT2}, v27
        v_lshl_add_u32 v28, v27, 1, v26
        v_lshl_add_u32 v26, v27, 8, v26
        v_mov_b32 v205, 0
        v_mov_b32 v206, 0
        v_mov_b32 v207, 0""")
        if o.get("gdelay"): p(f"s_sleep {o['gdelay']}")
        self.stamp("Fk")
        hg_ = []; GB, SU, KF = 96, 176, 196
        p(f"s_add_u32 {sT1}, {sT0}, 4096\ns_add_u32 {sT2}, {sT0}, 8192\ns_add_u32 {sO}, {sT0}, 12288\ns_mov_b32 {sPC}, 0")
        def gl(xx):
            b = GB + 10 * xx; of = (xx & 1) * 2048; so = (sT0, sT1, sT2, sO)[xx >> 1]
            return f"""buffer_load_dwordx4 {vr(b,4)}, v29, {WS}, {so} offen offset:{of} sc1
            buffer_load_dwordx4 {vr(b+4,4)}, v29, {WS}, {so} offen offset:{of+640} sc1
            buffer_load_dword v{b+8}, v30, {WS}, {so} offen offset:{of+1280} sc1"""
        p(f"s_mov_b64 exec, {M40}")
        GA = o.get("GA", 5)
        for xx in range(GA): hg_.append(p(gl(xx)))
        for xx in range(8):
            b = GB + 10 * xx; Lr, Lo, Lk = p.lab("gr"), p.lab("go"), p.lab("gk")
            p.raw(f"{Lr}:"); p.wait(hg_[xx])
            if xx == 0: self.stamp("g0")
            p(f"v_max3_u32 v31, v{b}, v{b+2}, v{b+4}\nv_max3_u32 v31, v31, v{b+6}, v{b+8}\nv_cmp_eq_u32 vcc, -1, v31")
            p.raw(f"s_cbranch_vccnz {Lo}\n{Lk}:")
            self.tail += [f"{Lo}:", f"s_add_u32 {sPC}, {sPC}, 1", f"s_cmp_gt_u32 {sPC}, {SPIN // 10}", f"s_cbranch_scc1 {Lk}", "s_waitcnt vmcnt(0)"]
            self.tail += [l.strip() for x2 in range(xx, min(xx + GA, 8)) for l in gl(x2).split("\n")] + [f"s_branch {Lr}"]
            if xx + GA < 8: hg_.append(p(gl(xx + GA)))
            if xx == 0: self.unpack(SU, b, 9)
            else:
                for d in range(9): p(f"v_dot2c_f32_bf16 v{SU+2*d}, {sONE}, v{b+d}\nv_dot2c_f32_bf16 v{SU+2*d+1}, {sONEH}, v{b+d}")
        p("s_mov_b64 exec, -1")
        for d in range(9): p(f"v_cvt_pk_bf16_f32 v{KF+d}, v{SU+2*d}, v{SU+2*d+1}")
        self.stamp("gath"); self.note("gre", sPC)
        for g in wo[1 + na + nb:]: g()
        for T in range(2):
            for s in range(3):
                d = vr(B_[T], 16)
                p(f"{M32} {d}, {vr(KF+4*s,4)}, {vr(A_[T]+4*s,4)}, {d if s else 0}")
        p(f"""v_add_u32 v208, {L_W}, v{v16L}
        v_add_u32 v209, {L_W + 9*4608}, v{v16L}
        v_lshrrev_b32 v210, 4, v1
        v_lshlrev_b32 v210, 3, v210
        v_and_b32 v211, 7, v1
        v_add_u32 v210, v210, v211
        v_lshlrev_b32 v210, 4, v210
        v_add_u32 v211, {L_W + 9*4608 + 4096}, v210
        v_add_u32 v210, {L_W + 4096}, v210""")
        for T in range(2):
            B = B_[T]; O = 96 + 4 * T
            p(f"v_add_f32 v{B+10}, {EPS6}, v{B+9}\nv_rcp_f32 v{B+10}, v{B+10}")
            for i in range(0, 8, 2): p(f"v_pk_mul_f32 {vr(B+i,2)}, {vr(B+i,2)}, {vr(B+10,2)} op_sel_hi:[1,0]")
            p(f"v_mul_f32 v{B+8}, v{B+8}, v{B+10}")
            for i in range(4): p(f"v_cvt_pk_bf16_f32 v{O+i}, v{B+2*i}, v{B+2*i+1}")
            p(f"v_cvt_pk_bf16_f32 v{B+8}, v{B+8}, v{B+8}")
            so = sT3 if T == 0 else sT4
            self.dual(f"buffer_store_dwordx4 {vr(O,4)}, v26, {WS}, {so} offen\nbuffer_store_short v{B+8}, v28, {WS}, {so} offen offset:2048")
        self.stamp("ost")
        AC, OF, WF, NS = 32, 52, 124, 4
        hwo = {}
        def rd_wo(s, t):
            a = (208 if t < 4 else 210) + (s >= 9)
            hwo[s, t] = p(f"ds_read_b128 {vr(WF + 20*(s%NS) + 4*t, 4)}, v{a} offset:{4608*(s%9) + 1024*(t&3)}")
        def pre():
            for s in range(NS):
                for t in range(5): rd_wo(s, t)
            p(f"s_mul_i32 {sT0}, {sW}, 18432\ns_add_u32 {sT0}, {sT0}, {sZ}\ns_add_u32 {sT0}, {sT0}, {self.OO - self.OZ}")
        self.rowhop(1 + 3 * L, 212, pre)
        self.stamp("Fo")
        hO = {}; NO = o.get("NO", 6)
        def ld_o(s):
            hO[s] = p(f"buffer_load_dwordx4 {vr(OF+4*s,4)}, v{v16L}, {WS}, {sT0} offen offset:{(s%4)*1024} sc1")
            if s % 4 == 3: p(f"s_add_u32 {sT0}, {sT0}, 4096")
        for s in range(NO): ld_o(s)
        if L == 1: self.clean_l2("o")
        for s in range(18):
            p.wait(hO[s], hwo[s, 4])
            if s == 0: self.stamp("o0")
            for t in range(5):
                d = vr(AC + 4 * t, 4)
                p(f"{M16} {d}, {vr(WF + 20*(s%NS) + 4*t, 4)}, {vr(OF+4*s,4)}, {d if s else 0}")
                if t == 0 and s + NO < 18: ld_o(s + NO)
                if s and s - 1 + NS < 18: rd_wo(s - 1 + NS, t)
        self.stamp("mm")
        X, Tt, Y, R = 56, 76, 96, 116
        self.unpack(X, RES, 10)
        if L == 0:
            for t in range(5):
                for d in (0, 2): p(f"v_pk_add_f32 {vr(X+4*t+d,2)}, {vr(X+4*t+d,2)}, {vr(AC+4*t+d,2)}")
            self.rowstats(X, 124, 2, True)
            self.stamp("s2st")
            ld = self.tile_stats_load(2, 128, 132); self.unpack(Y, YT, 10)
            p(f"v_lshrrev_b32 v28, 4, v1\nv_mul_u32_u24 v28, 504, v28\nv_sub_u32 v223, v{vXT}, v28")
            Lr, Le = p.lab("s2"), p.lab("s2e")
            p.waitall(); p(f"s_mov_b32 {sPC}, 0\n{Lr}:")
            h = ld(); p(f"s_add_u32 {sPC}, {sPC}, 1"); p.wait(h)
            p(f"v_max3_u32 v28, v128, v129, v130\nv_max_u32 v28, v28, v131\nv_cmp_eq_u32 vcc, -1, v28\ns_cmp_gt_u32 {sPC}, {SPIN}\ns_cbranch_scc1 {Le}\ns_cbranch_vccnz {Lr}\n{Le}:")
            self.stamp("s2seen")
            self.tile_stats_finish(128, R); self.norm_tile(Tt, X, R)
            self.publish_z(1, X, Tt, Y, 124)
        else:
            self.srd(SA, "out", TEN)
            p(f"""v_and_b32 v26, 15, v1
            v_mul_u32_u24 v26, 1152, v26
            v_lshrrev_b32 v27, 4, v1
            v_lshl_add_u32 v26, v27, 3, v26
            s_lshl_b32 {sT0}, {sRB}, 2
            s_add_u32 {sT0}, {sT0}, {sW}
            s_mul_i32 {sT0}, {sT0}, 18432
            s_mul_i32 {sT1}, {sHG}, 144
            s_add_u32 {sT0}, {sT0}, {sT1}""")
            for t in range(5):
                for d in (0, 2): p(f"v_pk_add_f32 {vr(X+4*t+d,2)}, {vr(X+4*t+d,2)}, {vr(AC+4*t+d,2)}")
                for d in range(2): p(f"v_cvt_pk_bf16_f32 v{Y+2*t+d}, v{X+4*t+2*d}, v{X+4*t+2*d+1}")
                if t == 4: p("s_mov_b32 exec_hi, 0")
                p(f"buffer_store_dwordx2 {vr(Y+2*t,2)}, v26, {SA}, {sT0} offen offset:{32*t} {o.get('outpol', '')}")
            p("s_mov_b64 exec, -1")

    def build(self):
        p = self.p
        self.prologue(); self.phase0(); self.conv(); self.layer(0); self.layer(1)
        if self.prof: self.stamp("out"); p.waitall(); self.stamp("end")
        if self.opt.get("echo"):
            a, b, f, wg = self.opt["echo"]; Le, Ll = p.lab("ec"), p.lab("el")
            idx = lambda n: [i for i, x in enumerate(self.names) if x == n.split("#")[0]][int((n + "#0").split("#")[1])]
            ra, rb_ = self.STAMP_REGS[idx(a)], self.STAMP_REGS[idx(b)]
            p(f"""s_cmp_lg_u32 s2, {wg}
            s_cbranch_scc1 {Le}
            s_cmp_lg_u32 {sW}, 0
            s_cbranch_scc1 {Le}
            s_sub_u32 {sT0}, s{rb_}, s{ra}""")
            if self.opt.get("skew"):
                op = self.opt["skew"]
                p(f"""v_lshlrev_b32 v4, 4, v1
                s_mov_b32 s88, {O_PROF}
                buffer_load_dwordx4 v[8:11], v4, {WS}, s88 offen sc1
                s_waitcnt vmcnt(0)
                v_{op}3_u32 v8, v8, v9, v10
                v_{op}_u32 v8, v8, v11
                v_readlane_b32 {sT0}, v8, 0""")
                for i in range(1, 64): p(f"v_readlane_b32 {sT1}, v8, {i}\ns_{op}_u32 {sT0}, {sT0}, {sT1}")
                p(f"s_sub_u32 {sT0}, s34, {sT0}" if op == "min" else f"s_sub_u32 {sT0}, {sT0}, s34")
            p(f"""
            s_mul_i32 {sT0}, {sT0}, {f}
            s_min_u32 {sT0}, {sT0}, 100000
            {Ll}:
            s_memrealtime s[86:87]
            s_waitcnt lgkmcnt(0)
            s_sub_u32 {sT1}, s86, s{self.STAMP_REGS[self.names.index("end")]}
            s_cmp_lt_u32 {sT1}, {sT0}
            s_cbranch_scc1 {Ll}
            {Le}:""")
        elif self.prof: self.stamp_flush()
        L = p.lab("ep")
        p(f"s_or_b32 {sT0}, s2, {sW}\ns_cmp_lg_u32 {sT0}, 0\ns_cbranch_scc1 {L}")
        p(f"s_mov_b32 {sT0}, {O_EPOCH}"); self.setflag(sT0, 26)
        p(f"{L}:\nL_end:\ns_endpgm")
        p.raw("\n".join(self.tail))
        return p.text()

HEADER = open("interleave_layers__ssm_conv_h3__linear_kernel_hedgehog__prompt.s.ref").read().split("; Override launch")[0]

def full(prof=False, opt=None):
    k = K(prof, opt); body = k.build()
    assert k.p.maxv <= 255 and k.p.maxa <= 255 and k.p.maxs <= 101
    txt = HEADER + f"; @launch grid=(256,1,1) block=(256,1,1) lds={LDS_BYTES}\n"
    txt += f""".amdgcn_target "amdgcn-amd-amdhsa--gfx950"
.text
.globl {NAME}
.p2align 8
.type {NAME},@function
{NAME}:
{body}.section .rodata,"a"
.p2align 6
.amdhsa_kernel {NAME}
  .amdhsa_next_free_vgpr 512
  .amdhsa_next_free_sgpr 102
  .amdhsa_accum_offset 256
  .amdhsa_group_segment_fixed_size 0
  .amdhsa_kernarg_size 104
  .amdhsa_user_sgpr_count 2
  .amdhsa_user_sgpr_kernarg_segment_ptr 1
  .amdhsa_system_sgpr_workgroup_id_x 1
.end_amdhsa_kernel
"""
    return txt, k
```

```python
import sys
from emit import Prog, mix, parse_reg

NAME = "interleave_layers__ssm_conv_h3__linear_kernel_hedgehog__prompt_kernel"
O_EPOCH = 0
O_FU, O_FW, O_FWB, O_F2X, O_FX0, O_F2C = 0x1000, 0x1400, 0x1800, 0x1C00, 0x2000, 0x3000
O_FUA = 0x3400
O_FR = 0x10000
O_FP = 0x8000
O_FK = [0xC000, 0xE000]
O_CS = 0x1C0000
O_ST = [0x40000, 0x60000, 0x80000]
O_P2 = [0xA0000, 0x120000]
O_PROF = 0x1A0000
O_WO = 0x200000
O_P1 = 0x2C0000
O_U = 0x680000
O_Y = O_U + 0x240000
O_WP = O_Y + 0x240000
O_Z, O_O = O_U, O_Y
WS_USED = O_WP + 3 * 0x240000
TEN = 2048 * 576 * 2
SUB = 36864
L_W = 2 * SUB
L_M = L_W + 82944
L_K, L_V, L_Q, L_PHI, L_WOT, L_WR = 0, 10240, 20480, 32768, 36864, 40960
CONV_STRIDE = 21248; CP = 4160; L_CU = 16640
LM_CS = L_M
LM_SY = L_M + 1024
LDS_BYTES = 163840
WS = "s[4:7]"
SA, SB, SC, SD, SE = "s[36:39]", "s[40:43]", "s[44:47]", "s[48:51]", "s[52:55]"
sX, sJ, sRB, sHG, sI4, sW, sN, sHI = "s56", "s57", "s58", "s59", "s60", "s61", "s62", "s63"
sT0, sT1, sT2, sT3, sT4, sT5 = "s66", "s67", "s68", "s69", "s70", "s71"
sCH, sLC, sHEAD, sPC = "s72", "s73", "s74", "s75"
M40 = "s[76:77]"
M48 = "s[78:79]"
MU1 = "s[80:81]"
sONE, sONEH, sONE2, sCONV = "s82", "s83", "s84", "s85"
sKB, sFH, sFOLD, sO, sWP, sZ, sW10, sNC, sFAST, sFR, sG4 = "s89", "s90", "s91", "s92", "s93", "s94", "s95", "s96", "s97", "s98", "s99"
PTR = dict(q=8, k=10, v=12, shift=14, ssm=16, D=18, wqkv=22, wphi=24, wo=26, out=28, dbg=30)
LOG2E = 0x3fb8aa3b; INV576 = 0x3ae38e39; EPS = 0x3727c5ac; EPS6 = 0x358637bd
SPIN = 200000
RES, vXT, vSTA, v16L, YT = 2, 12, 13, 14, 16
M32 = "v_mfma_f32_32x32x16_bf16"; M16 = "v_mfma_f32_16x16x32_bf16"

def vr(a, n): return f"v[{a}:{a+n-1}]" if n > 1 else f"v{a}"
def wreg(f): return f"a[{4*f}:{4*f+3}]" if f < 64 else vr(224 + 4 * (f - 64), 4)
def run(F):
    for e in F: e[1]()

class K:
    STAMP_REGS = [34, 35, 64, 65, 100, 101, 20, 21, 3] + list(range(10, 20)) + [22, 23, 24, 25, 30, 31, 32, 33, 88, 8, 9]
    def __init__(self, prof=False, opt=None):
        self.p = Prog(); self.prof = prof; self.nstamp = 0; self.names = []; self.opt = opt or {}; self.tail = []
        self.OZ, self.OO = (O_WP + 0x240000, O_WP + 2 * 0x240000) if self.opt.get("noalias") else (O_Z, O_O)
    def srd(self, dst, name, nbytes):
        b = int(dst[2:].split(":")[0]); s = PTR[name]
        self.p(f"s_mov_b32 s{b}, s{s}\ns_mov_b32 s{b+1}, s{s+1}\ns_mov_b32 s{b+2}, {nbytes}\ns_mov_b32 s{b+3}, 0x20000")
    def stamp(self, name=""):
        if not self.prof: return
        if self.opt.get("only") and self.nstamp and name not in self.opt["only"]: return
        p = self.p; i = self.nstamp; self.nstamp += 1; self.names.append(name)
        p(("s_memtime" if self.opt.get("cyc") else "s_memrealtime") + f" s[86:87]\ns_waitcnt lgkmcnt(0)\ns_mov_b32 s{self.STAMP_REGS[i]}, s86")
    def note(self, name, sreg):
        if self.prof and self.opt.get("notes"):
            i = self.nstamp; self.nstamp += 1; self.names.append("#" + name); self.p(f"s_mov_b32 s{self.STAMP_REGS[i]}, {sreg}")
    def stamp_flush(self):
        if not self.prof: return
        p = self.p
        for i in range(self.nstamp): p(f"v_writelane_b32 v2, s{self.STAMP_REGS[i]}, {i}")
        p(f"v_writelane_b32 v2, {sFAST}, 31")
        p(f"s_lshl_b32 s88, s2, 9\ns_lshl_b32 s86, {sW}, 7\ns_add_u32 s88, s88, s86\ns_add_u32 s88, s88, {O_PROF}\nv_lshlrev_b32 v3, 2, v1\ns_mov_b32 exec_hi, 0\nbuffer_store_dword v2, v3, {WS}, s88 offen\ns_mov_b64 exec, -1")
    def onwave(self, w):
        L = self.p.lab("w"); self.p(f"s_cmp_lg_u32 {sW}, {w}\ns_cbranch_scc1 {L}"); return L
    def barrier(self): self.p("s_barrier")
    def dual(self, text):
        p = self.p; S, E = p.lab("slow"), p.lab("back")
        p(f"s_cmp_eq_u32 {sFAST}, 0"); p.raw(f"s_cbranch_scc1 {S}")
        n = len(p.out); h = p(text); body = p.out[n:]; p.raw(f"{E}:")
        self.tail += [f"{S}:"] + [l + " sc1" if l.startswith("buffer_store") else l for l in body] + [f"s_branch {E}"]
        return h
    def setflag(self, soff, tmp, local=False, off=0):
        t = f"s_mov_b64 exec, 1\nv_mov_b32 v{tmp}, {sN}\nbuffer_store_dword v{tmp}, off, {WS}, {soff} offset:{off}"
        if local: self.dual(t + "\ns_mov_b64 exec, -1")
        else: self.p(t + " sc1\ns_mov_b64 exec, -1")
    def poll(self, vaddr, soff, tmp, wide=False, off=0, sleep=0):
        p = self.p; L = p.lab("poll"); E = p.lab("polle")
        p.waitall(lg=False)
        p(f"s_mov_b32 {sPC}, 0\n{L}:")
        if wide: p(f"buffer_load_dwordx4 {vr(tmp,4)}, v{vaddr}, {WS}, {soff} offen offset:{off} sc1")
        else: p(f"buffer_load_dword v{tmp}, v{vaddr}, {WS}, {soff} offen offset:{off} sc1")
        p(f"s_add_u32 {sPC}, {sPC}, 1\ns_waitcnt vmcnt(0)")
        if wide:
            for i in range(4): p(f"v_xor_b32 v{tmp+i}, {sN}, v{tmp+i}")
            p(f"v_or3_b32 v{tmp}, v{tmp}, v{tmp+1}, v{tmp+2}\nv_or_b32 v{tmp}, v{tmp}, v{tmp+3}\nv_cmp_ne_u32 vcc, 0, v{tmp}")
        else: p(f"v_cmp_ne_u32 vcc, {sN}, v{tmp}")
        if sleep:
            p(f"s_cmp_gt_u32 {sPC}, {SPIN}\ns_cbranch_scc1 {E}\ns_cbranch_vccz {E}\ns_sleep {sleep}"); p.raw(f"s_branch {L}"); p(f"{E}:")
        else: p(f"s_cmp_gt_u32 {sPC}, {SPIN}\ns_cbranch_scc1 {E}\ns_cbranch_vccnz {L}\n{E}:")
    def rowhop(self, kind, tmp, between=None, own=False, h=None):
        p = self.p; mode = self.opt.get("hop", "bar")
        if mode == "bar":
            p(f"s_lshl_b32 {sT5}, {sHG}, 2\ns_add_u32 {sT5}, {sT5}, {sFR}\nv_and_b32 v{tmp+2}, 7, v1\nv_lshlrev_b32 v{tmp+2}, 2, v{tmp+2}")
            p.wait(h) if h else p.waitall()
            p.waitall(vm=False); self.barrier()
            L = self.onwave(0); self.setflag(sT5, tmp, True, 128 * kind); p(f"{L}:")
        else:
            p(f"s_lshl_b32 {sT5}, {sHG}, 4\ns_lshl_b32 {sPC}, {sW}, 2\ns_add_u32 {sT5}, {sT5}, {sPC}\ns_add_u32 {sT5}, {sT5}, {sFR}")
            if own and mode == "wave": p(f"v_and_b32 v{tmp+2}, 7, v1\nv_lshl_add_u32 v{tmp+2}, v{tmp+2}, 4, {sPC}")
            else: p(f"v_and_b32 v{tmp+2}, 31, v1\nv_lshlrev_b32 v{tmp+2}, 2, v{tmp+2}")
            p.waitall(); self.setflag(sT5, tmp, True, 128 * kind)
        if between: between()
        if mode == "wave": self.poll(tmp + 2, sFR, tmp + 1, off=128 * kind); return
        L = self.onwave(0); self.poll(tmp + 2, sFR, tmp + 1, off=128 * kind); p(f"{L}:")
        self.barrier()
    def last_of(self, word, count, t):
        p = self.p; L = p.lab("nl")
        p(f"s_mov_b64 exec, 1\nv_mov_b32 v{t}, {LM_SY + 4*word}\nv_mov_b32 v{t+1}, 1")
        h = p(f"ds_add_rtn_u32 v{t+1}, v{t}, v{t+1}")
        p("s_mov_b64 exec, -1"); p.wait(h)
        p(f"v_readfirstlane_b32 {sT5}, v{t+1}\ns_cmp_lg_u32 {sT5}, {count - 1}\ns_cbranch_scc1 {L}")
        return L
    def clean_l2(self, tag):
        if tag not in self.opt.get("wb", ""): return
        p = self.p; L = p.lab("wb")
        p(f"s_lshl_b32 {sT5}, {sJ}, 2\ns_add_u32 {sT5}, {sT5}, {sW}\ns_cmp_lg_u32 {sT5}, 3\ns_cbranch_scc1 {L}\nbuffer_wbl2 sc1\n{L}:")
    def lds_signal(self, word, t, val=1):
        self.p(f"s_mov_b64 exec, 1\nv_mov_b32 v{t}, {LM_SY + 4*word}\nv_mov_b32 v{t+1}, {val}\nds_add_u32 v{t}, v{t+1}\ns_mov_b64 exec, -1")
    def lds_wait(self, word, val, t):
        p = self.p; L = p.lab("lw"); E = p.lab("lwe")
        p.waitall(vm=False)
        p(f"v_mov_b32 v{t}, {LM_SY + 4*word}\ns_mov_b32 {sPC}, 0\n{L}:\nds_read_b32 v{t+1}, v{t}\ns_add_u32 {sPC}, {sPC}, 1\ns_waitcnt lgkmcnt(0)")
        p(f"v_readfirstlane_b32 {sT5}, v{t+1}\ns_cmp_gt_u32 {sPC}, {SPIN*20}\ns_cbranch_scc1 {E}\ns_cmp_lt_u32 {sT5}, {val}\ns_cbranch_scc1 {L}\n{E}:")
    def onehot(self, dst, idx, val_lo, val_hi, t):
        p = self.p
        p(f"v_and_b32 v{t}, 1, v{idx}\nv_cmp_eq_u32 vcc, 1, v{t}\nv_mov_b32 v{t}, {val_lo}\nv_mov_b32 v{t+1}, {val_hi}\nv_cndmask_b32 v{t}, v{t}, v{t+1}, vcc\nv_ashrrev_i32 v{t+1}, 1, v{idx}")
        for jj in range(4): p(f"v_cmp_eq_u32 vcc, {jj}, v{t+1}\nv_cndmask_b32 v{dst+jj}, 0, v{t}, vcc")
    def unpack(self, dst, src, n):
        for d in range(n): self.p(f"v_lshlrev_b32 v{dst+2*d}, 16, v{src+d}\nv_and_b32 v{dst+2*d+1}, {sHI}, v{src+d}")
    def rowstats(self, X, T, which, local):
        p = self.p; S, Q = T, T + 2
        p("s_mov_b32 exec_lo, 0")
        for r in range(4): p(f"v_mov_b32 v{X+16+r}, 0")
        p("s_mov_b32 exec_lo, -1")
        p(f"v_pk_add_f32 {vr(S,2)}, {vr(X,2)}, {vr(X+2,2)}\nv_pk_mul_f32 {vr(Q,2)}, {vr(X,2)}, {vr(X,2)}")
        for i in range(2, 20, 2):
            if i > 2: p(f"v_pk_add_f32 {vr(S,2)}, {vr(S,2)}, {vr(X+i,2)}")
            p(f"v_pk_fma_f32 {vr(Q,2)}, {vr(X+i,2)}, {vr(X+i,2)}, {vr(Q,2)}")
        p(f"""v_add_f32 v{S}, v{S}, v{S+1}
        v_add_f32 v{Q}, v{Q}, v{Q+1}
        s_lshl_b32 {sT1}, {sRB}, 3
        s_add_u32 {sT1}, {sT1}, {sHG}
        v_permlane16_swap_b32 v{S}, v{Q}
        v_add_f32 v{S}, v{S}, v{Q}
        v_mov_b32 v{Q}, v{S}
        s_lshl_b32 {sT1}, {sT1}, 9
        s_add_u32 {sT1}, {sT1}, {O_ST[which]}
        v_permlane32_swap_b32 v{S}, v{Q}
        v_add_f32 v{S}, v{S}, v{Q}
        v_min_u32 v{S}, -2, v{S}""")
        p("s_mov_b32 exec_hi, 0")
        h = self.dual(f"buffer_store_dword v{S}, v{vSTA}, {WS}, {sT1} offen")
        p("s_mov_b32 exec_hi, -1")
        return h
    def tile_stats_load(self, which, d, t):
        p = self.p
        p(f"""v_and_b32 v{t}, 15, v1
        v_lshlrev_b32 v{t}, 3, v{t}
        v_lshrrev_b32 v{t+1}, 4, v1
        v_lshl_add_u32 v{t}, v{t+1}, 10, v{t}
        s_lshl_b32 {sT1}, {sRB}, 12
        s_lshl_b32 {sT2}, {sW}, 7
        s_add_u32 {sT1}, {sT1}, {sT2}
        s_add_u32 {sT1}, {sT1}, {O_ST[which]}""")
        return lambda: p(f"buffer_load_dwordx2 {vr(d,2)}, v{t}, {WS}, {sT1} offen sc1\nbuffer_load_dwordx2 {vr(d+2,2)}, v{t}, {WS}, {sT1} offen offset:512 sc1")
    def tile_stats_finish(self, d, R):
        self.p(f"""v_pk_add_f32 {vr(d,2)}, {vr(d,2)}, {vr(d+2,2)}
        s_mov_b32 {sT2}, {INV576}
        v_permlane16_swap_b32 v{d}, v{d+1}
        v_add_f32 v{d}, v{d}, v{d+1}
        v_mov_b32 v{d+1}, v{d}
        v_permlane32_swap_b32 v{d}, v{d+1}
        v_add_f32 v{d}, v{d}, v{d+1}
        v_mul_f32 v{d}, {INV576}, v{d}
        v_mov_b32 v{d+1}, v{d}
        v_permlane16_swap_b32 v{d}, v{d+1}
        v_fma_f32 v{d+1}, -v{d}, v{d}, v{d+1}
        v_max_f32 v{d+1}, 0, v{d+1}
        v_add_f32 v{d+1}, {EPS}, v{d+1}
        v_rsq_f32 v{R}, v{d+1}
        v_mul_f32 v{R+1}, -v{d}, v{R}""")
    def norm_tile(self, Tt, X, R):
        for i in range(0, 20, 2): self.p(f"v_pk_fma_f32 {vr(Tt+i,2)}, {vr(X+i,2)}, {vr(R,2)}, {vr(R,2)} op_sel:[0,0,1] op_sel_hi:[1,0,1]")
    def publish_z(self, L, X, Tt, Y, tmp, between=None, more=None):
        p = self.p
        p(f"s_mul_i32 {sT0}, {sHG}, 4608\ns_add_u32 {sT0}, {sT0}, {sZ}\ns_add_u32 {sT2}, {sT0}, 4096")
        for i in range(0, 20, 2): p(f"v_pk_fma_f32 {vr(X+i,2)}, {vr(Tt+i,2)}, {vr(Y+i,2)}, {vr(X+i,2)}")
        for d in range(10): p(f"v_cvt_pk_bf16_f32 v{RES+d}, v{X+2*d}, v{X+2*d+1}")
        self.dual(f"""buffer_store_dwordx4 {vr(RES,4)}, v{vXT}, {WS}, {sT0} offen
        buffer_store_dwordx4 {vr(RES+4,4)}, v{vXT}, {WS}, {sT0} offen offset:2048
        s_mov_b32 exec_hi, 0
        buffer_store_dwordx2 {vr(RES+8,2)}, v223, {WS}, {sT2} offen
        s_mov_b32 exec_hi, -1""")
        h = self.rowstats(X, tmp, 1, True)
        self.stamp("zst")
        if more: more()
        self.rowhop(3 * L, tmp, between, h=h)
        self.stamp("zseen")

    def prologue(self):
        p = self.p
        if self.opt.get("first"): self.stamp("first")
        p(f"""s_cmp_ge_u32 s2, 256
        s_cbranch_scc1 L_end
        s_load_dwordx16 s[8:23], s[0:1], 0
        s_load_dwordx8 s[24:31], s[0:1], 64
        s_load_dwordx2 s[32:33], s[0:1], 96
        v_and_b32 v1, 63, v0
        v_lshrrev_b32 v2, 6, v0
        s_and_b32 {sX}, s2, 7
        v_readfirstlane_b32 {sW}, v2
        s_lshr_b32 {sJ}, s2, 3
        s_and_b32 {sHG}, {sJ}, 7
        s_lshr_b32 {sI4}, {sJ}, 3
        s_lshl_b32 {sRB}, {sX}, 2
        s_add_u32 {sRB}, {sRB}, {sI4}""")
        for i in range(3):
            p(f"""v_add_u32 v5, {256*i}, v0
            v_mul_u32_u24 v6, 7282, v5
            v_lshrrev_b32 v6, 16, v6
            v_mul_u32_u24 v7, 9, v6
            v_sub_u32 v7, v5, v7
            v_mul_u32_u24 v6, 1152, v6
            v_lshl_add_u32 v{2+i}, v7, 4, v6""")
        p(f"""s_mul_i32 {sT0}, {sJ}, {64*1152}
        s_mul_i32 {sT1}, {sX}, 144
        s_add_u32 {sT0}, {sT0}, {sT1}
        s_sub_u32 {sT2}, {sT0}, {4*1152}
        v_add_u32 v6, {sT2}, v2
        v_add_u32 v7, {sT2}, v3
        v_add_u32 v8, {sT2}, v4
        s_lshl_b32 {sW10}, {sW}, 10
        s_waitcnt lgkmcnt(0)
        s_mov_b32 s4, s32
        s_mov_b32 s5, s33
        s_mov_b32 s6, {WS_USED}
        s_mov_b32 s7, 0x20000""")
        self.srd(SA, "k", TEN); self.srd(SB, "v", TEN)

    def phase0(self):
        p = self.p; o = self.opt
        self.stamp("start")
        if self.opt.get("skew"):
            p(f"s_lshl_b32 s88, s2, 2\ns_add_u32 s88, s88, {O_PROF}\nv_mov_b32 v9, s34\nbuffer_store_dword v9, off, {WS}, s88 sc1")
        for i in range(2):
            p(f"s_add_u32 m0, {sW10}, {L_K + 4096*i}\nbuffer_load_dwordx4 v{6+i}, {SA}, 0 offen lds")
            p(f"s_add_u32 m0, {sW10}, {L_V + 4096*i}\nbuffer_load_dwordx4 v{2+i}, {SB}, {sT0} offen lds")
        L1 = p.lab("t3")
        p(f"s_cmp_ge_u32 {sW}, 2\ns_cbranch_scc1 {L1}")
        p(f"s_add_u32 m0, {sW10}, {L_K + 8192}\nbuffer_load_dwordx4 v8, {SA}, 0 offen lds")
        p(f"s_cmp_ge_u32 {sW}, 1\ns_cbranch_scc1 {L1}")
        p(f"s_mov_b32 m0, {L_V + 8192}\nbuffer_load_dwordx4 v4, {SB}, {sT0} offen lds")
        p(f"{L1}:")
        self.srd(SD, "shift", 4608)
        p(f"""s_mov_b32 {sHI}, 0xffff0000
        s_mov_b32 s76, 0x0033ffff
        s_mov_b32 s77, 0x0033ffff
        s_mov_b32 s78, 0x00ffffff
        s_mov_b32 s79, 0x00ffffff
        s_mov_b32 {sONE}, 0x3f80
        s_mov_b32 {sONEH}, 0x3f800000
        s_mov_b32 {sONE2}, 0x3f803f80
        s_cmp_eq_u32 {sW}, 2
        s_cselect_b64 s[80:81], -1, 0
        v_and_b32 v40, 15, v1
        v_lshrrev_b32 v41, 4, v1
        v_and_b32 v42, 3, v1
        v_bfe_u32 v43, v1, 2, 2
        v_lshl_add_u32 v43, v41, 3, v43
        s_mul_i32 {sT3}, {sX}, 72
        s_lshl_b32 {sT4}, {sJ}, 6""")
        for s in range(3):
            p(f"""s_cmp_eq_u32 {sW}, 2
            s_cselect_b32 {sT1}, {32*s}, {sW10}
            s_cselect_b32 {sT2}, 48, {16*s}""")
            p(f"s_cbranch_scc0 Lu{s}\ns_lshl_b32 {sT1}, {sT1}, 5\nLu{s}:\ns_lshr_b32 {sT1}, {sT1}, 5")
            if s < 2:
                p(f"""v_add_u32 v44, {sT1}, v43
                v_lshl_add_u32 v45, v42, 2, {sT2}
                v_lshl_add_u32 v46, v41, 3, {sT1}
                v_add_u32 v47, {sT2}, v40""")
            else:
                p(f"""v_lshrrev_b32 v5, 1, v42
                v_lshlrev_b32 v5, 5, v5
                v_mov_b32 v6, {sT1}
                v_cndmask_b32 v5, v6, v5, s[80:81]
                v_add_u32 v44, v5, v43
                v_and_b32 v5, 1, v42
                v_lshl_add_u32 v5, v5, 2, 64
                v_lshl_add_u32 v45, v42, 2, 32
                v_cndmask_b32 v45, v45, v5, s[80:81]
                v_lshrrev_b32 v5, 3, v40
                v_lshlrev_b32 v5, 5, v5
                v_cndmask_b32 v5, v6, v5, s[80:81]
                v_lshl_add_u32 v46, v41, 3, v5
                v_and_b32 v5, 7, v40
                v_add_u32 v5, 64, v5
                v_add_u32 v47, 32, v40
                v_cndmask_b32 v47, v47, v5, s[80:81]""")
            p(f"""v_add_u32 v47, {sT3}, v47
            v_lshlrev_b32 v5, 3, v47""")
            hcrit = p(f"buffer_load_dwordx2 {vr(26+2*s,2)}, v5, {SD}, 0 offen")
            p(f"""v_mul_u32_u24 v44, 144, v44
            v_lshl_add_u32 v{32+s}, v45, 1, v44
            v_add_u32 v46, {sT4}, v46
            v_sub_u32 v46, 2040, v46
            v_lshlrev_b32 v46, 1, v46
            v_lshl_add_u32 v{36+s}, v47, 12, v46""")
        hcrit = p(f"buffer_load_dword v9, off, {WS}, 0 sc1")
        p(f"v_lshlrev_b32 v6, 2, v1\nv_add_u32 v6, {LM_SY}, v6\nv_mov_b32 v7, 0\nds_write_b32 v6, v7")
        p.waitall(vm=False)
        self.barrier()
        self.stamp("crit")
        self.srd(SA, "ssm", TEN); self.srd(SB, "D", 1152)
        p(f"""s_lshl_b32 {sT1}, {sW}, 5
        s_add_u32 {sT1}, {sT1}, {sJ}
        s_add_u32 {sCH}, {sT3}, {sT1}
        s_mul_i32 {sLC}, {sW}, {CONV_STRIDE}
        s_add_u32 {sLC}, {sLC}, {L_W}
        v_lshlrev_b32 v{v16L}, 4, v1
        s_cmp_ge_u32 {sT1}, 72
        s_cselect_b32 {sCONV}, 0, 1""")
        for i in range(4): p(f"v_mov_b32 v{216+i}, 0x40000000")
        p(f"s_cmp_eq_u32 {sCONV}, 0")
        LW3, LNC, LJ = p.lab("w3"), p.lab("nc"), p.lab("j")
        p(f"s_cbranch_scc1 {LNC}")
        self.fold_prep(); self.conv_addr()
        p.wait(hcrit); p(f"s_branch {LJ}\n{LNC}:\ns_cmp_eq_u32 {sW}, 3\ns_cbranch_scc1 {LW3}")
        self.fold_prep()
        p.wait(hcrit); p(f"s_branch {LJ}\n{LW3}:")
        self.srd(SC, "wqkv", 576 * 3456); self.srd(SD, "wphi", 32 * 648)
        p(f"s_lshl_b32 {sT1}, {sX}, 7\ns_add_u32 {sT1}, {sT1}, {O_FUA}\nbuffer_load_dword v221, off, {WS}, {sT1}")
        p(f"s_mul_i32 {sT1}, {sHG}, 2592\ns_mov_b32 m0, {L_PHI}")
        for i in range(3): p(f"buffer_load_dwordx4 v{v16L}, {SD}, {sT1} offen offset:{1024*i} lds")
        p(f"s_mul_i32 {sT1}, {sHG}, 144\ns_add_u32 {sT2}, {sT1}, 1152\ns_add_u32 {sT3}, {sT1}, 2304\nv_mov_b32 v47, 0x40000000")
        for i in range(4):
            p(f"""v_add_u32 v5, {64*i}, v1
            v_mul_u32_u24 v6, 7282, v5
            v_lshrrev_b32 v6, 16, v6
            v_mul_u32_u24 v7, 9, v6
            v_sub_u32 v5, v5, v7
            v_and_b32 v7, 7, v6
            v_lshrrev_b32 v6, 3, v6
            v_lshl_add_u32 v6, v6, 5, {sRB}
            v_cmp_gt_u32 vcc, 72, v6
            v_mul_u32_u24 v8, 57, v6
            s_mov_b64 s[86:87], vcc
            v_lshrrev_b32 v8, 9, v8
            v_mul_u32_u24 v8, 9, v8
            v_sub_u32 v6, v6, v8
            v_cmp_eq_u32 vcc, 8, v6
            v_lshlrev_b32 v8, 3, v8
            v_lshrrev_b32 v40, 2, v6
            v_and_b32 v41, 3, v6
            v_lshlrev_b32 v41, 2, v41
            v_lshl_add_u32 v40, v40, 5, v41
            v_lshrrev_b32 v41, 2, v7
            v_lshl_add_u32 v40, v41, 4, v40
            v_and_b32 v41, 3, v7
            v_add_u32 v40, v40, v41
            v_add_u32 v41, 64, v7
            v_cndmask_b32 v40, v40, v41, vcc
            v_add_u32 v40, v40, v8
            v_mul_u32_u24 v40, 3456, v40
            v_lshl_add_u32 v40, v5, 4, v40
            v_cndmask_b32 v40, v47, v40, s[86:87]
            s_mov_b32 m0, {L_WR + 1024*i}
            buffer_load_dwordx4 v40, {SC}, {sT1} offen lds
            s_mov_b32 m0, {L_WR + 4096 + 1024*i}
            buffer_load_dwordx4 v40, {SC}, {sT2} offen lds
            s_mov_b32 m0, {L_WR + 8192 + 1024*i}
            v_mad_u32_u24 v41, v6, 9, v7
            v_mad_u32_u24 v42, v7, 9, 8
            v_cndmask_b32 v41, v41, v42, vcc
            v_add_u32 v41, v41, v8
            v_mul_u32_u24 v41, 1152, v41
            v_lshl_add_u32 v41, v5, 4, v41
            v_cndmask_b32 v{216+i}, v47, v41, s[86:87]""")
            hf = p(f"buffer_load_dwordx4 v40, {SC}, {sT3} offen lds")
        self.fold_prep()
        p.wait(hcrit); p(f"{LJ}:")
        p("v_add_u32 v9, 1, v9"); self.stamp("landed"); self.barrier()
        p(f"v_readfirstlane_b32 {sN}, v9\ns_getreg_b32 {sT4}, hwreg(HW_REG_XCC_ID, 0, 4)\ns_lshl_b32 {sT1}, {sN}, 4\ns_or_b32 {sT4}, {sT4}, {sT1}")
        self.stamp("bar1")
        LU3, LUE = p.lab("u3"), p.lab("ue")
        p(f"s_cmp_eq_u32 {sW}, 3\ns_cbranch_scc1 {LU3}")
        hs = []
        for s in range(3):
            b = 48 + 10 * s
            h = [p(f"ds_read_b64_tr_b16 {vr(b+2*i,2)}, v{32+s} offset:{L_K + 576*i}") for i in range(3)]
            h += [p(f"ds_read_b64_tr_b16 {vr(b+6+2*i,2)}, v{32+s} offset:{L_V + 576*i}") for i in range(2)]
            hs.append(h)
        lo = lambda d, s: p(f"v_lshlrev_b32 v{d}, 16, v{s}")
        hi = lambda d, s: p(f"v_and_b32 v{d}, {sHI}, v{s}")
        p(f"s_mov_b32 {sT0}, {O_U}")
        for s in range(3):
            b = 48 + 10 * s; P, W, A, V, O = 80, 94, 98, 106, 114 + 4 * s
            lo(W, 26+2*s); hi(W+1, 26+2*s); lo(W+2, 27+2*s); hi(W+3, 27+2*s)
            p.wait(*hs[s])
            hi(P+0, b); hi(P+1, b+2); lo(P+2, b+1); lo(P+3, b+3); hi(P+4, b+1); hi(P+5, b+3)
            lo(P+6, b+2); lo(P+7, b+4); hi(P+8, b+2); hi(P+9, b+4); lo(P+10, b+3); lo(P+11, b+5); hi(P+12, b+3); hi(P+13, b+5)
            Pp = lambda x: vr(P + 2 * (x + 3), 2)
            for q in range(4): p(f"v_pk_mul_f32 {vr(A+2*q,2)}, {Pp(q)}, {vr(W,2)} op_sel_hi:[1,0]")
            for q in range(4): p(f"v_pk_fma_f32 {vr(A+2*q,2)}, {Pp(q-1)}, {vr(W,2)}, {vr(A+2*q,2)} op_sel:[0,1,0]")
            lo(V+0, b+6); lo(V+1, b+8); hi(V+2, b+6); hi(V+3, b+8); lo(V+4, b+7); lo(V+5, b+9); hi(V+6, b+7); hi(V+7, b+9)
            for q in range(4): p(f"v_pk_fma_f32 {vr(A+2*q,2)}, {Pp(q-2)}, {vr(W+2,2)}, {vr(A+2*q,2)} op_sel_hi:[1,0,1]")
            for q in range(4): p(f"v_pk_fma_f32 {vr(A+2*q,2)}, {Pp(q-3)}, {vr(W+2,2)}, {vr(A+2*q,2)} op_sel:[0,1,0]")
            for q in range(4): p(f"v_pk_mul_f32 {vr(A+2*q,2)}, {vr(A+2*q,2)}, {vr(V+2*q,2)}")
            p(f"""v_cvt_pk_bf16_f32 v{O}, v{A+7}, v{A+5}
            v_cvt_pk_bf16_f32 v{O+1}, v{A+3}, v{A+1}
            v_cvt_pk_bf16_f32 v{O+2}, v{A+6}, v{A+4}
            v_cvt_pk_bf16_f32 v{O+3}, v{A+2}, v{A}
            buffer_store_dwordx4 {vr(O,4)}, v{36+s}, {WS}, {sT0} offen sc1""")
        self.stamp("ust")
        Lh, Lh2 = p.lab("h"), p.lab("h2")
        p(f"s_cmp_eq_u32 {sCONV}, 0\ns_cbranch_scc1 {Lh}")
        p(f"s_lshl_b32 {sT1}, {sCH}, 12\ns_lshl_b32 {sT2}, {sCH}, 1\ns_add_u32 m0, {sLC}, 32")
        for i in range(4): p(f"buffer_load_dwordx4 v{v16L}, {SA}, {sT1} offen offset:{1024*i} lds")
        self.hh = p(f"buffer_load_ushort v45, off, {SB}, {sT2}")
        p(f"s_waitcnt vmcnt(5)\ns_branch {Lh2}\n{Lh}:\ns_waitcnt vmcnt(0)\n{Lh2}:")
        L5 = self.last_of(5, 3, 5)
        p(f"""s_lshl_b32 {sT0}, {sX}, 7
        s_lshl_b32 {sT1}, {sJ}, 2
        s_add_u32 {sT0}, {sT0}, {sT1}
        s_add_u32 {sT0}, {sT0}, {O_FU}
        s_mov_b64 exec, 1
        v_mov_b32 v5, {sT4}
        s_add_u32 {sT1}, {sT0}, {O_FUA - O_FU}
        buffer_store_dword v5, off, {WS}, {sT1}
        buffer_store_dword v5, off, {WS}, {sT0} sc1
        s_mov_b64 exec, -1
        {L5}:""")
        self.stamp("uflag")
        self.lds_wait(6, 1, 26)
        p(f"s_branch {LUE}\n{LU3}:")
        p.wait(hf); self.lds_signal(6, 26); p(f"{LUE}:")
        self.fold()
        self.stamp("p0end")
        self.tables()

    def fold_prep(self):
        p = self.p
        p(f"""v_and_b32 v5, 15, v1
        s_lshl_b32 {sT1}, {sW}, 4
        v_add_u32 v7, {sT1}, v5
        v_lshrrev_b32 v5, 4, v1
        v_lshlrev_b32 v{vSTA}, 3, v7
        v_lshl_add_u32 v{vSTA}, v5, 2, v{vSTA}
        v_and_b32 v7, 31, v7
        v_lshlrev_b32 v7, 4, v7
        s_lshr_b32 {sT1}, {sW}, 1
        s_mul_i32 {sT1}, {sT1}, {SUB}
        v_add_u32 v7, {sT1}, v7
        v_lshl_add_u32 v{vXT}, v5, 9, v7
        s_lshl_b32 {sHEAD}, {sHG}, 2
        s_add_u32 {sHEAD}, {sHEAD}, {sW}
        s_mul_i32 {sWP}, {sHEAD}, 73728
        s_add_u32 {sWP}, {sWP}, {O_WP}
        s_mul_i32 {sZ}, {sRB}, 73728
        s_add_u32 {sZ}, {sZ}, {self.OZ}
        s_lshl_b32 {sFR}, {sRB}, 10
        s_add_u32 {sFR}, {sFR}, {O_FR}
        s_lshl_b32 {sG4}, {sX}, 3
        s_add_u32 {sG4}, {sG4}, {sHG}
        s_lshl_b32 {sG4}, {sG4}, 2
        v_mov_b32 v160, 0x40000000
        v_mov_b32 v214, v160
        v_mov_b32 v212, 0
        v_mov_b32 v213, 0
        v_cndmask_b32 v15, v160, v{v16L}, {M48}
        v_bfe_u32 v5, v1, 3, 2
        v_and_b32 v6, 3, v1
        v_lshl_add_u32 v190, v5, 2, v6
        v_bfe_u32 v191, v1, 2, 1
        v_mul_u32_u24 v5, 9, v191
        v_add_u32 v5, v5, v190
        s_mul_i32 {sT0}, {sW}, 648
        s_add_u32 {sT0}, {sT0}, {L_PHI}
        v_lshl_add_u32 v161, v5, 1, {sT0}
        v_lshrrev_b32 v7, 5, v1
        v_mul_u32_u24 v8, 288, v7
        v_add_u32 v162, v161, v8
        v_bfe_u32 v8, v1, 4, 1
        v_lshl_add_u32 v8, v8, 1, v191
        v_lshl_add_u32 v6, v8, 3, v6
        v_bfe_u32 v8, v1, 3, 1
        v_lshl_add_u32 v6, v8, 2, v6
        v_mul_u32_u24 v6, 144, v6
        s_mul_i32 {sT0}, {sW}, 36
        s_add_u32 {sT0}, {sT0}, {L_WR}
        v_add_u32 v163, {sT0}, v6
        v_lshl_add_u32 v164, v7, 4, v163
        v_lshl_add_u32 v8, v7, 5, {sRB}
        v_and_b32 v6, 31, v1
        v_lshlrev_b32 v6, 4, v6
        v_lshrrev_b32 v167, 1, v8
        v_lshl_add_u32 v6, v167, 10, v6
        v_and_b32 v8, 1, v8
        v_lshl_add_u32 v167, v8, 9, v6
        v_lshlrev_b32 v7, 3, v7
        v_sub_u32 v5, v5, v7
        v_mov_b32 v7, -64
        v_add_u32 v8, -9, v5
        v_cmp_gt_u32 vcc, 9, v190
        v_cndmask_b32 v8, v8, v7, vcc""")
        self.onehot(174, 8, sONE, sONEH, 168)
        p(f"""v_add_u32 v8, -2, v5
        v_add_u32 v6, -9, v190
        v_cmp_lt_u32 vcc, 1, v6
        v_cndmask_b32 v8, v8, v7, vcc""")
        self.onehot(178, 8, sONE, sONEH, 168)
        p(f"""v_add_u32 v8, -16, v8
        v_cmp_gt_u32 vcc, 32, v1
        v_cndmask_b32 v8, v7, v8, vcc""")
        self.onehot(182, 8, sONE, sONEH, 168)
        p("v_mov_b32 v188, v182\nv_mov_b32 v182, 0\nv_mov_b32 v187, 0\nv_mov_b32 v189, 0\nv_mov_b32 v207, 0\nv_add_u32 v165, 4096, v164\nv_add_u32 v166, 8192, v164")

    def fold(self):
        p = self.p
        hph = [p(f"ds_read_u16 v{32+e}, v162 offset:{36*e}") for e in range(8)] + [p(f"ds_read_u16 v{40+e}, v161 offset:{576+36*e}") for e in range(2)]
        for m in range(3):
            p(f"ds_read2_b32 {vr(192+4*m,2)}, v{164+m} offset0:0 offset1:1\nds_read2_b32 {vr(194+4*m,2)}, v{164+m} offset0:2 offset1:3")
        for m in range(3): hW = p(f"ds_read_b32 v{204+m}, v163 offset:{4096*m + 32}")
        p.wait(*hph)
        p("v_cmp_gt_u32 vcc, 9, v190")
        for jj in range(4): p(f"v_lshl_or_b32 v{170+jj}, v{33+2*jj}, 16, v{32+2*jj}")
        p("v_lshl_or_b32 v183, v41, 16, v40")
        for jj in range(4): p(f"v_cndmask_b32 v{170+jj}, 0, v{170+jj}, vcc")
        p("v_cndmask_b32 v183, 0, v183, vcc\ns_mov_b32 exec_lo, 0\nv_mov_b32 v183, 0\ns_mov_b32 exec_lo, -1\nv_mov_b32 v186, v183")
        p.wait(hW)
        p(f"""{M32} v[128:143], v[196:199], v[170:173], 0
        {M32} v[144:159], v[192:195], v[170:173], 0
        {M32} v[128:143], v[200:203], v[174:177], v[128:143]
        {M32} v[144:159], v[200:203], v[178:181], v[144:159]
        {M32} v[128:143], v[204:207], v[182:185], v[128:143]
        {M32} v[144:159], v[204:207], v[186:189], v[144:159]""")
        p(f"""s_lshl_b32 {sT1}, {sHEAD}, 5
        s_add_u32 {sT1}, {sT1}, {sRB}
        s_lshl_b32 {sT1}, {sT1}, 8
        s_add_u32 {sT1}, {sT1}, {O_CS}
        s_add_u32 {sT2}, {sWP}, 32768
        s_add_u32 {sT0}, {sWP}, 36864
        s_add_u32 {sT3}, {sWP}, {36864 + 32768}
        v_mov_b32 v64, 0
        v_mov_b32 v65, 0
        v_lshlrev_b32 v26, 2, v1""")
        for d in range(8): p(f"v_cvt_pk_bf16_f32 v{48+d}, v{128+2*d}, v{129+2*d}")
        for d in range(8): p(f"v_cvt_pk_bf16_f32 v{56+d}, v{144+2*d}, v{145+2*d}")
        Lw = p.lab("n3")
        p(f"""buffer_store_dwordx4 v[48:51], v167, {WS}, {sWP} offen sc1
        buffer_store_dwordx4 v[56:59], v167, {WS}, {sT0} offen sc1
        s_cmp_ge_u32 {sRB}, 8
        s_cbranch_scc1 {Lw}
        s_mov_b32 exec_hi, 0
        buffer_store_dwordx4 v[52:55], v167, {WS}, {sT2} offen sc1
        buffer_store_dwordx4 v[60:63], v167, {WS}, {sT3} offen sc1
        s_mov_b32 exec_hi, -1
        {Lw}:""")
        for d in range(8):
            if d == 4: p("s_mov_b32 exec_hi, 0")
            p(f"v_dot2c_f32_bf16 v64, {sONE2}, v{48+d}\nv_dot2c_f32_bf16 v65, {sONE2}, v{56+d}")
        p("s_mov_b32 exec_hi, -1")
        p(f"v_permlane32_swap_b32 v64, v65\nv_add_f32 v64, v64, v65\nbuffer_store_dword v64, v26, {WS}, {sT1} offen sc1")

    def marks_p(self):
        p = self.p; o = self.opt
        p(f"""v_mov_b32 v72, -1
        v_mov_b32 v73, -1
        v_mov_b32 v74, -1
        v_mov_b32 v75, -1
        s_lshl_b32 {sT3}, {sHG}, 2
        s_add_u32 {sT3}, {sT3}, {sI4}
        s_lshl_b32 {sT3}, {sT3}, 3
        s_add_u32 {sT3}, {sT3}, {sX}
        s_lshl_b32 {sT3}, {sT3}, 11
        s_add_u32 {sT3}, {sT3}, {O_P2[0]}
        s_add_u32 {sT2}, {sT3}, {O_P2[1] - O_P2[0]}""")
        for so in (sT3, sT2):
            for i in range(2): hp = p(f"buffer_store_dwordx4 v[72:75], v{160 if 'P' in o.get('abl', '') else v16L}, {WS}, {so} offen offset:{1024*i} sc1")

    def marks_y(self):
        p = self.p
        p("v_mov_b32 v72, -1\nv_mov_b32 v73, -1\nv_mov_b32 v74, -1\nv_mov_b32 v75, -1")
        p(f"s_mul_i32 {sT1}, {sRB}, 73728\ns_mul_i32 {sT2}, {sHG}, 9216\ns_add_u32 {sT1}, {sT1}, {sT2}\ns_add_u32 {sT1}, {sT1}, {O_Y}")
        for i in range(9):
            p(f"buffer_store_dwordx4 v[72:75], v{v16L}, {WS}, {sT1} offen offset:{1024*(i%4)} sc1")
            if i % 4 == 3: p(f"s_add_u32 {sT1}, {sT1}, 4096")

    def upoll(self):
        p = self.p; o = self.opt
        Lr, Le = p.lab("pu"), p.lab("pue")
        p(f"""v_and_b32 v27, 31, v1
        v_lshlrev_b32 v27, 2, v27
        s_lshl_b32 {sT0}, {sX}, 7
        s_add_u32 {sT1}, {sT0}, {O_FU}
        s_add_u32 {sT0}, {sT0}, {O_FUA}
        s_mov_b32 {sPC}, 0
        {Lr}:
        s_cmp_gt_u32 {sPC}, {o.get("ua_tries", 24)}
        s_cselect_b32 {sT0}, {sT1}, {sT0}
        buffer_load_dword v28, v27, {WS}, {sT0} offen sc1
        s_add_u32 {sPC}, {sPC}, 1
        s_waitcnt vmcnt(0)
        v_xor_b32 v28, {sT4}, v28
        v_cmp_lt_u32 vcc, 15, v28
        s_cmp_gt_u32 {sPC}, {SPIN}
        s_cbranch_scc1 {Le}
        s_cbranch_vccnz {Lr}
        {Le}:
        v_cmp_ne_u32 vcc, 0, v28
        s_nop 4
        s_cmp_eq_u64 vcc, 0
        s_cselect_b32 {sT0}, {1 if o.get('slow') else 2}, 1""")
        self.lds_signal(1, 27, sT0)

    def conv_addr(self):
        p = self.p
        p("v_and_b32 v216, 15, v1\nv_lshrrev_b32 v217, 4, v1")
        p(f"""v_add_u32 v218, 1, v216
        v_and_b32 v219, 3, v218
        v_mul_u32_u24 v219, {CP}, v219
        v_lshrrev_b32 v218, 2, v218
        v_lshl_add_u32 v219, v218, 3, v219
        v_lshl_add_u32 v219, v217, 4, v219
        v_add_u32 v212, {sLC}, v219
        v_lshlrev_b32 v218, 5, v216
        v_lshlrev_b32 v219, 4, v217
        v_sub_u32 v219, v219, v218
        s_add_u32 {sT5}, {sLC}, {L_CU + 4064 - 3584}
        v_add_u32 v213, {sT5}, v219
        v_and_b32 v218, 1, v217
        v_lshlrev_b32 v218, 2, v218
        v_lshrrev_b32 v219, 2, v216
        v_add_u32 v218, v218, v219
        v_mul_u32_u24 v218, 73728, v218
        v_and_b32 v219, 3, v216
        v_lshl_add_u32 v218, v219, 5, v218
        v_lshrrev_b32 v219, 1, v217
        v_lshl_add_u32 v214, v219, 4, v218""")

    def tables(self):
        p = self.p
        L7 = p.lab("noconv2")
        p(f"s_cmp_eq_u32 {sCONV}, 0\ns_cbranch_scc1 {L7}\nv_add_u32 v27, {sLC}, v{v16L}")
        p.raw("s_waitcnt vmcnt(3)"); p.assume_done(self.hh)
        h = []
        for i in range(4):
            p(f"ds_read_b128 {vr(224+6*i,4)}, v27 offset:{32 + 1024*i}")
            h.append(p(f"ds_read_b64 {vr(228+6*i,2)}, v27 offset:{48 + 1024*i}"))
        p(f"""v_mov_b32 v32, 0
        v_mov_b32 v33, 0
        v_mov_b32 v34, 0
        v_mov_b32 v35, 0
        v_lshlrev_b32 v26, 3, v1
        v_add_u32 v26, {sLC}, v26
        ds_write_b64 v26, v[32:33] offset:{L_CU + 4096}""")
        for i in range(4):
            D = 224 + 6 * i; F = 64 + 12 * (i & 1)
            p.wait(h[i])
            if i == 0: p("v_readfirstlane_b32 s86, v224\nv_readfirstlane_b32 s87, v225")
            for q in range(4): p(f"v_alignbit_b32 v{F+q}, v{D+q+1}, v{D+q}, 16")
            p(f"ds_write_b128 v27, {vr(F,4)} offset:{CP + 32 + 1024*i}")
            for q in range(4): p(f"v_mov_b32 v{F+4+q}, v{D+q+1}")
            p(f"ds_write_b128 v27, {vr(F+4,4)} offset:{2*CP + 32 + 1024*i}")
            for q in range(3): p(f"v_mov_b32 v{F+8+q}, v{F+q+1}")
            p(f"v_alignbit_b32 v{F+11}, v{D+5}, v{D+4}, 16")
            p(f"ds_write_b128 v27, {vr(F+8,4)} offset:{3*CP + 32 + 1024*i}")
        p(f"""v_lshlrev_b32 v28, 4, v1
        v_sub_u32 v28, 48, v28
        v_lshlrev_b64 v[36:37], v28, s[86:87]
        v_lshlrev_b64 v[36:37], 16, v[36:37]
        v_mul_u32_u24 v26, {CP}, v1
        v_add_u32 v26, {sLC}, v26
        s_mov_b64 exec, 15
        ds_write_b128 v26, v[32:35]
        ds_write_b128 v26, v[34:37] offset:16
        s_mov_b64 exec, -1
        v_and_b32 v26, 15, v1
        v_lshrrev_b32 v27, 4, v1
        v_lshlrev_b32 v28, 3, v27
        v_add_u32 v28, v28, v26
        v_sub_u32 v29, 15, v28
        v_lshlrev_b32 v44, 16, v45""")
        self.onehot(208, 29, "v45", "v44", 30)
        p(f"{L7}:")

    def wp_loads(self):
        p = self.p; out = []
        for tile in range(2):
            for ks in range(36):
                def g(f=2 * ks + tile, ks=ks, tile=tile):
                    if ks % 2 == 0: p(f"s_add_u32 {sKB}, {sWP}, {tile*36864 + ks*1024}")
                    self.hW[f] = p(f"buffer_load_dwordx4 {wreg(f)}, v{15 if tile else v16L}, {WS}, {sKB} offen offset:{(ks%2)*1024} sc1")
                out.append(g)
        return out
    def small_loads(self):
        p = self.p
        p(f"s_lshl_b32 {sT0}, {sHEAD}, 13\ns_add_u32 {sT0}, {sT0}, {O_CS}\ns_add_u32 {sT1}, {sT0}, 4096")
        for i in range(8): self.hcs = p(f"buffer_load_dwordx4 {vr(144+4*i,4)}, v{v16L}, {WS}, {sT0 if i < 4 else sT1} offen offset:{(i%4)*1024} sc1")

    def conv(self):
        p = self.p; o = self.opt
        self.hW = {}
        NI = o.get("w_idle", 36)
        NP = self.NP = o.get("w_pre", 36)
        n1 = o.get("w_in_conv", 0)
        LE, LJ = p.lab("noconv3"), p.lab("convend")
        def wflag():
            p(f"""s_lshl_b32 {sT0}, {sHG}, 7
            s_lshl_b32 {sT1}, {sRB}, 2
            s_add_u32 {sT1}, {sT1}, {sT0}
            s_add_u32 {sT1}, {sT1}, {O_FW}""")
            L = self.last_of(0, 4, 26)
            p(f"v_lshlrev_b32 v26, 10, v1\nv_mov_b32 v27, {sN}\ns_mov_b64 exec, 3\nbuffer_store_dword v27, v26, {WS}, {sT1} offen sc1\ns_mov_b64 exec, -1\n{L}:")
        p(f"s_cmp_eq_u32 {sCONV}, 0\ns_cbranch_scc1 {LE}")
        if o.get("wfirst", 1): p.waitall(); wflag()
        self.lds_wait(1, 1, 26)
        self.stamp("useen")
        p(f"s_lshl_b32 {sT1}, {sCH}, 12\ns_add_u32 {sT1}, {sT1}, {O_U}\ns_add_u32 m0, {sLC}, {L_CU}")
        hu = [p(f"buffer_load_dwordx4 v{v16L}, {WS}, {sT1} offen offset:{1024*i} sc1 lds") for i in range(4)]
        if not o.get("wfirst", 1): p("s_waitcnt vmcnt(4)"); wflag()
        ACC, AB, BB = 32, 64, 128
        hA = {}; hB = {}
        def rdA(m, t):
            b = AB + 32 * (m & 1) + 4 * t
            p(f"ds_read_b64 {vr(b,2)}, v212 offset:{512*t + 64*m}")
            hA[m, t] = p(f"ds_read_b64 {vr(b+2,2)}, v212 offset:{512*t + 64*m + 8}")
        def rdB(m, be):
            hB[m, be] = p(f"ds_read_b128 {vr(BB + 32*(m&1) + 4*be, 4)}, v213 offset:{512*(7-be) + 64*m}")
        for t in range(8): rdA(0, t)
        p.wait(*hu); self.lds_signal(3, 26)
        self.stamp("udma")
        for be in range(8): rdB(0, be)
        wl = self.wp_loads()
        bg = list(wl[:n1])
        m0 = o.get("w_step", 5)
        for m in range(8):
            main = []
            if m == 0:
                for b in range(8):
                    def g(b=b):
                        p.wait(hB[0, b]); p(f"{M16} {vr(ACC+4*b,4)}, v[208:211], {vr(BB+4*b,4)}, 0")
                    main.append(g)
            for (t, be) in sorted([(t, be) for t in range(8) for be in range(8 - t)], key=lambda x: (max(x), x[0] + x[1])):
                def g(t=t, be=be):
                    p.wait(hA[m, t], hB[m, be])
                    d = vr(ACC + 4 * (t + be), 4)
                    p(f"{M16} {d}, {vr(AB+32*(m&1)+4*t,4)}, {vr(BB+32*(m&1)+4*be,4)}, {d}")
                main.append(g)
            fill = []
            if m < 7:
                for t in range(8):
                    fill.append((8, lambda t=t: rdB(m + 1, t))); fill.append((8, lambda t=t: rdA(m + 1, t)))
            if m >= m0 and n1:
                if m == m0: self.lds_wait(2, 1, 26)
                k = min(-(-len(bg) // (8 - m)), len(bg))
                extra, bg = bg[:k], bg[k:]
                for i, g in enumerate(extra):
                    j = 2 + i * 34 // k
                    main[j] = (lambda a=main[j], b=g: (a(), b()))
            mix(p, main, fill, 8)
            if m in (1, 3, 5): self.stamp(f"m{m}")
        if not n1: self.lds_wait(2, 1, 26)
        p(f"s_lshl_b32 {sT1}, {sCH}, 7\ns_add_u32 {sT1}, {sT1}, {O_Y}")
        for bp in range(4):
            for d in range(4): p(f"v_cvt_pk_bf16_f32 v{64+4*bp+d}, v{ACC+8*bp+2*d}, v{ACC+8*bp+2*d+1}")
        for bp in range(4):
            O = 64 + 4 * bp
            p(f"v_permlane16_swap_b32 v{O}, v{O+2}\nv_permlane16_swap_b32 v{O+1}, v{O+3}")
            hy = p(f"buffer_store_dwordx4 {vr(O,4)}, v214, {WS}, {sT1} offen sc1")
            p(f"s_add_u32 {sT1}, {sT1}, {8*73728}")
        self.stamp("convE")
        NA = max(o.get("w_a", 18), n1)
        def f2poll():
            p(f"""v_and_b32 v26, 31, v1
            s_lshl_b32 {sT0}, {sX}, 7
            s_add_u32 {sT0}, {sT0}, {O_F2X}
            v_lshl_add_u32 v26, v26, 2, {sT0}
            v_and_b32 v27, 7, v1
            s_lshl_b32 {sT1}, {sRB}, 7
            s_add_u32 {sT1}, {sT1}, {O_FX0}
            v_lshl_add_u32 v27, v27, 2, {sT1}
            v_cmp_gt_u32 vcc, 32, v1
            v_cndmask_b32 v26, v27, v26, vcc""")
            self.poll(26, 0, 27); self.lds_signal(7, 26)
        for g in wl[n1:NA]: g()
        p(f"s_branch {LJ}")
        seq_idle = p.seq
        p(f"{LE}:")
        L = self.onwave(3)
        if o.get("pois", "fold") == "fold": self.marks_y(); p.waitall(); wflag()
        self.lds_wait(5, 3, 26)
        if o.get("pois", "fold") == "u": self.marks_y(); p.waitall(); wflag()
        if o.get("udelay", 0): p(f"s_sleep {o.get('udelay', 0)}")
        p.waitall(); self.upoll()
        p(f"s_sub_u32 {sFAST}, {sT0}, 1")
        p(f"""s_lshl_b32 {sT0}, {sHG}, 7
        s_add_u32 {sT0}, {sT0}, {O_FW}
        s_lshl_b32 {sT1}, {sX}, 7
        s_add_u32 {sT1}, {sT1}, {O_FWB}
        s_cmp_lt_u32 {sJ}, 8
        s_cselect_b32 {sNC}, 3, 2
        v_and_b32 v30, 31, v1
        v_lshl_add_u32 v31, v30, 2, {sT1}
        v_lshl_add_u32 v30, v30, 2, {sT0}
        v_cmp_gt_u32 vcc, 32, v1
        v_cndmask_b32 v30, v31, v30, vcc""")
        self.lds_wait(3, sNC, 26)
        p(f"s_lshl_b32 {sT2}, {sX}, 7\ns_lshl_b32 {sT3}, {sJ}, 2\ns_add_u32 {sT2}, {sT2}, {sT3}\ns_add_u32 {sT2}, {sT2}, {O_F2X}")
        self.setflag(sT2, 26, True)
        self.srd(SA, "q", TEN)
        p(f"s_mul_i32 {sT1}, {sRB}, {64*1152}\ns_mul_i32 {sT2}, {sHG}, 144\ns_add_u32 {sT1}, {sT1}, {sT2}")
        for i in range(9):
            p(f"""v_add_u32 v26, {64*i}, v1
            v_mul_u32_u24 v27, 7282, v26
            v_lshrrev_b32 v27, 16, v27
            v_mul_u32_u24 v27, {1152 - 144}, v27
            v_lshl_add_u32 v26, v26, 4, v27
            s_mov_b32 m0, {L_Q + 1024*i}
            buffer_load_dwordx4 v26, {SA}, {sT1} offen lds""")
        p(f"""v_lshlrev_b32 v26, 7, v1
        s_lshl_b32 {sT3}, {sRB}, 3
        s_add_u32 {sT3}, {sT3}, {sHG}
        s_lshl_b32 {sT3}, {sT3}, 9
        s_add_u32 {sT3}, {sT3}, {O_ST[1]}
        v_and_b32 v27, 0x180, v26
        v_bfe_u32 v28, v1, 2, 1
        v_mul_u32_u24 v28, {O_ST[2] - O_ST[1]}, v28
        v_add3_u32 v27, v27, v28, {sT3}
        v_and_b32 v28, 0x380, v26
        v_add_u32 v28, {sFR}, v28
        v_cmp_gt_u32 vcc, 8, v1
        v_cndmask_b32 v27, v28, v27, vcc
        s_lshl_b32 {sT2}, {sG4}, 5
        s_add_u32 {sT2}, {sT2}, {O_FP}
        v_mov_b32 v28, {sT2}
        v_cmp_gt_u32 vcc, 13, v1
        v_cndmask_b32 v27, v28, v27, vcc
        s_lshl_b32 {sT2}, {sX}, 7
        s_add_u32 {sT2}, {sT2}, {O_F2X}
        v_writelane_b32 v27, {sT2}, 14
        s_lshl_b32 {sT2}, {sRB}, 7
        s_add_u32 {sT2}, {sT2}, {O_FX0}
        v_writelane_b32 v27, {sT2}, 15
        s_sub_u32 {sT3}, {sT3}, {O_ST[1] - O_ST[0]}
        v_writelane_b32 v27, {sT3}, 16
        s_add_u32 {sT3}, {sT3}, 128
        v_writelane_b32 v27, {sT3}, 17
        s_add_u32 {sT3}, {sT3}, 128
        v_writelane_b32 v27, {sT3}, 18
        s_add_u32 {sT3}, {sT3}, 128
        v_writelane_b32 v27, {sT3}, 19
        s_mov_b64 exec, 0xfffff
        buffer_load_dword v220, v27, {WS}, 0 offen
        s_mov_b64 exec, -1""")
        self.srd(SE, "wo", 576 * 1152)
        p(f"s_mul_i32 {sT1}, {sHG}, 144")
        for i in range(4): p(f"s_mov_b32 m0, {L_WOT + 1024*i}\nbuffer_load_dwordx4 v{216+i}, {SE}, {sT1} offen lds")
        self.marks_p()
        p.waitall()
        p(f"v_mul_u32_u24 v26, 144, v1\nv_mov_b32 v28, 0\nv_mov_b32 v29, 0")
        hq = [p(f"ds_read_b128 {vr(32+4*i,4)}, v26 offset:{L_Q + 16*i}") for i in range(9)]
        for d in range(36):
            p.wait(hq[d // 4]); p(f"v_dot2c_f32_bf16 v28, {sONE2}, v{32+d}\nv_dot2c_f32_bf16 v29, v{32+d}, v{32+d}")
        p(f"""s_lshl_b32 {sT1}, {sRB}, 3
        s_add_u32 {sT1}, {sT1}, {sHG}
        s_lshl_b32 {sT1}, {sT1}, 9
        s_add_u32 {sT1}, {sT1}, {O_ST[0]}
        v_lshlrev_b32 v26, 3, v1
        """)
        self.dual(f"buffer_store_dwordx2 v[28:29], v26, {WS}, {sT1} offen")
        p(f"s_add_u32 {sT1}, {sT1}, {O_ST[2] - O_ST[0]}")
        self.dual(f"buffer_store_dwordx2 v[72:73], v26, {WS}, {sT1} offen")
        p(f"s_lshl_b32 {sT1}, {sRB}, 7\ns_lshl_b32 {sT2}, {sHG}, 2\ns_add_u32 {sT1}, {sT1}, {sT2}\ns_add_u32 {sT1}, {sT1}, {O_FX0}")
        p.waitall(); self.setflag(sT1, 26, True)
        self.poll(30, 0, 27, sleep=o.get('wsleep', 0)); self.lds_signal(2, 76); self.stamp("wseen")
        win = o.get("w_win", 40); k0 = o.get("k0", 12); k1 = o.get("k1", 28)
        f2poll()
        for g in wl[:k0]: g()
        p(f"""v_bfe_u32 v76, v1, 2, 2
        v_mul_u32_u24 v76, 144, v76
        v_and_b32 v77, 1, v1
        v_lshl_add_u32 v78, v77, 3, v76
        v_and_b32 v77, 3, v1
        v_lshl_add_u32 v76, v77, 3, v76
        v_lshrrev_b32 v77, 4, v1
        v_lshl_add_u32 v76, v77, 5, v76
        v_and_b32 v79, 15, v1
        v_lshlrev_b32 v79, 4, v79
        v_lshl_add_u32 v79, v77, 10, v79
        s_lshr_b32 {sT1}, {sRB}, 2
        s_mul_i32 {sT1}, {sT1}, 4608
        s_mul_i32 {sT2}, {sHG}, 82944
        s_add_u32 {sT1}, {sT1}, {sT2}
        s_add_u32 {sT1}, {sT1}, {O_WO}
        s_and_b32 {sT2}, {sRB}, 3
        s_lshl_b32 {sT2}, {sT2}, 7
        s_add_u32 {sT1}, {sT1}, {sT2}
        s_add_u32 {sT3}, {sT1}, 4096
        s_add_u32 {sT1}, {sT1}, {sT2}""")
        hw = []
        for c in range(3):
            for k, (a, of) in enumerate(((76, 0), (76, 576), (78, 128), (78, 704))):
                h = p(f"ds_read_b64_tr_b16 {vr(80+8*c+2*k,2)}, v{a} offset:{L_WOT + 1152*c + of}")
            hw.append(h)
        Lc = p.lab("c3")
        for c in (2, 0, 1):
            p.wait(hw[2])
            if c == 2: p(f"s_cmp_ge_u32 {sRB}, 8\ns_cbranch_scc1 {Lc}")
            hs = p(f"""s_add_u32 {sT2}, {sT1}, {8*4608*c}
            buffer_store_dwordx4 {vr(80+8*c,4)}, v79, {WS}, {sT2} offen sc1
            s_add_u32 {sT2}, {sT3}, {8*4608*c}
            s_mov_b64 exec, 0xff
            buffer_store_dwordx4 {vr(84+8*c,4)}, v79, {WS}, {sT2} offen sc1""")
            p("s_mov_b64 exec, -1")
            if c == 2: p(f"{Lc}:")
        for g in wl[k0:k1]: g()
        p.wait(hs)
        p(f"s_lshl_b32 {sT3}, {sHG}, 7\ns_lshl_b32 {sT4}, {sRB}, 2\ns_add_u32 {sT3}, {sT3}, {sT4}\ns_add_u32 {sT3}, {sT3}, {O_F2C}")
        self.setflag(sT3, 26)
        for g in wl[k1:NI]: g()
        L2 = p.lab("w2"); p(f"s_branch {L2}\n{L}:")
        p.waitall(); wflag()
        self.lds_wait(2, 1, 26)
        for i, g in enumerate(wl[:NI]):
            g()
            if i >= win: p(f"s_waitcnt vmcnt({win})")
        p(f"{L2}:")
        p(f"{LJ}:")
        X, Tt, Y, R = 76, 96, 116, 136
        self.stamp("wl0")
        self.lds_wait(1, 1, 26)
        p(f"""s_sub_u32 {sFAST}, {sT5}, 1
        v_and_b32 v26, 15, v1
        s_lshl_b32 {sT0}, {sW}, 4
        v_add_u32 v27, {sT0}, v26
        v_mul_u32_u24 v27, 144, v27
        v_lshrrev_b32 v28, 4, v1
        v_lshl_add_u32 v27, v28, 3, v27""")
        for t in range(5): hq = p(f"ds_read_b64 {vr(RES+2*t,2)}, v27 offset:{L_Q + 32*t}")
        p(f"""v_and_b32 v27, 1, v26
        v_lshlrev_b32 v27, 7, v27
        v_lshrrev_b32 v28, 3, v26
        v_lshl_add_u32 v27, v28, 6, v27
        v_bfe_u32 v28, v26, 1, 2
        v_lshl_add_u32 v26, v28, 4, v27
        s_lshl_b32 {sT0}, {sW}, 8
        s_add_u32 {sT0}, {sT0}, {LM_CS}
        v_add_u32 v26, {sT0}, v26
        v_lshrrev_b32 v27, 1, v1
        v_lshlrev_b32 v27, 7, v27
        v_and_b32 v28, 1, v1
        v_lshl_add_u32 v27, v28, 4, v27
        v_mov_b32 v28, 0x40000000
        v_cmp_gt_u32 vcc, 16, v1
        v_cndmask_b32 v29, v28, v27, vcc
        s_mul_i32 {sT4}, {sW}, 3072
        v_lshl_add_u32 v30, v1, 3, {sT4}
        s_mul_i32 {sT3}, {sRB}, 73728
        s_mul_i32 {sT1}, {sHG}, 9216
        s_add_u32 {sT3}, {sT3}, {sT1}
        s_lshl_b32 {sT1}, {sW}, 5
        s_add_u32 {sT3}, {sT3}, {sT1}
        s_add_u32 {sT3}, {sT3}, {O_Y}""")
        p(f"v_lshrrev_b32 v28, 4, v1\nv_mul_u32_u24 v28, 504, v28\nv_sub_u32 v223, v{vXT}, v28")
        ld = self.tile_stats_load(0, 64, 68)
        p(f"s_mov_b32 {sNC}, {sT1}\ns_add_u32 {sFOLD}, {sT3}, 4096\ns_add_u32 {sFH}, {sT3}, 8192")
        self.lds_wait(7, 1, 70)
        self.stamp("w7")
        p(f"s_mov_b32 {sT1}, {sNC}"); ld()
        ydma = "\n".join(f"s_add_u32 m0, {sT4}, {1024*i}\ns_nop 0\nbuffer_load_dwordx4 v{27 if i < 2 else 29}, {WS}, {(sT3, sFOLD, sFH)[i]} offen sc1 lds" for i in range(3))
        hy = p(ydma)
        late = {r for f in range(72) for r in parse_reg(wreg(f))}
        p.forget(lambda h: h.seq > seq_idle and h.dst & late)
        pf = [0]
        def rest(a, b):
            S, E = p.lab("pf"), p.lab("pfe")
            p(f"s_cmp_eq_u32 {sCONV}, 0"); p.raw(f"s_cbranch_scc1 {S}")
            for g in wl[a:b]: g()
            p.raw(f"{E}:"); self.tail.append(f"{S}:")
            for i in range(a, b):
                self.tail += [f"s_add_u32 {sKB}, {sWP}, {36864 + 1024 * pf[0]}", f"buffer_load_dwordx4 v[176:179], v{15 if o.get('pfb') else 160}, {WS}, {sKB} offen sc1"]; pf[0] += 1
            self.tail.append(f"s_branch {E}")
        NB = min(NA + o.get("w_b", 8), NI)
        if NA < NB: rest(NA, NB)
        p.wait(hq)
        self.unpack(X, RES, 10)
        p.wait(hy)
        self.stamp("wland")
        Lr, Lo, Lk = p.lab("py"), p.lab("po"), p.lab("pk")
        p(f"s_mov_b32 {sPC}, 0"); p.raw(f"{Lr}:")
        hy = [p(f"ds_read_b64_tr_b16 {vr(YT+2*t,2)}, v30 offset:{512*t}") for t in range(5)]
        for t in range(5):
            p.wait(hy[t]); self.unpack(Y + 4 * t, YT + 2 * t, 2)
            if t == 0: p(f"v_max3_u32 v28, v{Y}, v{Y+1}, v{Y+2}\nv_max_u32 v28, v28, v{Y+3}")
            else: p(f"v_max3_u32 v28, v28, v{Y+4*t}, v{Y+4*t+1}\nv_max3_u32 v28, v28, v{Y+4*t+2}, v{Y+4*t+3}")
        p(f"v_cmp_eq_u32 vcc, {sHI}, v28"); p.raw(f"s_cbranch_vccnz {Lo}\n{Lk}:")
        self.tail += [f"{Lo}:", f"s_add_u32 {sPC}, {sPC}, 1", f"s_cmp_gt_u32 {sPC}, {SPIN // 10}", f"s_cbranch_scc1 {Lk}", f"s_sleep {o.get('ysleep', 2)}"]
        self.tail += ydma.split("\n") + ["s_waitcnt vmcnt(0)", f"s_branch {Lr}"]
        if NB < NI: rest(NB, NI)
        if o.get("cs_at", 0) == 0: self.small_loads()
        self.tile_stats_finish(64, R); self.norm_tile(Tt, X, R)
        self.stamp("yland"); self.note("yre", sPC)
        def cs_part():
            p.wait(self.hcs)
            for i in range(1, 8):
                for h in (0, 2): p(f"v_pk_add_f32 {vr(144+h,2)}, {vr(144+h,2)}, {vr(144+4*i+h,2)}")
            for sw in ("16", "32"):
                for i in range(4): p(f"v_mov_b32 v{148+i}, v{144+i}")
                for i in range(4): p(f"v_permlane{sw}_swap_b32 v{144+i}, v{148+i}")
                for h in (0, 2): p(f"v_pk_add_f32 {vr(144+h,2)}, {vr(144+h,2)}, {vr(148+h,2)}")
            p("s_mov_b64 exec, 0xffff\nds_write_b128 v26, v[144:147]\ns_mov_b64 exec, -1")
        def more():
            if o.get("cs_at", 0) == 1: self.small_loads()
            for g in wl[NI:NP]: g()
        self.cs_part = cs_part
        self.publish_z(0, X, Tt, Y, 140, None, more)

    def wo_dma(self):
        p = self.p; out = []
        out.append(lambda: p(f"s_mul_i32 {sNC}, {sHG}, 82944\ns_add_u32 {sNC}, {sNC}, {O_WO}\ns_add_u32 {sNC}, {sNC}, {sW10}"))
        for i in range(21):
            def g(i=i):
                L = None
                if i == 20: L = p.lab("wo"); p(f"s_cmp_ge_u32 {sW}, 1\ns_cbranch_scc1 {L}")
                p(f"s_add_u32 m0, {sW10}, {L_W + 4096*i}\ns_add_u32 {sO}, {sNC}, {4096*i}\nbuffer_load_dwordx4 v{v16L}, {WS}, {sO} offen sc1 lds")
                if L: p(f"{L}:")
            out.append(g)
        return out

    def softmax(self, t, rl, E, tmp, out, pk):
        p = self.p; F = []
        a = lambda c, s: F.append((c, lambda: p(s)))
        mx, mn, c1, c2 = tmp, tmp + 1, tmp + 2, tmp + 3
        a(4, f"v_max3_f32 v{mx}, v{t}, v{t+1}, v{t+2}"); a(4, f"v_max3_f32 v{mn}, -v{t}, -v{t+1}, -v{t+2}")
        for i in (3, 5, 7):
            a(4, f"v_max3_f32 v{mx}, v{mx}, v{t+i}, v{t+i+1}"); a(4, f"v_max3_f32 v{mn}, v{mn}, -v{t+i}, -v{t+i+1}")
        a(12, f"v_permlane32_swap_b32 v{mx}, v{mn}")
        a(4, f"v_max_f32 v{mx}, v{mx}, v{mn}")
        a(4, f"v_mul_f32 v{c1}, -v{mx}, v{rl}"); a(4, f"v_mul_f32 v{c2}, -v{mx}, v{rl}")
        a(12, f"v_permlane32_swap_b32 v{c1}, v{c2}")
        P, N = E, E + 10
        assert rl % 2 == 0 and c1 % 2 == 0
        if pk:
            for i in range(0, 8, 2):
                a(5, f"v_pk_fma_f32 {vr(P+i,2)}, {vr(t+i,2)}, {vr(rl,2)}, {vr(c1,2)} op_sel_hi:[1,0,0]")
                a(5, f"v_pk_fma_f32 {vr(N+i,2)}, {vr(t+i,2)}, {vr(rl,2)}, {vr(c1,2)} op_sel:[0,0,1] op_sel_hi:[1,0,1] neg_lo:[1,0,0] neg_hi:[1,0,0]")
        for i in range(8 if pk else 0, 9):
            a(4, f"v_fma_f32 v{P+i}, v{t+i}, v{rl}, v{c1}"); a(4, f"v_fma_f32 v{N+i}, -v{t+i}, v{rl}, v{c2}")
        for i in range(9):
            a(8, f"v_exp_f32 v{P+i}, v{P+i}"); a(8, f"v_exp_f32 v{N+i}, v{N+i}")
        s1, s2 = tmp, tmp + 2
        if pk:
            a(5, f"v_pk_add_f32 {vr(s1,2)}, {vr(P,2)}, {vr(P+2,2)}"); a(5, f"v_pk_add_f32 {vr(s2,2)}, {vr(N,2)}, {vr(N+2,2)}")
            for i in (4, 6):
                a(5, f"v_pk_add_f32 {vr(s1,2)}, {vr(s1,2)}, {vr(P+i,2)}"); a(5, f"v_pk_add_f32 {vr(s2,2)}, {vr(s2,2)}, {vr(N+i,2)}")
        else:
            for h in range(2):
                a(4, f"v_add_f32 v{s1+h}, v{P+h}, v{P+2+h}"); a(4, f"v_add_f32 v{s2+h}, v{N+h}, v{N+2+h}")
            for i in (4, 6):
                for h in range(2):
                    a(4, f"v_add_f32 v{s1+h}, v{s1+h}, v{P+i+h}"); a(4, f"v_add_f32 v{s2+h}, v{s2+h}, v{N+i+h}")
        a(4, f"v_add_f32 v{s1}, v{s1}, v{s1+1}"); a(4, f"v_add_f32 v{s2}, v{s2}, v{s2+1}")
        a(4, f"v_add_f32 v{s1}, v{s1}, v{P+8}"); a(4, f"v_add_f32 v{s2}, v{s2}, v{N+8}")
        a(12, f"v_permlane32_swap_b32 v{s1}, v{s2}")
        a(4, f"v_add_f32 v{s1}, v{s1}, v{s2}")
        a(8, f"v_rcp_f32 v{s1}, v{s1}"); a(8, f"v_mov_b32 v{s1+1}, v{s1}")
        a(12, f"v_permlane32_swap_b32 v{s1}, v{s1+1}")
        if pk:
            for i in range(0, 8, 2):
                a(5, f"v_pk_mul_f32 {vr(P+i,2)}, {vr(P+i,2)}, {vr(s1,2)} op_sel_hi:[1,0]")
                a(5, f"v_pk_mul_f32 {vr(N+i,2)}, {vr(N+i,2)}, {vr(s1,2)} op_sel:[0,1]")
        for i in range(8 if pk else 0, 9):
            a(4, f"v_mul_f32 v{P+i}, v{P+i}, v{s1}"); a(4, f"v_mul_f32 v{N+i}, v{N+i}, v{s1+1}")
        for i in range(4): a(4, f"v_cvt_pk_bf16_f32 v{out[i]}, v{P+2*i}, v{P+2*i+1}")
        for i in range(4): a(4, f"v_cvt_pk_bf16_f32 v{out[4+i]}, v{N+2*i}, v{N+2*i+1}")
        a(4, f"v_cvt_pk_bf16_f32 v{out[8]}, v{P+8}, v{N+8}")
        return F

    def layer(self, L):
        p = self.p; o = self.opt
        A_, B_ = [32, 48], [64, 80]; FB, CS, PK, E, TMP = 96, 128, [156, 172], 188, 208
        RL = [212, 214]; RS = [216, 217]; vB = 218
        WA = [219, 220, 221, 222]; RA = [26, 27, 28]; PA = 120
        hZ = {}; hst = []
        def zdma(n):
            T, i = divmod(n, 9)
            p(f"s_add_u32 m0, {sW10}, {SUB*T + 4096*i}\ns_add_u32 {sO}, {sT3}, {SUB*T + 4096*i}")
            hZ[n] = p(f"buffer_load_dwordx4 v{v16L}, {WS}, {sO} offen sc1 lds")
        p(f"s_add_u32 {sT3}, {sZ}, {sW10}")
        NU = o.get("NU", 6)
        for n in range(NU): zdma(n)
        if L == 0: self.cs_part(); p.waitall(vm=False)
        p(f"""v_lshrrev_b32 v29, 5, v1
        v_lshlrev_b32 v29, 7, v29
        s_lshl_b32 {sT0}, {sW}, 8
        s_add_u32 {sT0}, {sT0}, {LM_CS}
        v_add_u32 v29, {sT0}, v29
        v_add_u32 v{vB}, {SUB}, v{v16L}
        v_lshlrev_b32 v31, 3, v1
        s_lshl_b32 {sT4}, {sRB}, 12
        s_add_u32 {sT4}, {sT4}, {O_ST[1]}""")
        for i in range(7): hcs = p(f"ds_read_b128 {vr(CS+4*i,4)}, v29 offset:{16*i}")
        bud = o.get("budget", 16)
        stl = [(lambda i=i: hst.append(p(f"buffer_load_dwordx2 {vr(PK[1]+2*i,2)}, v31, {WS}, {sT4} offen offset:{512*i} sc1"))) for i in range(8)]
        zl = [(lambda n=n: zdma(n)) for n in range(NU, 18)]
        mem = {}; n = 1
        for g in zl[:13 - NU]: mem[n] = g; n += 2
        for g in stl: mem[n] = g; n += o.get("st_step", 2)
        for g in zl[13 - NU:]: mem[n] = g; n += 2
        nmem = n
        def lines(text, c=4): return [(c, (lambda s=s: p(s))) for s in text.strip().split("\n")]
        S = PK[1]
        stats = [(0, lambda: p.wait(*hst), o.get('st_at', 38))]
        for i in range(1, 8): stats += lines(f"v_add_f32 v{S}, v{S}, v{S+2*i}\nv_add_f32 v{S+1}, v{S+1}, v{S+2*i+1}")
        stats += lines(f"""v_mul_f32 v{RL[0]+1}, {INV576 | 0x80000000}, v{S}
        v_mul_f32 v{S+1}, {INV576}, v{S+1}
        v_fma_f32 v{S+1}, -v{RL[0]+1}, v{RL[0]+1}, v{S+1}
        v_mov_b32 v{RL[1]+1}, v{RL[0]+1}
        v_max_f32 v{S+1}, 0, v{S+1}
        v_add_f32 v{S+1}, {EPS}, v{S+1}
        v_rsq_f32 v{RS[0]}, v{S+1}
        v_permlane32_swap_b32 v{RL[0]+1}, v{RL[1]+1}
        v_mov_b32 v{RS[1]}, v{RS[0]}
        s_nop 1
        v_permlane32_swap_b32 v{RS[0]}, v{RS[1]}
        v_mul_f32 v{RL[0]}, {LOG2E}, v{RS[0]}
        v_mul_f32 v{RL[1]}, {LOG2E}, v{RS[1]}""")
        addr = lines(f"""v_and_b32 v{E}, 31, v1
        v_bfe_u32 v{E+1}, v1, 1, 1
        v_lshlrev_b32 v{E+1}, 2, v{E+1}
        v_and_b32 v{E+2}, 1, v1
        v_lshl_add_u32 v{E+1}, v{E+2}, 1, v{E+1}
        v_bfe_u32 v{E+2}, v1, 2, 1
        v_add_u32 v{E+1}, v{E+1}, v{E+2}
        v_lshlrev_b32 v{E+1}, 4, v{E+1}
        v_lshl_add_u32 v{E}, v{E}, 7, v{E+1}
        s_lshl_b32 {sT0}, {sW}, 13
        v_add_u32 v{E}, {sT0}, v{E}
        v_lshrrev_b32 v{E+1}, 5, v1
        v_lshlrev_b32 v{E+2}, 5, v{E+1}
        v_xor_b32 v{WA[0]}, v{E}, v{E+2}
        v_xor_b32 v{WA[1]}, 16, v{WA[0]}
        v_lshlrev_b32 v{E+2}, 4, v{E+1}
        v_or_b32 v{E+2}, 64, v{E+2}
        v_xor_b32 v{WA[2]}, v{E}, v{E+2}
        v_xor_b32 v{WA[3]}, 32, v{WA[2]}
        v_bfe_u32 v{E}, v1, 2, 2
        v_lshl_add_u32 v{E}, v{E+1}, 2, v{E}
        v_bfe_u32 v{E+2}, v{E}, 1, 1
        v_lshlrev_b32 v{E+2}, 2, v{E+2}
        v_and_b32 v{E+3}, 1, v{E}
        v_lshl_add_u32 v{E+2}, v{E+3}, 1, v{E+2}
        v_add_u32 v{E+2}, v{E+2}, v{E+1}
        v_lshlrev_b32 v{E+2}, 4, v{E+2}
        v_lshl_add_u32 v{E}, v{E}, 7, v{E+2}
        v_add_u32 v{E}, {sT0}, v{E}
        v_and_b32 v{E+1}, 1, v1
        v_bfe_u32 v{E+2}, v1, 1, 1
        v_bfe_u32 v{E+3}, v1, 4, 1
        v_lshlrev_b32 v{RA[0]}, 5, v{E+1}
        v_lshl_add_u32 v{RA[0]}, v{E+3}, 4, v{RA[0]}
        v_xor_b32 v{RA[0]}, v{E}, v{RA[0]}
        v_lshl_add_u32 v{RA[0]}, v{E+2}, 3, v{RA[0]}
        v_lshlrev_b32 v{RA[1]}, 4, v{E+1}
        v_or_b32 v{RA[1]}, 64, v{RA[1]}
        v_xor_b32 v{RA[1]}, v{E}, v{RA[1]}
        v_xor_b32 v{RA[2]}, 32, v{RA[1]}
        v_lshl_add_u32 v{RA[2]}, v{E+2}, 3, v{RA[2]}
        v_add_u32 v{E+4}, 8, v{RA[1]}
        v_cmp_eq_u32 vcc, 1, v{E+3}
        v_lshrrev_b32 v29, 5, v1
        v_cndmask_b32 v{RA[2]}, v{RA[2]}, v{E+4}, vcc
        v_mul_u32_u24 v29, 20, v29
        v_and_b32 v30, 31, v1
        v_add_u32 v29, v29, v30
        v_cmp_lt_u32 vcc, 19, v30
        v_add_u32 v30, -2, v29
        s_nop 0
        v_cndmask_b32 v30, v29, v30, vcc
        v_lshlrev_b32 v29, 4, v30
        v_lshlrev_b32 v30, 2, v30""")
        def kpart(T):
            A, k, nm, r = A_[T], PK[T], RL[T] + 1, RS[T]
            F = [(0, lambda: p.wait(hcs))]
            F += lines("\n".join(f"v_fmac_f32 v{A+i}, v{CS+i}, v{nm}" for i in range(16)))
            F += self.softmax(A, RL[T], E, TMP, [k + i for i in range(9)], False)
            F += lines("\n".join(f"v_mul_f32 v{A+i}, v{A+i}, v{r}" for i in range(9, 16)))
            F += lines("\n".join(f"v_cvt_pk_bf16_f32 v{k+12+i}, v{A+9+2*i}, v{A+10+2*i}" for i in range(3)))
            F += lines(f"v_mov_b32 v{k+9}, 0\nv_mov_b32 v{k+11}, 0")
            return F
        def vtail(T):
            A, B, k, nm, r = A_[T], B_[T], PK[T], RL[T] + 1, RS[T]
            return lines(f"""v_fmac_f32 v{B+9}, v{CS+25}, v{nm}
            v_fmac_f32 v{B+10}, v{CS+26}, v{nm}
            v_mul_f32 v{B+9}, v{B+9}, v{r}
            v_mul_f32 v{B+10}, v{B+10}, v{r}
            v_cvt_pk_bf16_f32 v{k+15}, v{A+15}, v{B+9}
            v_cvt_pk_bf16_f32 v{k+10}, v{B+10}, 1.0""")
        hw = {}
        def wr(T, idx):
            def g():
                for i in idx: hw[T] = p(f"ds_write_b128 v{WA[i]}, {vr(PK[T]+4*i,4)} offset:{4096*T}")
            return [(4 * len(idx), g)]
        hA = {}; FR = [156, 188, 96, 108]
        def rd_part(s):
            def g():
                p.wait(hw[s >> 1])
                for i in range(3):
                    for rd in range(2): hA[s] = p(f"ds_read_b64_tr_b16 {vr(FR[s]+4*i+2*rd,2)}, v{RA[i]} offset:{2048*s + 1024*rd}")
            return [(24, g)]
        seq = [(tile, T, ks) for tile in range(2) for T in range(2) for ks in range(36)]
        PD = o.get("PD", 6); hF = {}
        def rd_frag(n):
            tile, T, ks = seq[n]
            hF[n] = p(f"ds_read_b128 {vr(FB + 4*(n&7), 4)}, v{vB if T else v16L} offset:{1024*ks}")
        need = {4: (1, 0), 8: (3, 3), 16: (5, 10), 24: (8, 18), 36: (12, 30), 52: (17, 49)}
        fa = o.get("free_at", 110); WG = o.get("WG", 2); nxt = [4]
        def step(n):
            def g():
                tile, T, ks = seq[n]; d = vr((A_, B_)[tile][T], 16)
                p.wait(hF[n], self.hW.get(2 * ks + tile))
                p(f"{M32} {d}, {wreg(2*ks+tile)}, {vr(FB + 4*(n&7), 4)}, {d if ks else 0}")
                for _ in range(2):
                    m = nxt[0]
                    if m >= 144 or m > n + PD or (m in need and n < need[m][1]): break
                    if m in need: p.wait(hZ[need[m][0]]); self.barrier()
                    rd_frag(m); nxt[0] += 1
                if n in mem: mem[n]()
                if n == fa: self.barrier()
                if n % WG == WG - 1 and n < 143 and n > 8: p.wait(hF[min(n + WG, nxt[0] - 1)])
            return g
        p.wait(hZ[0]); self.barrier()
        self.stamp("z0")
        for n in range(4): rd_frag(n)
        if L == 1: mem[60] = lambda: self.clean_l2("g")
        def touch():
            p(f"""s_lshl_b32 {sT1}, {sRB}, 3
            s_add_u32 {sT1}, {sT1}, {sHG}
            s_lshl_b32 {sT1}, {sT1}, 9
            s_add_u32 {sT1}, {sT1}, {O_ST[2]}
            s_lshl_b32 {sT2}, {sG4}, 5
            s_add_u32 {sT2}, {sT2}, {O_FP}
            v_lshl_add_u32 v31, v1, 7, {sT1}
            v_writelane_b32 v31, {sT2}, 4
            s_add_u32 {sT2}, {sFR}, 128
            v_writelane_b32 v31, {sT2}, 5
            s_add_u32 {sT2}, {sFR}, 256
            v_writelane_b32 v31, {sT2}, 6
            s_mov_b64 exec, 127
            buffer_load_dword v31, v31, {WS}, 0 offen
            s_mov_b64 exec, -1""")
        wo = self.wo_dma() if L == 0 else []
        na, nb = o.get("wo_g", 0), o.get("wo_p", 11)
        hf2 = []
        if L == 0:
            rest = self.wp_loads()[self.NP:]
            assert self.NP % 2 == 0
            n = nmem
            for i, g in enumerate(rest): mem[n] = g; n += 1 if i % o.get('b_mod', 4) == 0 else 2
            mem[n] = touch; n += 2
            def f2c():
                p(f"v_and_b32 v223, 31, v1\nv_lshlrev_b32 v223, 2, v223\ns_lshl_b32 {sFH}, {sHG}, 7\ns_add_u32 {sFH}, {sFH}, {O_F2C}")
                hf2.append(p(f"buffer_load_dword v15, v223, {WS}, {sFH} offen sc1"))
            def f2chk():
                Lr, Lo, Lk = p.lab("fr"), p.lab("fo"), p.lab("fk")
                p(f"s_mov_b32 {sPC}, 0"); p.wait(hf2[0]); p.raw(f"{Lr}:")
                p(f"v_cmp_ne_u32 vcc, {sN}, v15"); p.raw(f"s_cbranch_vccnz {Lo}\n{Lk}:")
                self.tail += [f"{Lo}:", f"s_add_u32 {sPC}, {sPC}, 1", f"s_cmp_gt_u32 {sPC}, {SPIN}", f"s_cbranch_scc1 {Lk}",
                              f"buffer_load_dword v15, v223, {WS}, {sFH} offen sc1", "s_waitcnt vmcnt(0)", f"s_branch {Lr}"]
            mem[n] = f2c; n += 16
            mem[n] = f2chk; n += 1
            for g in wo[:1 + na]: mem[n] = g; n += 2
            assert n <= 144
        K0, K1 = kpart(0), kpart(1)
        left = mix(p, [step(n) for n in range(0, 38)], addr, bud, False)
        self.stamp("p1")
        left = mix(p, [step(n) for n in range(38, 74)], left + stats + K0, bud, False, 38)
        self.stamp("p2")
        left = mix(p, [step(n) for n in range(74, fa + 1)], left + K1, bud, False)
        self.stamp("p3")
        mix(p, [step(n) for n in range(fa + 1, 144)], vtail(0) + wr(0, [0, 1]) + wr(0, [2, 3]) + left + wr(1, [0, 1]) + rd_part(0) + rd_part(1), bud)
        self.stamp("gemm")
        KV0, KV1 = A_
        def mm_part(s):
            b = FR[s]; p.wait(hA[s])
            p(f"{M32} {vr(KV0,16)}, {vr(b,4)}, {vr(b+8,4)}, {vr(KV0,16) if s else 0}")
            p(f"{M32} {vr(KV1,16)}, {vr(b+4,4)}, {vr(b+8,4)}, {vr(KV1,16) if s else 0}")
        p(f"""s_lshl_b32 {sT1}, {sW}, 9
        s_mul_i32 {sT2}, {sHG}, 2304
        s_add_u32 {sT1}, {sT1}, {sT2}
        s_add_u32 {sT1}, {sT1}, {sZ}
        s_add_u32 {sT1}, {sT1}, {self.OO - self.OZ}
        s_add_u32 {sT2}, {sT1}, {2*18432 + 256}""")
        run(vtail(1)); run(wr(1, [2, 3]))
        mm_part(0); mm_part(1)
        run(rd_part(2)); run(rd_part(3))
        p(f"""v_lshrrev_b32 v{PA+2}, 9, v29
        v_mul_u32_u24 v{PA+2}, {18432 - 512}, v{PA+2}
        v_add_u32 v{PA}, v29, v{PA+2}
        v_add_u32 v{PA+3}, 640, v29
        v_lshrrev_b32 v{PA+2}, 9, v{PA+3}
        v_mul_u32_u24 v{PA+2}, {18432 - 512}, v{PA+2}
        v_add_u32 v{PA+1}, v{PA+3}, v{PA+2}""")
        mm_part(2); mm_part(3)
        for d in range(9): p(f"v_cvt_pk_bf16_f32 v{96+d}, v{(KV0 + 2*d) if d < 8 else (KV1 + 2*d - 16)}, v{(KV0 + 2*d + 1) if d < 8 else (KV1 + 2*d - 15)}")
        self.dual(f"""s_mov_b64 exec, {M40}
        buffer_store_dwordx4 v[96:99], v{PA}, {WS}, {sT1} offen
        buffer_store_dwordx4 v[100:103], v{PA+1}, {WS}, {sT1} offen
        buffer_store_dword v104, v30, {WS}, {sT2} offen
        s_mov_b64 exec, -1""")
        self.stamp("part")
        def qsoft(T, half):
            A, B, rl = A_[T], B_[T], RL[T]
            F = lines("\n".join(f"v_pk_fma_f32 {vr(B+i,2)}, {vr(CS+16+i,2)}, {vr(rl,2)}, {vr(B+i,2)} op_sel:[0,1,0]" for i in range(0, 8, 2)))
            F += lines(f"v_fmac_f32 v{B+8}, v{CS+24}, v{rl+1}")
            F += self.softmax(B, rl, E, TMP, [A + i for i in range(9)], True)
            F += lines("\n".join(f"v_mov_b32 v{A+9+i}, 0" for i in range(3)))
            n = o.get("qsplit", 45)
            run(F[:n] if half == 0 else F[n:])
        p(f"""s_lshl_b32 {sT0}, {sG4}, 5
        s_add_u32 {sT0}, {sT0}, {O_FP + 64*L}
        s_lshl_b32 {sT1}, {sI4}, 2
        s_lshl_b32 {sT2}, {sW}, 4
        s_add_u32 {sT1}, {sT1}, {sT2}
        s_add_u32 {sT1}, {sT1}, {sT0}
        s_lshl_b32 {sT2}, {sI4}, 4
        s_add_u32 {sT0}, {sT0}, {sT2}""")
        qsoft(0, 0)
        p.waitall(); self.setflag(sT1, 106, True)
        self.stamp("ack1")
        p(f"""v_lshlrev_b32 v116, 3, v0
        v_mov_b32 v118, 0x40000000
        v_cmp_gt_u32 vcc, 180, v0
        s_mul_i32 {sT2}, {sX}, {4*73728}
        v_cndmask_b32 v116, v118, v116, vcc
        s_lshl_b32 {sT3}, {sI4}, 9
        s_mul_i32 {sT4}, {sW}, {18432 - 512}
        v_add_u32 v117, {sT4}, v116
        s_add_u32 {sT2}, {sT2}, {sT3}
        s_mul_i32 {sT3}, {sHG}, 2304
        s_add_u32 {sT2}, {sT2}, {sT3}
        s_add_u32 {sT2}, {sT2}, {self.OO}
        s_lshl_b32 {sT3}, {sHG}, 2
        s_add_u32 {sT3}, {sT3}, {sI4}
        s_lshl_b32 {sT3}, {sT3}, 3
        s_add_u32 {sT3}, {sT3}, {sX}
        s_lshl_b32 {sT3}, {sT3}, 11
        s_add_u32 {sT3}, {sT3}, {O_P2[L]}""")
        p("v_and_b32 v96, 3, v1\nv_lshlrev_b32 v96, 2, v96")
        self.poll(96, sT0, 97)
        self.stamp("Fp")
        hr = []
        for pp in range(4):
            hr.append(p(f"buffer_load_dwordx2 {vr(96+2*pp,2)}, v117, {WS}, {sT2} offen sc1"))
            if pp < 3: p(f"s_add_u32 {sT2}, {sT2}, 73728")
        p.wait(hr[0]); self.unpack(104, 96, 2)
        for pp in range(1, 4):
            p.wait(hr[pp])
            for d in range(2): p(f"v_dot2c_f32_bf16 v{104+2*d}, {sONE}, v{96+2*pp+d}\nv_dot2c_f32_bf16 v{105+2*d}, {sONEH}, v{96+2*pp+d}")
        p("""v_cvt_pk_bf16_f32 v96, v104, v105
        v_cvt_pk_bf16_f32 v97, v106, v107
        v_min_u32 v96, -2, v96
        v_min_u32 v97, -2, v97""")
        hs = p(f"buffer_store_dwordx2 v[96:97], v116, {WS}, {sT3} offen sc1")
        self.stamp("lred")
        for g in wo[1 + na:1 + na + nb]: g()
        qsoft(0, 1); qsoft(1, 0); qsoft(1, 1)
        p(f"""s_lshl_b32 {sT0}, {sHEAD}, 14
        s_add_u32 {sT0}, {sT0}, {O_P2[L]}
        s_mul_i32 {sT3}, {sHG}, 2304
        s_add_u32 {sT3}, {sT3}, {sZ}
        s_add_u32 {sT3}, {sT3}, {self.OO - self.OZ}
        s_add_u32 {sT4}, {sT3}, 36864
        v_bfe_u32 v26, v1, 4, 1
        v_mul_u32_u24 v26, 18432, v26
        v_and_b32 v27, 15, v1
        v_lshl_add_u32 v26, v27, 4, v26
        v_lshrrev_b32 v27, 5, v1
        s_lshl_b32 {sT2}, {sW}, 1
        v_add_u32 v27, {sT2}, v27
        v_lshl_add_u32 v28, v27, 1, v26
        v_lshl_add_u32 v26, v27, 8, v26
        v_mov_b32 v205, 0
        v_mov_b32 v206, 0
        v_mov_b32 v207, 0""")
        if o.get("gdelay"): p(f"s_sleep {o['gdelay']}")
        self.stamp("Fk")
        hg_ = []; GB, SU, KF = 96, 176, 196
        p(f"s_add_u32 {sT1}, {sT0}, 4096\ns_add_u32 {sT2}, {sT0}, 8192\ns_add_u32 {sO}, {sT0}, 12288\ns_mov_b32 {sPC}, 0")
        def gl(xx):
            b = GB + 10 * xx; of = (xx & 1) * 2048; so = (sT0, sT1, sT2, sO)[xx >> 1]
            return f"""buffer_load_dwordx4 {vr(b,4)}, v29, {WS}, {so} offen offset:{of} sc1
            buffer_load_dwordx4 {vr(b+4,4)}, v29, {WS}, {so} offen offset:{of+640} sc1
            buffer_load_dword v{b+8}, v30, {WS}, {so} offen offset:{of+1280} sc1"""
        p(f"s_mov_b64 exec, {M40}")
        GA = o.get("GA", 5)
        for xx in range(GA): hg_.append(p(gl(xx)))
        for xx in range(8):
            b = GB + 10 * xx; Lr, Lo, Lk = p.lab("gr"), p.lab("go"), p.lab("gk")
            p.raw(f"{Lr}:"); p.wait(hg_[xx])
            if xx == 0: self.stamp("g0")
            p(f"v_max3_u32 v31, v{b}, v{b+2}, v{b+4}\nv_max3_u32 v31, v31, v{b+6}, v{b+8}\nv_cmp_eq_u32 vcc, -1, v31")
            p.raw(f"s_cbranch_vccnz {Lo}\n{Lk}:")
            self.tail += [f"{Lo}:", f"s_add_u32 {sPC}, {sPC}, 1", f"s_cmp_gt_u32 {sPC}, {SPIN // 10}", f"s_cbranch_scc1 {Lk}", "s_waitcnt vmcnt(0)"]
            self.tail += [l.strip() for x2 in range(xx, min(xx + GA, 8)) for l in gl(x2).split("\n")] + [f"s_branch {Lr}"]
            if xx + GA < 8: hg_.append(p(gl(xx + GA)))
            if xx == 0: self.unpack(SU, b, 9)
            else:
                for d in range(9): p(f"v_dot2c_f32_bf16 v{SU+2*d}, {sONE}, v{b+d}\nv_dot2c_f32_bf16 v{SU+2*d+1}, {sONEH}, v{b+d}")
        p("s_mov_b64 exec, -1")
        for d in range(9): p(f"v_cvt_pk_bf16_f32 v{KF+d}, v{SU+2*d}, v{SU+2*d+1}")
        self.stamp("gath"); self.note("gre", sPC)
        for g in wo[1 + na + nb:]: g()
        for T in range(2):
            for s in range(3):
                d = vr(B_[T], 16)
                p(f"{M32} {d}, {vr(KF+4*s,4)}, {vr(A_[T]+4*s,4)}, {d if s else 0}")
        p(f"""v_add_u32 v208, {L_W}, v{v16L}
        v_add_u32 v209, {L_W + 9*4608}, v{v16L}
        v_lshrrev_b32 v210, 4, v1
        v_lshlrev_b32 v210, 3, v210
        v_and_b32 v211, 7, v1
        v_add_u32 v210, v210, v211
        v_lshlrev_b32 v210, 4, v210
        v_add_u32 v211, {L_W + 9*4608 + 4096}, v210
        v_add_u32 v210, {L_W + 4096}, v210""")
        for T in range(2):
            B = B_[T]; O = 96 + 4 * T
            p(f"v_add_f32 v{B+10}, {EPS6}, v{B+9}\nv_rcp_f32 v{B+10}, v{B+10}")
            for i in range(0, 8, 2): p(f"v_pk_mul_f32 {vr(B+i,2)}, {vr(B+i,2)}, {vr(B+10,2)} op_sel_hi:[1,0]")
            p(f"v_mul_f32 v{B+8}, v{B+8}, v{B+10}")
            for i in range(4): p(f"v_cvt_pk_bf16_f32 v{O+i}, v{B+2*i}, v{B+2*i+1}")
            p(f"v_cvt_pk_bf16_f32 v{B+8}, v{B+8}, v{B+8}")
            so = sT3 if T == 0 else sT4
            self.dual(f"buffer_store_dwordx4 {vr(O,4)}, v26, {WS}, {so} offen\nbuffer_store_short v{B+8}, v28, {WS}, {so} offen offset:2048")
        self.stamp("ost")
        AC, OF, WF, NS = 32, 52, 124, 4
        hwo = {}
        def rd_wo(s, t):
            a = (208 if t < 4 else 210) + (s >= 9)
            hwo[s, t] = p(f"ds_read_b128 {vr(WF + 20*(s%NS) + 4*t, 4)}, v{a} offset:{4608*(s%9) + 1024*(t&3)}")
        def pre():
            for s in range(NS):
                for t in range(5): rd_wo(s, t)
            p(f"s_mul_i32 {sT0}, {sW}, 18432\ns_add_u32 {sT0}, {sT0}, {sZ}\ns_add_u32 {sT0}, {sT0}, {self.OO - self.OZ}")
        self.rowhop(1 + 3 * L, 212, pre)
        self.stamp("Fo")
        hO = {}; NO = o.get("NO", 6)
        def ld_o(s):
            hO[s] = p(f"buffer_load_dwordx4 {vr(OF+4*s,4)}, v{v16L}, {WS}, {sT0} offen offset:{(s%4)*1024} sc1")
            if s % 4 == 3: p(f"s_add_u32 {sT0}, {sT0}, 4096")
        for s in range(NO): ld_o(s)
        if L == 1: self.clean_l2("o")
        for s in range(18):
            p.wait(hO[s], hwo[s, 4])
            if s == 0: self.stamp("o0")
            for t in range(5):
                d = vr(AC + 4 * t, 4)
                p(f"{M16} {d}, {vr(WF + 20*(s%NS) + 4*t, 4)}, {vr(OF+4*s,4)}, {d if s else 0}")
                if t == 0 and s + NO < 18: ld_o(s + NO)
                if s and s - 1 + NS < 18: rd_wo(s - 1 + NS, t)
        self.stamp("mm")
        X, Tt, Y, R = 56, 76, 96, 116
        self.unpack(X, RES, 10)
        if L == 0:
            for t in range(5):
                for d in (0, 2): p(f"v_pk_add_f32 {vr(X+4*t+d,2)}, {vr(X+4*t+d,2)}, {vr(AC+4*t+d,2)}")
            self.rowstats(X, 124, 2, True)
            self.stamp("s2st")
            ld = self.tile_stats_load(2, 128, 132); self.unpack(Y, YT, 10)
            p(f"v_lshrrev_b32 v28, 4, v1\nv_mul_u32_u24 v28, 504, v28\nv_sub_u32 v223, v{vXT}, v28")
            Lr, Le = p.lab("s2"), p.lab("s2e")
            p.waitall(); p(f"s_mov_b32 {sPC}, 0\n{Lr}:")
            h = ld(); p(f"s_add_u32 {sPC}, {sPC}, 1"); p.wait(h)
            p(f"v_max3_u32 v28, v128, v129, v130\nv_max_u32 v28, v28, v131\nv_cmp_eq_u32 vcc, -1, v28\ns_cmp_gt_u32 {sPC}, {SPIN}\ns_cbranch_scc1 {Le}\ns_cbranch_vccnz {Lr}\n{Le}:")
            self.stamp("s2seen")
            self.tile_stats_finish(128, R); self.norm_tile(Tt, X, R)
            self.publish_z(1, X, Tt, Y, 124)
        else:
            self.srd(SA, "out", TEN)
            p(f"""v_and_b32 v26, 15, v1
            v_mul_u32_u24 v26, 1152, v26
            v_lshrrev_b32 v27, 4, v1
            v_lshl_add_u32 v26, v27, 3, v26
            s_lshl_b32 {sT0}, {sRB}, 2
            s_add_u32 {sT0}, {sT0}, {sW}
            s_mul_i32 {sT0}, {sT0}, 18432
            s_mul_i32 {sT1}, {sHG}, 144
            s_add_u32 {sT0}, {sT0}, {sT1}""")
            for t in range(5):
                for d in (0, 2): p(f"v_pk_add_f32 {vr(X+4*t+d,2)}, {vr(X+4*t+d,2)}, {vr(AC+4*t+d,2)}")
                for d in range(2): p(f"v_cvt_pk_bf16_f32 v{Y+2*t+d}, v{X+4*t+2*d}, v{X+4*t+2*d+1}")
                if t == 4: p("s_mov_b32 exec_hi, 0")
                p(f"buffer_store_dwordx2 {vr(Y+2*t,2)}, v26, {SA}, {sT0} offen offset:{32*t} {o.get('outpol', '')}")
            p("s_mov_b64 exec, -1")

    def build(self):
        p = self.p
        self.prologue(); self.phase0(); self.conv(); self.layer(0); self.layer(1)
        if self.prof: self.stamp("out"); p.waitall(); self.stamp("end")
        if self.opt.get("echo"):
            a, b, f, wg = self.opt["echo"]; Le, Ll = p.lab("ec"), p.lab("el")
            idx = lambda n: [i for i, x in enumerate(self.names) if x == n.split("#")[0]][int((n + "#0").split("#")[1])]
            ra, rb_ = self.STAMP_REGS[idx(a)], self.STAMP_REGS[idx(b)]
            p(f"""s_cmp_lg_u32 s2, {wg}
            s_cbranch_scc1 {Le}
            s_cmp_lg_u32 {sW}, 0
            s_cbranch_scc1 {Le}
            s_sub_u32 {sT0}, s{rb_}, s{ra}""")
            if self.opt.get("skew"):
                op = self.opt["skew"]
                p(f"""v_lshlrev_b32 v4, 4, v1
                s_mov_b32 s88, {O_PROF}
                buffer_load_dwordx4 v[8:11], v4, {WS}, s88 offen sc1
                s_waitcnt vmcnt(0)
                v_{op}3_u32 v8, v8, v9, v10
                v_{op}_u32 v8, v8, v11
                v_readlane_b32 {sT0}, v8, 0""")
                for i in range(1, 64): p(f"v_readlane_b32 {sT1}, v8, {i}\ns_{op}_u32 {sT0}, {sT0}, {sT1}")
                p(f"s_sub_u32 {sT0}, s34, {sT0}" if op == "min" else f"s_sub_u32 {sT0}, {sT0}, s34")
            p(f"""
            s_mul_i32 {sT0}, {sT0}, {f}
            s_min_u32 {sT0}, {sT0}, 100000
            {Ll}:
            s_memrealtime s[86:87]
            s_waitcnt lgkmcnt(0)
            s_sub_u32 {sT1}, s86, s{self.STAMP_REGS[self.names.index("end")]}
            s_cmp_lt_u32 {sT1}, {sT0}
            s_cbranch_scc1 {Ll}
            {Le}:""")
        elif self.prof: self.stamp_flush()
        L = p.lab("ep")
        p(f"s_or_b32 {sT0}, s2, {sW}\ns_cmp_lg_u32 {sT0}, 0\ns_cbranch_scc1 {L}")
        p(f"s_mov_b32 {sT0}, {O_EPOCH}"); self.setflag(sT0, 26)
        p(f"{L}:\nL_end:\ns_endpgm")
        p.raw("\n".join(self.tail))
        return p.text()

HEADER = open("interleave_layers__ssm_conv_h3__linear_kernel_hedgehog__prompt.s.ref").read().split("; Override launch")[0]

def full(prof=False, opt=None):
    k = K(prof, opt); body = k.build()
    assert k.p.maxv <= 255 and k.p.maxa <= 255 and k.p.maxs <= 101
    txt = HEADER + f"; @launch grid=(256,1,1) block=(256,1,1) lds={LDS_BYTES}\n"
    txt += f""".amdgcn_target "amdgcn-amd-amdhsa--gfx950"
.text
.globl {NAME}
.p2align 8
.type {NAME},@function
{NAME}:
{body}.section .rodata,"a"
.p2align 6
.amdhsa_kernel {NAME}
  .amdhsa_next_free_vgpr 512
  .amdhsa_next_free_sgpr 102
  .amdhsa_accum_offset 256
  .amdhsa_group_segment_fixed_size 0
  .amdhsa_kernarg_size 104
  .amdhsa_user_sgpr_count 2
  .amdhsa_user_sgpr_kernarg_segment_ptr 1
  .amdhsa_system_sgpr_workgroup_id_x 1
.end_amdhsa_kernel
"""
    return txt, k
```
